```python
import torch

def _softmax(x, axis=-1):
    return torch.softmax(x, dim=axis)
def _gelu(x):
    return torch.nn.functional.gelu(x, approximate="tanh")
def _silu(x):
    return torch.nn.functional.silu(x)
def _sigmoid(x):
    return torch.sigmoid(x)
def _layernorm(x, axis=-1, eps=1e-5):
    m = x.mean(dim=axis, keepdim=True)
    v = x.var(dim=axis, keepdim=True, unbiased=False)
    return (x - m) / torch.sqrt(v + eps)
def _scatter_add(tgt, idx, src, axis=0):
    return tgt.clone().index_add_(axis, idx, src)
def _segment_sum(src, seg, n):
    out = torch.zeros((n,) + src.shape[1:], dtype=src.dtype)
    return out.index_add_(0, seg, src)
def _pad(x, pw):
    flat = tuple(v for pair in reversed(pw) for v in pair)
    return torch.nn.functional.pad(x, flat)

kernel_name = 'sequential_preLN__gqa_block_cached__glu_gated_bilinear__decode'

def setup_inputs():

    _w = (lambda a: (lambda t: t.to(torch.bfloat16) if t.is_floating_point() else t)(torch.as_tensor(a)))
    def _A_setup():
        B, Sq, D = 8, 1, 448
        Hq, Hkv, Sk, Dh = 16, 8, 8192, 256
        assert Hq % Hkv == 0, (Hq, Hkv)
        return {
            "x": _w((lambda *s: torch.randn(*s, dtype=torch.bfloat16) * 0.05)(B, Sq, D)),
            "k_cache": _w((lambda *s: torch.randn(*s, dtype=torch.bfloat16) * 1.6)(B, Hkv, Sk, Dh)),
            "v_cache": _w((lambda *s: torch.randn(*s, dtype=torch.bfloat16) * 0.8)(B, Hkv, Sk, Dh)),
            "wq": _w((lambda *s: torch.randn(*s, dtype=torch.bfloat16) * 1.6)(D, Hq * Dh) * (D ** -0.5)),
            "wo": _w((lambda *s: torch.randn(*s, dtype=torch.bfloat16) * 0.8)(Hq * Dh, D) * ((Hq * Dh) ** -0.5)),
        }
    _A_in = _A_setup()

    def _B_setup():
        B, S, D, F = 8, 1, 448, 1792
        return {
            "x": _w((lambda *s: torch.randn(*s, dtype=torch.bfloat16) * 0.05)(B, S, D)),
            "w_gate": _w((lambda *s: torch.randn(*s, dtype=torch.bfloat16) * 0.4)(D, F) * (D ** -0.5)),
            "w_up": _w((lambda *s: torch.randn(*s, dtype=torch.bfloat16) * 0.4)(D, F) * (D ** -0.5)),
            "w_down": _w((lambda *s: torch.randn(*s, dtype=torch.bfloat16) * 0.4)(F, D) * (F ** -0.5)),
        }
    _B_in = _B_setup()

    return {
        "A_x": _A_in["x"],
        "A_k_cache": _A_in["k_cache"],
        "A_v_cache": _A_in["v_cache"],
        "A_wq": _A_in["wq"],
        "A_wo": _A_in["wo"],
        "B_x": _B_in["x"],
        "B_w_gate": _B_in["w_gate"],
        "B_w_up": _B_in["w_up"],
        "B_w_down": _B_in["w_down"],
    }

def reference(A_x, A_k_cache, A_v_cache, A_wq, A_wo, B_x, B_w_gate, B_w_up, B_w_down):
    def _A_ref(x, k_cache, v_cache, wq, wo):
        B, Sq, D = x.shape
        Hq, Dh = 16, 256
        Hkv = k_cache.shape[1]
        rep = Hq // Hkv
        q = (lambda x, *d: x.permute(*d))((x @ wq).reshape(B, Sq, Hq, Dh), 0, 2, 1, 3)
        k = (lambda x, n, axis: torch.repeat_interleave(x, n, dim=axis))(k_cache, rep, axis=1)
        v = (lambda x, n, axis: torch.repeat_interleave(x, n, dim=axis))(v_cache, rep, axis=1)
        scores = torch.einsum("bhqd,bhkd->bhqk", q, k) * (Dh ** -0.5)
        p = _softmax(scores, axis=-1)
        o = torch.einsum("bhqk,bhkd->bhqd", p, v)
        return (lambda x, *d: x.permute(*d))(o, 0, 2, 1, 3).reshape(B, Sq, Hq * Dh) @ wo

    def _B_ref(x, w_gate, w_up, w_down):
        g = torch.einsum("bsd,df->bsf", x, w_gate)
        u = torch.einsum("bsd,df->bsf", x, w_up)
        h = g * u
        return torch.einsum("bsf,fd->bsd", h, w_down)

    x = A_x
    h = x + _A_ref(_layernorm(x, axis=-1), A_k_cache, A_v_cache, A_wq, A_wo)
    h2 = h + _B_ref(_layernorm(h, axis=-1), B_w_gate, B_w_up, B_w_down)
    return h2
```

```python
import sys, struct

NAME = "sequential_preLN__gqa_block_cached__glu_gated_bilinear__decode"

def f32bits(x):
    return struct.unpack("<I", struct.pack("<f", x))[0]

WS_Q   = 0x000000
WS_IN1 = 0x100000
WS_IN2 = 0x400000
WS_H   = 0x600000
WS_HH  = 0x610000
WS_DBG = 0x1000000
WS_BYTES = 0x2000000
L_WO  = 0
L_WD  = 114688
L_SCR = 143424
L_CB  = L_SCR
L_QP  = L_SCR
L_HIMG = L_SCR
L_HN  = L_SCR + 7168
L_PART = L_SCR + 14336
L_STAT = L_SCR + 16384
L_OF  = L_SCR + 16512
L_QIMG = L_SCR + 16768
L_HHL = L_SCR + 18432
LDS_BYTES = 163840

C_SC = 1.4426950408889634 / 16.0

class G:
    def __init__(self):
        self.L = []
    def __call__(self, s):
        for line in s.strip().split("\n"):
            line = line.strip()
            if line:
                self.L.append("  " + line)
    def label(self, l):
        self.L.append(l + ":")
    def nop(self, n=1):
        while n > 0:
            k = min(n, 16)
            self.L.append(f"  s_nop {k-1}")
            n -= k

def vr(a, n=4):
    return f"v[{a}:{a+n-1}]"

V_TID, V_LANE, V_N, V_G = 0, 1, 2, 3
V_K0, V_K1, V_V0, V_V1 = 4, 5, 6, 7
V_IN1, V_IN2 = 8, 9
V_T0, V_T1, V_T2, V_T3, V_T4, V_T5 = 10, 11, 12, 13, 14, 15
V_Q = 16
V_ACC = 48
V_S = 56
V_P = 64
V_GU = 68
V_M, V_L, V_AL, V_NMC = 76, 77, 78, 79
V_A = 80
V_B = 112
CLR = 124
R_K0, R_K1, R_V0, R_V1 = 128, 160, 192, 224

S_WG, S_WAVE = 2, 3
S_K, S_V, S_WS, S_T = 8, 12, 16, 20
S_T2 = 24
S_OFF = 28
S_CNT = 29
S_HKV, S_B, S_S, S_R = 30, 31, 32, 33
S_C, S_SELLO, S_SELHI = 34, 35, 60
S_PTR = 36
P_X, P_K, P_V, P_WQ, P_WO, P_BX, P_WG, P_WU, P_WD, P_OUT, P_DBG, P_WS = [36 + 2*i for i in range(12)]
S_MASK = 64
S_A, S_Bx, S_Cx, S_Dx = 80, 81, 82, 83
S_EX = 84
S_HIM = 86
S_I = 87

def srd(g, s, p, nbytes):
    g(f"""s_mov_b32 s{s}, s{p}
          s_and_b32 s{s+1}, s{p+1}, 0xffff
          s_mov_b32 s{s+2}, {nbytes}
          s_mov_b32 s{s+3}, 0x20000""")

def S4(s):
    return f"s[{s}:{s+3}]"

def bf16_round(g, d, s):
    g(f"v_cvt_pk_bf16_f32 v{d}, v{s}, v{s}")
    g(f"v_lshlrev_b32 v{d}, 16, v{d}")

def xreduce(g, v, t, op, steps):
    for st in steps:
        if st == 1:
            g.nop(2); g(f"{op}_dpp v{v}, v{v}, v{v} quad_perm:[1,0,3,2] row_mask:0xf bank_mask:0xf")
        elif st == 2:
            g.nop(2); g(f"{op}_dpp v{v}, v{v}, v{v} quad_perm:[2,3,0,1] row_mask:0xf bank_mask:0xf")
        elif st == 4:
            g.nop(2); g(f"{op}_dpp v{v}, v{v}, v{v} row_ror:4 row_mask:0xf bank_mask:0xf")
        elif st == 8:
            g.nop(2); g(f"{op}_dpp v{v}, v{v}, v{v} row_ror:8 row_mask:0xf bank_mask:0xf")
        elif st == 16:
            g(f"v_mov_b32 v{t}, v{v}"); g.nop(2)
            g(f"v_permlane16_swap_b32 v{v}, v{t}"); g.nop(1)
            g(f"{op} v{v}, v{v}, v{t}")
        elif st == 32:
            g(f"v_mov_b32 v{t}, v{v}"); g.nop(2)
            g(f"v_permlane32_swap_b32 v{v}, v{t}"); g.nop(1)
            g(f"{op} v{v}, v{v}, v{t}")

def k_loads(g, which):
    vo, r = (V_K0, R_K0) if which == 0 else (V_K1, R_K1)
    for j in range(8):
        g(f"buffer_load_dwordx4 {vr(r+4*j)}, v{vo}, {S4(S_K)}, s{S_OFF} offen offset:{j*64} nt")

def v_loads(g, half):
    r = R_V0 if half == 0 else R_V1
    for j in range(8):
        vo = V_V0 if j < 4 else V_V1
        g(f"buffer_load_dwordx4 {vr(r+4*j)}, v{vo}, {S4(S_V)}, s{S_OFF} offen offset:{(j&3)*512+half*256} nt")

def tile_body(g, nwait):
    for t, r in ((0, R_K0), (1, R_K1)):
        g(f"s_waitcnt vmcnt({nwait})")
        s = V_S + 4*t
        for j in range(8):
            c = "0" if j == 0 else vr(s)
            g(f"v_mfma_f32_16x16x32_bf16 {vr(s)}, {vr(r+4*j)}, {vr(V_Q+4*j)}, {c}")
        k_loads(g, t)
    S = [V_S + i for i in range(8)]
    for i in range(4):
        g(f"v_cvt_pk_bf16_f32 v{V_P+i}, v{S[2*i]}, v{S[2*i+1]}")
    for i in range(4):
        g(f"v_lshlrev_b32 v{S[2*i]}, 16, v{V_P+i}")
        g(f"v_and_b32 v{S[2*i+1]}, s{S_HIM}, v{V_P+i}")
    g(f"""v_max3_f32 v{V_T0}, v{S[0]}, v{S[1]}, v{S[2]}
          v_max3_f32 v{V_T1}, v{S[3]}, v{S[4]}, v{S[5]}
          v_max3_f32 v{V_T0}, v{V_T0}, v{S[6]}, v{S[7]}
          v_max_f32 v{V_T0}, v{V_T0}, v{V_T1}""")
    xreduce(g, V_T0, V_T1, "v_max_f32", [16, 32])
    g(f"""v_max_f32 v{V_T0}, v{V_T0}, v{V_M}
          v_sub_f32 v{V_AL}, v{V_M}, v{V_T0}
          v_mul_f32 v{V_AL}, s{S_C}, v{V_AL}
          v_exp_f32 v{V_AL}, v{V_AL}
          v_mov_b32 v{V_M}, v{V_T0}
          v_mul_f32 v{V_NMC}, s{S_C}, v{V_T0}""")
    for i in range(8):
        g(f"v_fma_f32 v{S[i]}, v{S[i]}, s{S_C}, -v{V_NMC}")
    for i in range(8):
        g(f"v_exp_f32 v{S[i]}, v{S[i]}")
    for r in range(8):
        qp = "[0,0,2,2]" if (r & 1) == 0 else "[1,1,3,3]"
        g(f"v_mul_f32_dpp v{V_ACC+r}, v{V_AL}, v{V_ACC+r} quad_perm:{qp} row_mask:0xf bank_mask:0xf")
    for i in range(4):
        g(f"v_cvt_pk_bf16_f32 v{V_P+i}, v{S[2*i]}, v{S[2*i+1]}")
    g(f"""v_add_f32 v{V_T0}, v{S[0]}, v{S[1]}
          v_add_f32 v{V_T1}, v{S[2]}, v{S[3]}
          v_add_f32 v{V_T2}, v{S[4]}, v{S[5]}
          v_add_f32 v{V_T3}, v{S[6]}, v{S[7]}
          v_add_f32 v{V_T0}, v{V_T0}, v{V_T1}
          v_add_f32 v{V_T2}, v{V_T2}, v{V_T3}
          v_add_f32 v{V_T0}, v{V_T0}, v{V_T2}
          v_fma_f32 v{V_L}, v{V_L}, v{V_AL}, v{V_T0}""")
    for e in range(8):
        for i in range(4):
            g(f"v_cndmask_b32 v{V_A+4*e+i}, 0, v{V_P+i}, s[{S_MASK+2*e}:{S_MASK+2*e+1}]")
    for half, r in ((0, R_V0), (1, R_V1)):
        g(f"s_waitcnt vmcnt({nwait})")
        acc = V_ACC + 4*half
        def perms(e):
            b = V_B + 4*(e & 3)
            q = e >> 1
            sel = S_SELLO if (e & 1) == 0 else S_SELHI
            for p in range(4):
                g(f"v_perm_b32 v{b+p}, v{r+4*(2*p+1)+q}, v{r+4*(2*p)+q}, s{sel}")
        perms(0); perms(1)
        for e in range(8):
            if e + 2 < 8:
                perms(e + 2)
            else:
                g.nop(1)
            g(f"v_mfma_f32_16x16x32_bf16 {vr(acc)}, {vr(V_A+4*e)}, {vr(V_B+4*(e&3))}, {vr(acc)}")
        v_loads(g, half)

def gen(debug=0):
    g = G()
    g(f"s_cmp_ge_u32 s{S_WG}, 256")
    g("s_cbranch_scc1 L_end")
    g(f"s_load_dwordx16 s[36:51], s[0:1], 0")
    g(f"s_load_dwordx8 s[52:59], s[0:1], 64")
    g(f"""v_lshrrev_b32 v{V_T0}, 6, v0
          v_and_b32 v{V_LANE}, 63, v0
          v_and_b32 v{V_N}, 15, v0
          v_bfe_u32 v{V_G}, v0, 4, 2
          v_readfirstlane_b32 s{S_WAVE}, v{V_T0}
          s_and_b32 s{S_HKV}, s{S_WG}, 7
          s_lshr_b32 s{S_R}, s{S_WG}, 3
          s_lshr_b32 s{S_B}, s{S_WG}, 5
          s_and_b32 s{S_S}, s{S_R}, 3
          s_lshl_b32 s{S_I}, s{S_HKV}, 2
          s_add_u32 s{S_I}, s{S_I}, s{S_S}
          s_mov_b32 s{S_C}, {f32bits(C_SC):#x}
          s_mov_b32 s{S_SELLO}, 0x05040100
          s_mov_b32 s{S_SELHI}, 0x07060302
          s_mov_b32 s{S_HIM}, 0xffff0000
          s_mov_b32 s88, 0x40000""")
    for e in range(8):
        m16 = 3 << (2*e)
        m32 = m16 | (m16 << 16)
        g(f"s_mov_b32 s{S_MASK+2*e}, {m32:#x}")
        g(f"s_mov_b32 s{S_MASK+2*e+1}, {m32:#x}")
    g(f"""v_lshlrev_b32 v{V_K0}, 9, v{V_N}
          v_lshl_add_u32 v{V_K0}, v{V_G}, 4, v{V_K0}
          v_add_u32 v{V_K1}, 0x2000, v{V_K0}
          v_lshlrev_b32 v{V_V0}, 11, v{V_G}
          v_lshl_add_u32 v{V_V0}, v{V_N}, 4, v{V_V0}
          v_add_u32 v{V_V1}, 0x2000, v{V_V0}""")
    g(f"""s_lshl_b32 s{S_A}, s{S_B}, 3
          s_add_u32 s{S_A}, s{S_A}, s{S_HKV}
          s_lshl_b32 s{S_OFF}, s{S_A}, 22
          s_lshl_b32 s{S_A}, s{S_S}, 20
          s_add_u32 s{S_OFF}, s{S_OFF}, s{S_A}
          s_lshl_b32 s{S_A}, s{S_WAVE}, 14
          s_add_u32 s{S_OFF}, s{S_OFF}, s{S_A}""")
    g(f"""v_lshrrev_b32 v{V_T0}, 7, v0
          s_lshl_b32 s{S_A}, s{S_B}, 5
          s_add_u32 s{S_A}, s{S_A}, s{S_HKV}
          v_lshlrev_b32 v{V_T0}, 3, v{V_T0}
          v_add_u32 v{V_T0}, s{S_A}, v{V_T0}
          v_lshlrev_b32 v{V_IN1}, 13, v{V_T0}
          v_and_b32 v{V_T1}, 127, v0
          v_lshl_add_u32 v{V_IN1}, v{V_T1}, 3, v{V_IN1}
          s_lshl_b32 s{S_A}, s{S_S}, 10
          s_add_u32 s{S_A}, s{S_A}, {WS_IN1:#x}
          v_add_u32 v{V_IN1}, s{S_A}, v{V_IN1}""")
    g(f"""v_lshlrev_b32 v{V_T0}, 3, v{V_G}
          v_add_u32 v{V_T0}, s{S_WAVE}, v{V_T0}
          v_lshl_add_u32 v{V_T0}, v{V_T0}, 4, v{V_N}
          v_mul_u32_u24 v{V_T1}, 4682, v{V_T0}
          v_lshrrev_b32 v{V_T1}, 16, v{V_T1}
          v_mul_u32_u24 v{V_T2}, 14, v{V_T1}
          v_sub_u32 v{V_T2}, v{V_T0}, v{V_T2}
          v_and_b32 v{V_T3}, 3, v{V_T1}
          v_lshlrev_b32 v{V_T3}, 3, v{V_T3}
          v_lshrrev_b32 v{V_T1}, 2, v{V_T1}
          v_add_u32 v{V_T3}, v{V_T3}, v{V_T1}
          s_lshl_b32 s{S_A}, s{S_B}, 5
          v_add_u32 v{V_T3}, s{S_A}, v{V_T3}
          v_lshlrev_b32 v{V_IN2}, 12, v{V_T3}
          v_lshl_add_u32 v{V_IN2}, v{V_T2}, 8, v{V_IN2}
          s_lshl_b32 s{S_A}, s{S_I}, 3
          s_add_u32 s{S_A}, s{S_A}, {WS_IN2:#x}
          v_add_u32 v{V_IN2}, s{S_A}, v{V_IN2}""")
    g(f"""v_cmp_lt_u32 vcc, 447, v{V_T0}
          v_mov_b32 v{V_T1}, 0x7ffffff0
          s_nop 0
          v_cndmask_b32 v{V_IN2}, v{V_IN2}, v{V_T1}, vcc""")
    g("s_waitcnt lgkmcnt(0)")
    srd(g, S_K, P_K, 0x10000000)
    srd(g, S_V, P_V, 0x10000000)
    srd(g, S_WS, P_WS, WS_BYTES)
    g(f"""v_mov_b32 v{CLR}, -1
          v_mov_b32 v{CLR+1}, -1
          v_mov_b32 v{CLR+2}, -1
          v_mov_b32 v{CLR+3}, -1
          buffer_store_dwordx2 v[{CLR}:{CLR+1}], v{V_IN1}, {S4(S_WS)}, 0 offen sc1
          buffer_store_dwordx2 v[{CLR}:{CLR+1}], v{V_IN2}, {S4(S_WS)}, 0 offen sc1""")
    g(f"""s_mul_i32 s{S_A}, s{S_S}, 1016
          s_sub_u32 s{S_A}, 4096, s{S_A}
          v_add_u32 v{V_T0}, s{S_A}, v{V_IN1}
          v_and_b32 v{V_T1}, 127, v0
          v_cmp_eq_u32 vcc, 0, v{V_T1}
          s_and_saveexec_b64 s[{S_EX}:{S_EX+1}], vcc
          s_cbranch_execz L_clr1
          buffer_store_dwordx2 v[{CLR}:{CLR+1}], v{V_T0}, {S4(S_WS)}, 0 offen sc1""")
    g.label("L_clr1")
    g(f"s_mov_b64 exec, s[{S_EX}:{S_EX+1}]")
    g(f"s_cmp_eq_u32 s{S_WAVE}, 7")
    g("s_cbranch_scc1 L_svc")
    srd(g, S_T, P_X, 7168)
    srd(g, S_T2, P_WQ, 448*4096*2)
    XR = 16
    XU = 56
    XA = 44
    WB = 112
    g(f"""v_and_b32 v{V_T0}, 7, v{V_LANE}
          v_mul_u32_u24 v{V_T0}, 896, v{V_T0}
          v_lshrrev_b32 v{V_T1}, 3, v{V_LANE}
          v_lshl_add_u32 v{V_T1}, v{V_T1}, 4, v{V_T0}
          v_lshl_add_u32 v{V_T2}, v{V_G}, 4, v{V_T0}
          s_lshl_b32 s{S_A}, s{S_WAVE}, 7""")
    for t in range(7):
        g(f"buffer_load_dwordx4 {vr(XR+4*t)}, v{V_T1}, {S4(S_T)}, 0 offen offset:{t*128}")
    g(f"buffer_load_dwordx4 {vr(XA)}, v{V_T2}, {S4(S_T)}, s{S_A} offen")
    g(f"buffer_load_dwordx4 {vr(XA+4)}, v{V_T2}, {S4(S_T)}, s{S_A} offen offset:64")
    g(f"""v_lshlrev_b32 v{V_T3}, 16, v{V_G}
          v_lshl_add_u32 v{V_T3}, v{V_N}, 1, v{V_T3}
          s_lshl_b32 s{S_A}, s{S_WAVE}, 19
          s_lshl_b32 s{S_Bx}, s{S_HKV}, 10
          s_add_u32 s{S_A}, s{S_A}, s{S_Bx}
          s_lshl_b32 s{S_Bx}, s{S_R}, 5
          s_add_u32 s{S_A}, s{S_A}, s{S_Bx}""")
    WR = 56
    GR = 80
    for ks in range(2):
        for j in range(8):
            g(f"buffer_load_ushort v{WR+8*ks+j}, v{V_T3}, {S4(S_T2)}, s{S_A} offen")
            if j < 7:
                g(f"s_add_u32 s{S_A}, s{S_A}, 0x2000")
            elif ks == 0:
                g(f"s_add_u32 s{S_A}, s{S_A}, {(32-7)*0x2000:#x}")
    gu_loads(g, GR)
    k_loads(g, 0); k_loads(g, 1); v_loads(g, 0); v_loads(g, 1)
    g(f"s_add_u32 s{S_OFF}, s{S_OFF}, 0x20000")
    g("s_waitcnt vmcnt(63)")
    ln_stats(g, XR, 28, [8, 16, 32], 96)
    ln_apply(g, XA, 8, 96)
    g("s_waitcnt vmcnt(48)")
    for i in range(8):
        g(f"v_lshl_or_b32 v{WB+i}, v{WR+2*i+1}, 16, v{WR+2*i}")
    g.nop(1)
    g(f"v_mfma_f32_16x16x32_bf16 {vr(120)}, {vr(XA)}, {vr(WB)}, 0")
    g(f"v_mfma_f32_16x16x32_bf16 {vr(120)}, {vr(XA+4)}, {vr(WB+4)}, {vr(120)}")
    g(f"""v_lshlrev_b32 v{V_T0}, 4, v{V_LANE}
          s_lshl_b32 s{S_A}, s{S_WAVE}, 9
          s_add_u32 s{S_A}, s{S_A}, {L_QP}
          v_add_u32 v{V_T0}, s{S_A}, v{V_T0}
          s_mov_b32 exec_hi, 0""")
    g.nop(6)
    g(f"""ds_write_b128 v{V_T0}, {vr(120)}
          s_mov_b64 exec, -1
          s_waitcnt lgkmcnt(0)
          s_barrier
          s_waitcnt vmcnt(32)""")
    for i in range(8):
        g(f"v_lshl_or_b32 v{V_GU+i}, v{GR+2*i+1}, 16, v{GR+2*i}")
    weights_loads(g, True)
    g("s_branch L_waitq")
    g.label("L_svc")
    g(f"""s_lshl_b32 s{S_A}, s{S_WG}, 6
          s_add_u32 s{S_A}, s{S_A}, {WS_H:#x}
          s_lshl_b32 s{S_Bx}, s{S_WG}, 7
          s_add_u32 s{S_Bx}, s{S_Bx}, {WS_HH:#x}
          v_lshlrev_b32 v{V_T0}, 3, v{V_LANE}
          v_lshlrev_b32 v{V_T1}, 4, v{V_LANE}
          s_mov_b64 exec, 0xff
          buffer_store_dwordx2 v[{CLR}:{CLR+1}], v{V_T0}, {S4(S_WS)}, s{S_A} offen sc1
          buffer_store_dwordx4 v[{CLR}:{CLR+3}], v{V_T1}, {S4(S_WS)}, s{S_Bx} offen sc1
          s_mov_b64 exec, -1
          v_lshlrev_b32 v{V_T0}, 2, v{V_LANE}
          v_add_u32 v{V_T0}, {L_WD+28672}, v{V_T0}
          v_mov_b32 v{V_T1}, 0
          s_mov_b64 exec, 0xffff
          ds_write_b32 v{V_T0}, v{V_T1}
          s_mov_b64 exec, -1
          v_lshlrev_b32 v{V_T0}, 4, v{V_LANE}
          v_add_u32 v{V_T0}, {L_QP}, v{V_T0}
          s_waitcnt vmcnt(0) lgkmcnt(0)
          s_barrier""")
    for w in range(7):
        g(f"ds_read_b128 {vr(16+4*w)}, v{V_T0} offset:{w*512}")
    g("s_waitcnt lgkmcnt(0)")
    for w in range(1, 7):
        g(f"v_pk_add_f32 v[16:17], v[16:17], v[{16+4*w}:{17+4*w}]")
        g(f"v_pk_add_f32 v[18:19], v[18:19], v[{18+4*w}:{19+4*w}]")
    g(f"""v_cvt_pk_bf16_f32 v16, v16, v17
          v_cvt_pk_bf16_f32 v17, v18, v19
          v_lshlrev_b32 v{V_T0}, 4, v{V_N}
          v_lshl_add_u32 v{V_T0}, v{V_G}, 3, v{V_T0}
          s_lshl_b32 s{S_A}, s{S_HKV}, 13
          s_lshl_b32 s{S_Bx}, s{S_R}, 8
          s_add_u32 s{S_A}, s{S_A}, s{S_Bx}
          s_mov_b32 exec_hi, 0
          buffer_store_dwordx2 v[16:17], v{V_T0}, {S4(S_WS)}, s{S_A} offen sc1
          s_mov_b64 exec, -1""")
    srd(g, S_T, P_DBG, 256)
    g(f"""v_mov_b32 v{V_T0}, 1
          v_mov_b32 v{V_T1}, 0
          s_lshl_b32 s{S_A}, s{S_HKV}, 2
          s_waitcnt vmcnt(0)
          s_mov_b64 exec, 1
          buffer_atomic_add v{V_T0}, v{V_T1}, {S4(S_T)}, s{S_A} offen sc1
          s_mov_b64 exec, -1""")
    k_loads(g, 0); k_loads(g, 1); v_loads(g, 0); v_loads(g, 1)
    g(f"s_add_u32 s{S_OFF}, s{S_OFF}, 0x20000")
    weights_loads(g, False)
    srd(g, S_T, P_DBG, 256)
    g(f"v_lshlrev_b32 v{V_T0}, 2, v{V_LANE}")
    g("s_mov_b64 exec, 0xff")
    g.label("L_pollq")
    g(f"""buffer_load_dword v{V_T1}, v{V_T0}, {S4(S_T)}, 0 offen sc1
          s_waitcnt vmcnt(0)
          v_cmp_ne_u32 vcc, 32, v{V_T1}
          s_cbranch_vccz L_pollq_ok
 s_sub_u32 s88, s88, 1
 s_cmp_eq_u32 s88, 0
 s_cbranch_scc1 L_end
 s_branch L_pollq
 L_pollq_ok:
          s_mov_b64 exec, -1""")
    g(f"""v_lshlrev_b32 v{V_T0}, 7, v{V_LANE}
          s_lshl_b32 s{S_A}, s{S_HKV}, 13
          s_lshl_b32 s{S_Bx}, s{S_B}, 1
          s_add_u32 s{S_A}, s{S_A}, s{S_Bx}""")
    for j in range(8):
        g(f"buffer_load_ushort v{24+j}, v{V_T0}, {S4(S_WS)}, s{S_A} offen offset:{j*16} sc1")
    g(f"""v_lshlrev_b32 v{V_T0}, 4, v{V_LANE}
          v_add_u32 v{V_T0}, {L_QIMG}, v{V_T0}
          s_waitcnt vmcnt(0)
          v_lshl_or_b32 v16, v25, 16, v24
          v_lshl_or_b32 v17, v27, 16, v26
          v_lshl_or_b32 v18, v29, 16, v28
          v_lshl_or_b32 v19, v31, 16, v30
          ds_write_b128 v{V_T0}, v[16:19]
          s_waitcnt lgkmcnt(0)""")
    g.label("L_waitq")
    g("s_barrier")
    g(f"""v_and_b32 v{V_T0}, 1, v{V_N}
          v_lshlrev_b32 v{V_T0}, 9, v{V_T0}
          v_lshl_add_u32 v{V_T0}, v{V_G}, 4, v{V_T0}
          v_add_u32 v{V_T0}, {L_QIMG}, v{V_T0}""")
    for j in range(8):
        g(f"ds_read_b128 {vr(V_Q+4*j)}, v{V_T0} offset:{j*64}")
    for r in range(8):
        g(f"v_mov_b32 v{V_ACC+r}, 0")
    g(f"""v_mov_b32 v{V_M}, 0xf149f2ca
          v_mov_b32 v{V_L}, 0
          s_mov_b32 s{S_CNT}, 6
          s_waitcnt lgkmcnt(0)""")
    tile_body(g, 38)
    g(f"s_add_u32 s{S_OFF}, s{S_OFF}, 0x20000")
    g.label("L_loop")
    g(f"""s_cmp_eq_u32 s{S_CNT}, 0
          s_cselect_b32 s{S_OFF}, 0x7ff00000, s{S_OFF}""")
    tile_body(g, 24)
    g(f"""s_add_u32 s{S_OFF}, s{S_OFF}, 0x20000
          s_sub_u32 s{S_CNT}, s{S_CNT}, 1
          s_cmp_ge_i32 s{S_CNT}, 0
          s_cbranch_scc1 L_loop""")
    tail(g, debug)
    g.label("L_end")
    g("s_endpgm")
    return g.L

def ln_stats(g, XR, ndw, steps, T):
    def unp(i, t):
        g(f"v_lshlrev_b32 v{t}, 16, v{XR+i}")
        g(f"v_and_b32 v{t+1}, s{S_HIM}, v{XR+i}")
    unp(0, V_T0); unp(1, V_T2)
    for i in range(2, ndw):
        t = T + 2*(i & 1); a = V_T0 + 2*(i & 1)
        unp(i, t)
        g(f"v_pk_add_f32 v[{a}:{a+1}], v[{a}:{a+1}], v[{t}:{t+1}]")
    g(f"""v_pk_add_f32 v[{V_T0}:{V_T1}], v[{V_T0}:{V_T1}], v[{V_T2}:{V_T3}]
          v_add_f32 v{V_T0}, v{V_T0}, v{V_T1}""")
    xreduce(g, V_T0, V_T1, "v_add_f32", steps)
    g(f"""v_mul_f32 v{V_T4}, {f32bits(1.0/448.0):#x}, v{V_T0}
          v_mul_f32 v{V_T5}, {f32bits(1.0/448.0):#x}, v{V_T0}
          v_mov_b32 v{V_T0}, 0
          v_mov_b32 v{V_T1}, 0
          v_mov_b32 v{V_T2}, 0
          v_mov_b32 v{V_T3}, 0""")
    for i in range(ndw):
        t = T + 2*(i & 1); a = V_T0 + 2*(i & 1)
        unp(i, t)
        g(f"v_pk_add_f32 v[{t}:{t+1}], v[{t}:{t+1}], v[{V_T4}:{V_T5}] neg_lo:[0,1] neg_hi:[0,1]")
        g(f"v_pk_fma_f32 v[{a}:{a+1}], v[{t}:{t+1}], v[{t}:{t+1}], v[{a}:{a+1}]")
    ln_finish(g, steps)

def ln_finish(g, steps):
    g(f"""v_pk_add_f32 v[{V_T0}:{V_T1}], v[{V_T0}:{V_T1}], v[{V_T2}:{V_T3}]
          v_add_f32 v{V_T0}, v{V_T0}, v{V_T1}""")
    xreduce(g, V_T0, V_T1, "v_add_f32", steps)
    g(f"v_mul_f32 v{V_T0}, {f32bits(1.0/448.0):#x}, v{V_T0}")
    bf16_round(g, V_T0, V_T0)
    g(f"v_add_f32 v{V_T0}, {f32bits(1e-5):#x}, v{V_T0}")
    bf16_round(g, V_T0, V_T0)
    g(f"v_sqrt_f32 v{V_T0}, v{V_T0}")
    bf16_round(g, V_T4, V_T4)
    bf16_round(g, V_T5, V_T0)
    g(f"v_rcp_f32 v{V_T3}, v{V_T5}")
    g.nop(1)

def ln_stats_tail(g, XU, npair, steps):
    g(f"""v_mul_f32 v{V_T4}, {f32bits(1.0/448.0):#x}, v{V_T0}
          v_mov_b32 v{V_T5}, v{V_T4}""".replace(f"v_mov_b32 v{V_T5}, v{V_T4}", f"v_mul_f32 v{V_T5}, {f32bits(1.0/448.0):#x}, v{V_T0}"))
    g(f"""v_mov_b32 v{V_T0}, 0
          v_mov_b32 v{V_T1}, 0
          v_mov_b32 v{V_T2}, 0
          v_mov_b32 v{V_T3}, 0""")
    for i in range(npair):
        g(f"v_pk_add_f32 v[{XU+2*i}:{XU+2*i+1}], v[{XU+2*i}:{XU+2*i+1}], v[{V_T4}:{V_T5}] neg_lo:[0,1] neg_hi:[0,1]")
    for i in range(npair):
        a = V_T0 if (i & 1) == 0 else V_T2
        g(f"v_pk_fma_f32 v[{a}:{a+1}], v[{XU+2*i}:{XU+2*i+1}], v[{XU+2*i}:{XU+2*i+1}], v[{a}:{a+1}]")
    g(f"""v_pk_add_f32 v[{V_T0}:{V_T1}], v[{V_T0}:{V_T1}], v[{V_T2}:{V_T3}]
          v_add_f32 v{V_T0}, v{V_T0}, v{V_T1}""")
    xreduce(g, V_T0, V_T1, "v_add_f32", steps)
    g(f"v_mul_f32 v{V_T0}, {f32bits(1.0/448.0):#x}, v{V_T0}")
    bf16_round(g, V_T0, V_T0)
    g(f"v_add_f32 v{V_T0}, {f32bits(1e-5):#x}, v{V_T0}")
    bf16_round(g, V_T0, V_T0)
    g(f"v_sqrt_f32 v{V_T0}, v{V_T0}")
    bf16_round(g, V_T4, V_T4)
    bf16_round(g, V_T5, V_T0)
    g(f"v_rcp_f32 v{V_T3}, v{V_T5}")
    g.nop(1)

def ln_apply(g, X, ndw, T):
    for i in range(ndw):
        a, b, c, d, e, f = T, T+1, T+2, T+3, T+4, T+5
        g(f"""v_lshlrev_b32 v{a}, 16, v{X+i}
              v_and_b32 v{b}, s{S_HIM}, v{X+i}
              v_sub_f32 v{a}, v{a}, v{V_T4}
              v_sub_f32 v{b}, v{b}, v{V_T4}
              v_cvt_pk_bf16_f32 v{b}, v{a}, v{b}
              v_lshlrev_b32 v{a}, 16, v{b}
              v_and_b32 v{b}, s{S_HIM}, v{b}
              v_mul_f32 v{c}, v{a}, v{V_T3}
              v_mul_f32 v{d}, v{b}, v{V_T3}
              v_fma_f32 v{e}, -v{c}, v{V_T5}, v{a}
              v_fma_f32 v{f}, -v{d}, v{V_T5}, v{b}
              v_fma_f32 v{c}, v{e}, v{V_T3}, v{c}
              v_fma_f32 v{d}, v{f}, v{V_T3}, v{d}
              v_cvt_pk_bf16_f32 v{X+i}, v{c}, v{d}""")

def weights_loads(g, with_gu):
    tag = "a" if with_gu else "b"
    if with_gu:
        g(f"s_cmp_ge_u32 s{S_WG}, 56")
        g(f"s_cbranch_scc1 L_nowd")
        srd(g, S_T, P_WD, 1792*448*2)
        g(f"""v_mul_u32_u24 v{V_T0}, 896, v{V_LANE}
              s_mul_i32 s{S_A}, s{S_WAVE}, {4*64*896}
              s_lshl_b32 s{S_Bx}, s{S_WG}, 4
              s_add_u32 s{S_A}, s{S_A}, s{S_Bx}
              s_lshl_b32 s{S_Bx}, s{S_WAVE}, 12
              s_add_u32 s{S_Bx}, s{S_Bx}, {L_WD}""")
        for i in range(4):
            g(f"""s_mov_b32 m0, s{S_Bx}
                  s_add_u32 s{S_Bx}, s{S_Bx}, 1024
                  buffer_load_dwordx4 v{V_T0}, {S4(S_T)}, s{S_A} offen lds
                  s_add_u32 s{S_A}, s{S_A}, {64*896}""")
        g.label("L_nowd")
    srd(g, S_T, P_WO, 4096*448*2)
    g(f"""v_lshrrev_b32 v{V_T0}, 3, v{V_LANE}
          v_bfe_u32 v{V_T1}, v{V_LANE}, 1, 2
          v_lshrrev_b32 v{V_T2}, 4, v{V_LANE}
          v_xor_b32 v{V_T1}, v{V_T1}, v{V_T2}
          v_mul_u32_u24 v{V_T0}, 896, v{V_T0}
          v_and_b32 v{V_T2}, 1, v{V_LANE}
          v_lshl_add_u32 v{V_T0}, v{V_T2}, 4, v{V_T0}
          v_lshl_add_u32 v{V_T2}, v{V_T1}, 5, v{V_T0}
          v_xor_b32 v{V_T1}, 2, v{V_T1}
          v_lshl_add_u32 v{V_T3}, v{V_T1}, 5, v{V_T0}
          s_lshl_b32 s{S_A}, s{S_I}, 7
          s_lshl_b32 s{S_Bx}, s{S_WAVE}, 4
          s_add_u32 s{S_A}, s{S_A}, s{S_Bx}
          s_mul_i32 s{S_A}, s{S_A}, 896
          s_mul_i32 s{S_Bx}, s{S_WAVE}, {14*1024}""")
    for par in range(2):
        for cb7 in range(7):
            g(f"""s_mov_b32 m0, s{S_Bx}
                  s_add_u32 s{S_Bx}, s{S_Bx}, 1024
                  buffer_load_dwordx4 v{V_T2+par}, {S4(S_T)}, s{S_A} offen lds
                  s_add_u32 s{S_A}, s{S_A}, {128 if cb7 < 6 else 8*896-6*128}""")

def gu_loads(g, GR):
    if True:
        g(f"""v_cmp_lt_u32 vcc, 6, v{V_N}
              v_mov_b32 v{V_T0}, s{P_WG}
              v_mov_b32 v{V_T1}, s{P_WG+1}
              v_mov_b32 v{V_T2}, s{P_WU}
              v_mov_b32 v{V_T3}, s{P_WU+1}
              v_cndmask_b32 v{V_T0}, v{V_T0}, v{V_T2}, vcc
              v_cndmask_b32 v{V_T1}, v{V_T1}, v{V_T3}, vcc
              v_subrev_u32 v{V_T2}, 7, v{V_N}
              v_cndmask_b32 v{V_T2}, v{V_N}, v{V_T2}, vcc
              v_cmp_lt_u32 vcc, 6, v{V_T2}
              v_subrev_u32 v{V_T3}, 7, v{V_T2}
              s_nop 0
              v_cndmask_b32 v{V_T2}, v{V_T2}, v{V_T3}, vcc
              v_lshlrev_b32 v{V_T2}, 1, v{V_T2}
              v_mul_u32_u24 v{V_T3}, {8*3584}, v{V_G}
              v_add_u32 v{V_T2}, v{V_T2}, v{V_T3}
              s_mul_i32 s{S_A}, s{S_WAVE}, {64*3584}
              s_mul_i32 s{S_Bx}, s{S_WG}, 14
              s_add_u32 s{S_A}, s{S_A}, s{S_Bx}
              v_add_u32 v{V_T2}, s{S_A}, v{V_T2}
              v_add_co_u32 v{V_T0}, vcc, v{V_T0}, v{V_T2}
              s_nop 1
              v_addc_co_u32 v{V_T1}, vcc, 0, v{V_T1}, vcc""")
        for ks in range(2):
            for j in range(8):
                g(f"global_load_ushort v{GR+8*ks+j}, v[{V_T0}:{V_T1}], off")
                if not (ks == 1 and j == 7):
                    inc = 3584 if j < 7 else (32-7)*3584
                    g(f"""v_add_co_u32 v{V_T0}, vcc, {inc}, v{V_T0}
                          s_nop 1
                          v_addc_co_u32 v{V_T1}, vcc, 0, v{V_T1}, vcc""")

def tail(g, debug):
    R = 128
    g("s_waitcnt vmcnt(0)")
    xreduce(g, V_L, V_T0, "v_add_f32", [16, 32])
    g(f"""v_lshlrev_b32 v{V_T0}, 5, v{V_N}
          v_lshl_add_u32 v{V_T0}, v{V_G}, 3, v{V_T0}
          s_lshl_b32 s{S_A}, s{S_WAVE}, 11
          s_add_u32 s{S_A}, s{S_A}, {L_CB}
          v_add_u32 v{V_T0}, s{S_A}, v{V_T0}
          v_add_u32 v{V_T1}, 1024, v{V_T0}""")
    for half in range(2):
        a = V_ACC + 4*half
        g(f"ds_write2_b32 v{V_T0}, v{a}, v{a+2} offset0:{half*128} offset1:{half*128+1}")
        g(f"ds_write2_b32 v{V_T1}, v{a+1}, v{a+3} offset0:{half*128} offset1:{half*128+1}")
    g(f"""s_lshl_b32 s{S_A}, s{S_WAVE}, 4
          s_add_u32 s{S_A}, s{S_A}, {L_STAT}
          v_lshlrev_b32 v{V_T2}, 3, v{V_LANE}
          v_add_u32 v{V_T2}, s{S_A}, v{V_T2}
          s_mov_b64 exec, 3
          ds_write_b64 v{V_T2}, v[{V_M}:{V_L}]
          s_mov_b64 exec, -1
          s_waitcnt lgkmcnt(0)
          s_barrier""")
    g(f"""v_lshlrev_b32 v{V_T0}, 2, v0
          v_add_u32 v{V_T0}, {L_CB}, v{V_T0}
          v_lshrrev_b32 v{V_T1}, 8, v0
          v_lshlrev_b32 v{V_T1}, 3, v{V_T1}
          v_add_u32 v{V_T1}, {L_STAT}, v{V_T1}""")
    for w in range(8):
        g(f"ds_read_b64 v[{16+2*w}:{17+2*w}], v{V_T1} offset:{w*16}")
    for w in range(8):
        g(f"ds_read_b32 v{32+w}, v{V_T0} offset:{w*2048}")
    g(f"""v_bfe_u32 v{V_T2}, v{V_LANE}, 2, 2
          v_lshrrev_b32 v{V_T3}, 1, v{V_T2}
          v_and_b32 v{V_T4}, 1, v{V_G}
          v_lshlrev_b32 v{V_T4}, 1, v{V_T4}
          v_xor_b32 v{V_T3}, v{V_T3}, v{V_T4}
          s_and_b32 s{S_A}, s{S_WAVE}, 3
          v_xor_b32 v{V_T3}, s{S_A}, v{V_T3}
          v_mul_u32_u24 v{V_T4}, 7168, v{V_G}
          v_lshl_add_u32 v{V_T4}, v{V_T2}, 7, v{V_T4}
          v_and_b32 v{V_T2}, 3, v{V_LANE}
          v_lshl_add_u32 v{V_T4}, v{V_T2}, 3, v{V_T4}
          s_lshr_b32 s{S_A}, s{S_WAVE}, 2
          s_lshl_b32 s{S_A}, s{S_A}, 10
          v_add_u32 v{V_T4}, s{S_A}, v{V_T4}
          v_lshl_add_u32 v{V_M}, v{V_T3}, 5, v{V_T4}
          v_xor_b32 v{V_T3}, 2, v{V_T3}
          v_lshl_add_u32 v{V_L}, v{V_T3}, 5, v{V_T4}
          v_add_u32 v{V_L}, 512, v{V_L}
          v_add_u32 v{V_AL}, 57344, v{V_M}
          v_add_u32 v{V_NMC}, 57344, v{V_L}""")
    g("s_waitcnt lgkmcnt(0)")
    g(f"""v_max3_f32 v{V_T0}, v16, v18, v20
          v_max3_f32 v{V_T1}, v22, v24, v26
          v_max3_f32 v{V_T0}, v{V_T0}, v28, v30
          v_max_f32 v{V_T0}, v{V_T0}, v{V_T1}""")
    for w in range(8):
        g(f"v_sub_f32 v{16+2*w}, v{16+2*w}, v{V_T0}")
    for w in range(8):
        g(f"v_mul_f32 v{16+2*w}, s{S_C}, v{16+2*w}")
    for w in range(8):
        g(f"v_exp_f32 v{16+2*w}, v{16+2*w}")
    g.nop(1)
    g(f"""v_mul_f32 v{V_T1}, v16, v17
          v_mul_f32 v{V_T2}, v16, v32""")
    for w in range(1, 8):
        g(f"v_fma_f32 v{V_T1}, v{16+2*w}, v{17+2*w}, v{V_T1}")
        g(f"v_fma_f32 v{V_T2}, v{16+2*w}, v{32+w}, v{V_T2}")
    g(f"""v_rcp_f32 v{V_T3}, v{V_T1}
          v_log_f32 v{V_T4}, v{V_T1}
          v_mov_b32 v41, 0
          v_mov_b32 v43, 0
          v_mul_f32 v40, v{V_T2}, v{V_T3}
          v_fma_f32 v42, v{V_T0}, s{S_C}, v{V_T4}
          buffer_store_dwordx2 v[40:41], v{V_IN1}, {S4(S_WS)}, 0 offen sc1
          s_mul_i32 s{S_A}, s{S_S}, 1016
          s_sub_u32 s{S_A}, 4096, s{S_A}
          v_add_u32 v{V_T0}, s{S_A}, v{V_IN1}
          v_and_b32 v{V_T1}, 127, v0
          v_cmp_eq_u32 vcc, 0, v{V_T1}
          s_and_saveexec_b64 s[{S_EX}:{S_EX+1}], vcc
          s_cbranch_execz L_t1s
          buffer_store_dwordx2 v[42:43], v{V_T0}, {S4(S_WS)}, 0 offen sc1""")
    g.label("L_t1s")
    g(f"s_mov_b64 exec, s[{S_EX}:{S_EX+1}]")
    for q in range(4):
        for ks in range(4):
            a1, a2 = (V_M, V_L) if ks < 2 else (V_AL, V_NMC)
            off = (ks & 1) * 28672 + q * 2048
            r = R + (q*4 + ks) * 4
            g(f"ds_read_b64_tr_b16 v[{r}:{r+1}], v{a1} offset:{off}")
            g(f"ds_read_b64_tr_b16 v[{r+2}:{r+3}], v{a2} offset:{off}")
    g(f"s_cmp_ge_u32 s{S_WAVE}, 2")
    g("s_cbranch_scc1 L_t2b")
    g(f"""s_lshl_b32 s{S_A}, s{S_WG}, 13
          s_add_u32 s{S_A}, s{S_A}, {WS_IN1:#x}
          v_lshlrev_b32 v{V_T0}, 3, v0
          v_mov_b32 v{V_T1}, 4096""")
    g.label("L_p1")
    for s in range(4):
        g(f"buffer_load_dwordx2 v[{16+2*s}:{17+2*s}], v{V_T0}, {S4(S_WS)}, s{S_A} offen offset:{s*1024} sc1")
    g(f"""buffer_load_dwordx4 v[24:27], v{V_T1}, {S4(S_WS)}, s{S_A} offen sc1
          buffer_load_dwordx4 v[28:31], v{V_T1}, {S4(S_WS)}, s{S_A} offen offset:16 sc1
          s_waitcnt vmcnt(0)
          v_or3_b32 v{V_T2}, v17, v19, v21
          v_or3_b32 v{V_T3}, v23, v25, v27
          v_or3_b32 v{V_T2}, v{V_T2}, v29, v31
          v_or_b32 v{V_T2}, v{V_T2}, v{V_T3}
          v_cmp_ne_u32 vcc, 0, v{V_T2}
          s_cbranch_vccz L_p1_ok
 s_sub_u32 s88, s88, 1
 s_cmp_eq_u32 s88, 0
 s_cbranch_scc1 L_end
 s_branch L_p1
 L_p1_ok:""")
    g(f"""v_max3_f32 v{V_T2}, v24, v26, v28
          v_max_f32 v{V_T2}, v{V_T2}, v30
          v_sub_f32 v24, v24, v{V_T2}
          v_sub_f32 v26, v26, v{V_T2}
          v_sub_f32 v28, v28, v{V_T2}
          v_sub_f32 v30, v30, v{V_T2}
          v_exp_f32 v24, v24
          v_exp_f32 v26, v26
          v_exp_f32 v28, v28
          v_exp_f32 v30, v30
          s_nop 0
          v_add_f32 v{V_T2}, v24, v26
          v_add_f32 v{V_T3}, v28, v30
          v_add_f32 v{V_T2}, v{V_T2}, v{V_T3}
          v_rcp_f32 v{V_T2}, v{V_T2}
          v_mul_f32 v{V_T3}, v24, v16
          v_fma_f32 v{V_T3}, v26, v18, v{V_T3}
          v_fma_f32 v{V_T3}, v28, v20, v{V_T3}
          v_fma_f32 v{V_T3}, v30, v22, v{V_T3}
          v_mul_f32 v{V_T3}, v{V_T3}, v{V_T2}
          v_cvt_pk_bf16_f32 v{V_T3}, v{V_T3}, v{V_T3}
          v_lshlrev_b32 v{V_T0}, 1, v0
          v_add_u32 v{V_T0}, {L_OF}, v{V_T0}
          ds_write_b16 v{V_T0}, v{V_T3}""")
    if debug:
        g(f"""s_lshl_b32 s{S_A}, s{S_WG}, 8
              s_add_u32 s{S_A}, s{S_A}, {WS_DBG:#x}
              v_lshlrev_b32 v{V_T0}, 1, v0
              buffer_store_short v{V_T3}, v{V_T0}, {S4(S_WS)}, s{S_A} offen""")
    g.label("L_t2b")
    g(f"""v_lshlrev_b32 v{V_T0}, 4, v{V_G}
          v_add_u32 v{V_T0}, {L_OF}, v{V_T0}
          s_waitcnt lgkmcnt(0)
          s_barrier""")
    for ks in range(4):
        g(f"ds_read_b128 {vr(16+4*ks)}, v{V_T0} offset:{ks*64}")
    srd(g, S_T, P_X, 7168)
    g(f"""s_mul_i32 s{S_A}, s{S_B}, 896
          s_mul_i32 s{S_Bx}, s{S_I}, 28
          s_add_u32 s{S_A}, s{S_A}, s{S_Bx}
          v_lshrrev_b32 v{V_T1}, 5, v0
          v_lshlrev_b32 v{V_T1}, 1, v{V_T1}
          buffer_load_ushort v{V_T5}, v{V_T1}, {S4(S_T)}, s{S_A} offen
          s_waitcnt lgkmcnt(0)""")
    for ks in range(4):
        for q in range(4):
            c = "0" if ks == 0 else vr(32+4*q)
            g(f"v_mfma_f32_16x16x32_bf16 {vr(32+4*q)}, {vr(16+4*ks)}, {vr(R+(q*4+ks)*4)}, {c}")
    g(f"""v_cmp_eq_u32 vcc, 1, v{V_G}
          v_cmp_eq_u32 s[{S_A}:{S_A+1}], 2, v{V_G}
          v_cmp_eq_u32 s[{S_Cx}:{S_Cx+1}], 3, v{V_G}
          v_mov_b32 v49, 0""")
    g.nop(6)
    g(f"""v_cndmask_b32 v48, v32, v36, vcc
          v_cndmask_b32 v48, v48, v40, s[{S_A}:{S_A+1}]
          v_cndmask_b32 v48, v48, v44, s[{S_Cx}:{S_Cx+1}]
          buffer_store_dwordx2 v[48:49], v{V_IN2}, {S4(S_WS)}, 0 offen sc1""")
    g(f"s_cmp_eq_u32 s{S_WAVE}, 7")
    g("s_cbranch_scc1 L_t5")
    g(f"""s_lshl_b32 s{S_A}, s{S_WG}, 12
          s_add_u32 s{S_A}, s{S_A}, {WS_IN2:#x}
          v_lshlrev_b32 v{V_T0}, 3, v0""")
    g.label("L_p2")
    g(f"""buffer_load_dwordx2 v[16:17], v{V_T0}, {S4(S_WS)}, s{S_A} offen sc1
          s_waitcnt vmcnt(0)
          v_cmp_ne_u32 vcc, 0, v17
          s_cbranch_vccz L_p2_ok
 s_sub_u32 s88, s88, 1
 s_cmp_eq_u32 s88, 0
 s_cbranch_scc1 L_end
 s_branch L_p2
 L_p2_ok:""")
    xreduce(g, 16, 18, "v_add_f32", [1, 2, 4, 8, 16])
    bf16_round(g, 16, 16)
    g(f"""v_lshlrev_b32 v{V_T5}, 16, v{V_T5}
          v_add_f32 v16, v16, v{V_T5}
          v_mov_b32 v18, v16
          s_nop 1
          v_permlane32_swap_b32 v16, v18
          s_nop 1
          v_cvt_pk_bf16_f32 v16, v16, v18
          v_mov_b32 v17, 0
          s_lshl_b32 s{S_A}, s{S_WG}, 6
          s_lshl_b32 s{S_Bx}, s{S_WAVE}, 3
          s_add_u32 s{S_A}, s{S_A}, s{S_Bx}
          s_add_u32 s{S_A}, s{S_A}, {WS_H:#x}
          v_mov_b32 v{V_T0}, 0
          s_mov_b64 exec, 1
          buffer_store_dwordx2 v[16:17], v{V_T0}, {S4(S_WS)}, s{S_A} offen sc1
          s_mov_b64 exec, -1""")
    g.label("L_t5")
    g(f"""v_lshlrev_b32 v{V_T0}, 5, v0
          v_and_b32 v{V_T1}, 1, v0
          v_cmp_eq_u32 s[{S_A}:{S_A+1}], 1, v{V_T1}
          v_lshrrev_b32 v{V_T2}, 6, v0
          v_mul_u32_u24 v{V_T2}, 896, v{V_T2}
          v_bfe_u32 v{V_T3}, v0, 1, 3
          v_lshlrev_b32 v{V_T3}, 2, v{V_T3}
          v_bfe_u32 v{V_T4}, v0, 4, 2
          v_add_u32 v{V_T3}, v{V_T3}, v{V_T4}
          v_mul_u32_u24 v{V_T3}, 28, v{V_T3}
          v_add_u32 v{V_T2}, v{V_T2}, v{V_T3}
          v_lshl_add_u32 v{V_T2}, v{V_T1}, 4, v{V_T2}
          v_add_u32 v{V_T2}, {L_HIMG}, v{V_T2}
          s_mov_b32 s{S_Cx}, {WS_H:#x}""")
    g.label("L_p3")
    g(f"""buffer_load_dwordx4 v[16:19], v{V_T0}, {S4(S_WS)}, s{S_Cx} offen sc1
          buffer_load_dwordx4 v[20:23], v{V_T0}, {S4(S_WS)}, s{S_Cx} offen offset:16 sc1
          s_waitcnt vmcnt(0)
          v_cndmask_b32 v23, v23, 0, s[{S_A}:{S_A+1}]
          v_or3_b32 v{V_T3}, v17, v19, v21
          v_or_b32 v{V_T3}, v{V_T3}, v23
          v_cmp_ne_u32 vcc, 0, v{V_T3}
          s_cbranch_vccz L_p3_ok
 s_sub_u32 s88, s88, 1
 s_cmp_eq_u32 s88, 0
 s_cbranch_scc1 L_end
 s_branch L_p3
 L_p3_ok:""")
    g(f"""ds_write2_b32 v{V_T2}, v16, v18 offset0:0 offset1:1
          ds_write_b32 v{V_T2}, v20 offset:8
          s_andn2_b64 exec, exec, s[{S_A}:{S_A+1}]
          ds_write_b32 v{V_T2}, v22 offset:12
          s_mov_b64 exec, -1
          s_waitcnt lgkmcnt(0)
          s_barrier""")
    g(f"""s_mul_i32 s{S_A}, s{S_WAVE}, 896
          v_lshlrev_b32 v{V_M}, 4, v{V_LANE}
          v_add_u32 v{V_M}, s{S_A}, v{V_M}
          v_add_u32 v{V_L}, {L_HIMG}, v{V_M}
          v_mov_b32 v16, 0
          v_mov_b32 v17, 0
          v_mov_b32 v18, 0
          v_mov_b32 v19, 0
          s_mov_b32 s{S_EX}, -1
          s_mov_b32 s{S_EX+1}, 0x00ffffff
          s_mov_b64 exec, s[{S_EX}:{S_EX+1}]
          ds_read_b128 v[16:19], v{V_L}
          s_mov_b64 exec, -1
          s_waitcnt lgkmcnt(0)""")
    for i in range(4):
        g(f"v_lshlrev_b32 v{24+2*i}, 16, v{16+i}")
        g(f"v_and_b32 v{25+2*i}, s{S_HIM}, v{16+i}")
    g(f"""v_pk_add_f32 v[{V_T0}:{V_T1}], v[24:25], v[26:27]
          v_pk_add_f32 v[{V_T2}:{V_T3}], v[28:29], v[30:31]
          v_pk_add_f32 v[{V_T0}:{V_T1}], v[{V_T0}:{V_T1}], v[{V_T2}:{V_T3}]
          v_add_f32 v{V_T0}, v{V_T0}, v{V_T1}""")
    xreduce(g, V_T0, V_T1, "v_add_f32", [1, 2, 4, 8, 16, 32])
    g(f"""v_mul_f32 v{V_T4}, {f32bits(1.0/448.0):#x}, v{V_T0}
          s_mov_b64 exec, s[{S_EX}:{S_EX+1}]
          s_not_b64 exec, exec""")
    for i in range(8):
        g(f"v_mov_b32 v{24+i}, v{V_T4}")
    g("s_mov_b64 exec, -1")
    ln_stats_tail(g, 24, 4, [1, 2, 4, 8, 16, 32])
    ln_apply(g, 16, 4, 32)
    g(f"""v_add_u32 v{V_L}, {L_HN}, v{V_M}
          s_mov_b64 exec, s[{S_EX}:{S_EX+1}]
          ds_write_b128 v{V_L}, v[16:19]
          s_mov_b64 exec, -1
          v_and_b32 v{V_T0}, 7, v{V_LANE}
          v_mul_u32_u24 v{V_T0}, 896, v{V_T0}
          v_lshl_add_u32 v{V_T0}, v{V_G}, 4, v{V_T0}
          s_lshl_b32 s{S_A}, s{S_WAVE}, 7
          s_add_u32 s{S_A}, s{S_A}, {L_HN}
          v_add_u32 v{V_T0}, s{S_A}, v{V_T0}
          s_waitcnt lgkmcnt(0)
          s_barrier""")
    g(f"s_cmp_eq_u32 s{S_WAVE}, 7")
    g("s_cbranch_scc1 L_t7b")
    g(f"""ds_read_b128 v[16:19], v{V_T0}
          ds_read_b128 v[20:23], v{V_T0} offset:64
          v_lshlrev_b32 v{V_T1}, 4, v{V_LANE}
          s_lshl_b32 s{S_A}, s{S_WAVE}, 9
          s_add_u32 s{S_A}, s{S_A}, {L_PART}
          v_add_u32 v{V_T1}, s{S_A}, v{V_T1}
          s_waitcnt lgkmcnt(0)
          v_mfma_f32_16x16x32_bf16 v[24:27], v[16:19], {vr(V_GU)}, 0
          v_mfma_f32_16x16x32_bf16 v[24:27], v[20:23], {vr(V_GU+4)}, v[24:27]
          s_mov_b32 exec_hi, 0""")
    g.nop(8)
    g(f"""ds_write_b128 v{V_T1}, v[24:27]
          s_mov_b64 exec, -1""")
    g.label("L_t7b")
    g(f"""v_mul_u32_u24 v{V_T2}, 112, v{V_G}
          v_bfe_u32 v{V_T3}, v{V_LANE}, 2, 2
          v_lshl_add_u32 v{V_T2}, v{V_T3}, 4, v{V_T2}
          v_and_b32 v{V_T3}, 3, v{V_LANE}
          v_lshl_add_u32 v{V_T2}, v{V_T3}, 3, v{V_T2}
          s_mul_i32 s{S_A}, s{S_WAVE}, {8*448}
          s_add_u32 s{S_A}, s{S_A}, {L_WD}
          v_add_u32 v{V_T2}, s{S_A}, v{V_T2}""")
    for ks in range(8):
        g(f"ds_read_b64_tr_b16 v[{R+4*ks}:{R+4*ks+1}], v{V_T2} offset:{ks*448}")
        g(f"ds_read_b64_tr_b16 v[{R+4*ks+2}:{R+4*ks+3}], v{V_T2} offset:{ks*448+64}")
    g(f"""s_waitcnt lgkmcnt(0)
          s_barrier""")
    g(f"s_cmp_eq_u32 s{S_WAVE}, 7")
    g("s_cbranch_scc0 L_t8")
    g(f"""v_lshlrev_b32 v{V_T0}, 4, v{V_LANE}
          v_add_u32 v{V_T0}, {L_PART}, v{V_T0}""")
    for w in range(7):
        g(f"ds_read_b128 {vr(16+4*w)}, v{V_T0} offset:{w*512}")
    g("s_waitcnt lgkmcnt(0)")
    for w in range(1, 7):
        g(f"v_pk_add_f32 v[16:17], v[16:17], v[{16+4*w}:{17+4*w}]")
        g(f"v_pk_add_f32 v[18:19], v[18:19], v[{18+4*w}:{19+4*w}]")
    for r in range(4):
        bf16_round(g, 16+r, 16+r)
    g.nop(2)
    for r in range(4):
        g(f"v_mul_f32_dpp v{20+r}, v{16+r}, v{16+r} row_shl:7 row_mask:0xf bank_mask:0xf bound_ctrl:0")
    g(f"""v_cmp_eq_u32 vcc, 7, v{V_N}
          v_lshlrev_b32 v{V_T0}, 6, v{V_G}
          v_lshl_add_u32 v{V_T0}, v{V_N}, 1, v{V_T0}
          v_add_u32 v{V_T0}, {L_HHL}, v{V_T0}""")
    for r in range(4):
        g(f"v_cndmask_b32 v{20+r}, v{20+r}, 0, vcc")
    for r in range(4):
        g(f"v_cvt_pk_bf16_f32 v{20+r}, v{20+r}, v{20+r}")
    g(f"s_mov_b64 exec, 0x00ff00ff")
    for r in range(4):
        g(f"ds_write_b16 v{V_T0}, v{20+r} offset:{r*16}")
    g(f"""s_mov_b64 exec, 0xff
          v_lshlrev_b32 v{V_T0}, 4, v{V_LANE}
          v_add_u32 v{V_T1}, {L_HHL}, v{V_T0}
          s_lshl_b32 s{S_A}, s{S_WG}, 7
          s_add_u32 s{S_A}, s{S_A}, {WS_HH:#x}
          s_waitcnt lgkmcnt(0)
          ds_read_b128 v[16:19], v{V_T1}
          s_waitcnt lgkmcnt(0)
          buffer_store_dwordx4 v[16:19], v{V_T0}, {S4(S_WS)}, s{S_A} offen sc1
          s_mov_b64 exec, -1""")
    g.label("L_t8")
    g(f"s_cmp_ge_u32 s{S_WG}, 56")
    g("s_cbranch_scc1 L_end")
    g(f"""v_and_b32 v{V_T0}, 7, v{V_LANE}
          v_lshlrev_b32 v{V_T0}, 4, v{V_T0}
          v_lshl_add_u32 v{V_T0}, v{V_G}, 7, v{V_T0}
          s_lshl_b32 s{S_A}, s{S_WAVE}, 12
          s_add_u32 s{S_A}, s{S_A}, {WS_HH:#x}""")
    g.label("L_p4")
    for ks in range(8):
        g(f"buffer_load_dwordx4 {vr(16+4*ks)}, v{V_T0}, {S4(S_WS)}, s{S_A} offen offset:{ks*512} sc1")
    g(f"""s_waitcnt vmcnt(0)
          v_or3_b32 v{V_T1}, v19, v23, v27
          v_or3_b32 v{V_T2}, v31, v35, v39
          v_or3_b32 v{V_T1}, v{V_T1}, v43, v47
          v_or_b32 v{V_T1}, v{V_T1}, v{V_T2}
          v_and_b32 v{V_T1}, s{S_HIM}, v{V_T1}
          v_cmp_ne_u32 vcc, 0, v{V_T1}
          s_cbranch_vccz L_p4_ok
 s_sub_u32 s88, s88, 1
 s_cmp_eq_u32 s88, 0
 s_cbranch_scc1 L_end
 s_branch L_p4
 L_p4_ok:""")
    for ks in range(8):
        c = "0" if ks == 0 else "v[48:51]"
        g(f"v_mfma_f32_16x16x32_bf16 v[48:51], {vr(16+4*ks)}, {vr(R+4*ks)}, {c}")
    g(f"""v_lshlrev_b32 v{V_T1}, 4, v{V_LANE}
          s_lshl_b32 s{S_A}, s{S_WAVE}, 9
          s_add_u32 s{S_A}, s{S_A}, {L_WO}
          v_add_u32 v{V_T1}, s{S_A}, v{V_T1}
          s_mov_b32 exec_hi, 0""")
    g.nop(6)
    g(f"""ds_write_b128 v{V_T1}, v[48:51]
          s_mov_b64 exec, -1
          s_waitcnt lgkmcnt(0)
          s_barrier
          s_cmp_eq_u32 s{S_WAVE}, 0
          s_cbranch_scc0 L_end
          v_lshlrev_b32 v{V_T0}, 4, v{V_LANE}""")
    for w in range(8):
        g(f"ds_read_b128 {vr(16+4*w)}, v{V_T0} offset:{L_WO+w*512}")
    g(f"""v_mul_u32_u24 v{V_T1}, {4*896}, v{V_G}
          v_lshl_add_u32 v{V_T1}, v{V_N}, 1, v{V_T1}
          s_lshl_b32 s{S_A}, s{S_WG}, 4
          v_add_u32 v{V_T1}, s{S_A}, v{V_T1}
          v_add_u32 v{V_T2}, {L_HIMG}, v{V_T1}
          s_mov_b64 exec, 0x00ff00ff""")
    for r in range(4):
        g(f"ds_read_u16 v{48+r}, v{V_T2} offset:{r*896}")
    srd(g, S_T, P_OUT, 7168)
    g("s_waitcnt lgkmcnt(0)")
    for w in range(1, 8):
        g(f"v_pk_add_f32 v[16:17], v[16:17], v[{16+4*w}:{17+4*w}]")
        g(f"v_pk_add_f32 v[18:19], v[18:19], v[{18+4*w}:{19+4*w}]")
    for r in range(4):
        bf16_round(g, 16+r, 16+r)
        g(f"v_lshlrev_b32 v{48+r}, 16, v{48+r}")
        g(f"v_add_f32 v{16+r}, v{16+r}, v{48+r}")
        g(f"v_cvt_pk_bf16_f32 v{16+r}, v{16+r}, v{16+r}")
        g(f"buffer_store_short v{16+r}, v{V_T1}, {S4(S_T)}, 0 offen offset:{r*896}")

def emit(path, kname, debug=0):
    hdr = open("cdna_kernels/" + NAME + ".s.ref").read().split("\n")
    out = []
    for line in hdr:
        if line.startswith("; @launch"):
            out.append(f"; @launch grid=(256,1,1) block=(512,1,1) lds={LDS_BYTES}")
            break
        out.append(line)
    out.append('.amdgcn_target "amdgcn-amd-amdhsa--gfx950"')
    out.append(".text")
    out.append(f".globl {kname}")
    out.append(".p2align 8")
    out.append(f".type {kname},@function")
    out.append(f"{kname}:")
    out += gen(debug)
    out.append('.section .rodata,"a"')
    out.append(".p2align 6")
    out.append(f".amdhsa_kernel {kname}")
    out.append("""  .amdhsa_next_free_vgpr 256
  .amdhsa_next_free_sgpr 96
  .amdhsa_accum_offset 256
  .amdhsa_group_segment_fixed_size 0
  .amdhsa_kernarg_size 96
  .amdhsa_user_sgpr_count 2
  .amdhsa_user_sgpr_kernarg_segment_ptr 1
  .amdhsa_system_sgpr_workgroup_id_x 1
  .amdhsa_float_denorm_mode_32 3
.end_amdhsa_kernel""")
    open(path, "w").write("\n".join(out) + "\n")

if __name__ == "__main__":
    debug = int(sys.argv[1]) if len(sys.argv) > 1 else 0
    emit("cdna_kernels/" + NAME + ".s", NAME + "_kernel", debug)
```

```python
import sys, struct, os
STATIC = int(os.environ.get('STATIC', '1'))
NOW = int(os.environ.get('NOW', '0'))

NAME = "sequential_preLN__gqa_block_cached__glu_gated_bilinear__decode"
def f32bits(x): return struct.unpack("<I", struct.pack("<f", x))[0]

WS_Q   = 0x000000
WS_IN  = 0x100000
WS_H   = 0x400000
WS_HH  = 0x410000
WS_TC  = 0x420000
WS_DBG = 0x1000000
WS_BYTES = 0x2000000
L_WO  = 0
L_WD  = 114688
L_SCR = 143360
L_CB  = L_SCR
L_HIMG = L_SCR
L_HN  = L_SCR + 7168
L_QP  = L_SCR + 16384
L_PART = L_SCR + 14336
L_STAT = L_SCR + 16384
L_OF  = L_SCR + 16512
L_P2  = L_SCR + 16768
L_QIMG = L_SCR + 18432
L_FLAG = L_SCR + 19456
L_HHL = L_SCR + 19520
LDS_BYTES = 163840
C_SC = 1.4426950408889634 / 16.0

STAMP_SLOTS = [4,5,6,7,63,89,92,93,94,95,96,97,98,99,100,101]
class G:
    def __init__(self):
        self.L = []; self.prof = 0
    def __call__(self, s):
        for line in s.strip().split("\n"):
            line = line.strip()
            if line: self.L.append("  " + line)
    def label(self, l): self.L.append(l + ":")
    def nop(self, n=1):
        while n > 0:
            k = min(n, 16); self.L.append(f"  s_nop {k-1}"); n -= k
    def stamp(self, i):
        if self.prof:
            self.L.append("  s_memrealtime s[90:91]")
            self.L.append("  s_waitcnt lgkmcnt(0)")
            self.L.append(f"  s_mov_b32 s{STAMP_SLOTS[i]}, s90")

def vr(a, n=4): return f"v[{a}:{a+n-1}]"
def S4(s): return f"s[{s}:{s+3}]"

V_LANE, V_N, V_G = 1, 2, 3
V_K0, V_K1, V_V0, V_V1 = 4, 5, 6, 7
V_IN1, V_IN2 = 8, 9
V_T0, V_T1, V_T2, V_T3, V_T4, V_T5 = 10, 11, 12, 13, 14, 15
V_Q = 16; V_ACC = 48; V_S = 56; V_P = 64; V_GU = 68
V_M, V_L, V_AL, V_NMC = 76, 77, 78, 79
V_A = 80; V_B = 112
R_K0, R_K1, R_V0, R_V1 = 128, 160, 192, 224
S_WG, S_WAVE = 2, 3
S_K, S_V, S_WS, S_T, S_T2 = 8, 12, 16, 20, 24
S_OFF, S_BASE = 28, 29
S_HKV, S_B, S_S, S_R = 30, 31, 32, 33
S_C, S_SELLO, S_SELHI = 34, 35, 60
P_X, P_K, P_V, P_WQ, P_WO, P_BX, P_WG, P_WU, P_WD, P_OUT, P_DBG, P_WS = [36 + 2*i for i in range(12)]
S_MASK = 64
S_A, S_Bx, S_Cx, S_Dx = 80, 81, 82, 83
S_EX = 84
S_HIM, S_I, S_POLL = 86, 87, 88
S_J, S_CS = 61, 62
S_TC = P_K
S_NEXT, S_NEXT2 = P_V, P_V + 1

def srd(g, s, p, nbytes):
    g(f"""s_mov_b32 s{s}, s{p}
          s_and_b32 s{s+1}, s{p+1}, 0xffff
          s_mov_b32 s{s+2}, {nbytes}
          s_mov_b32 s{s+3}, 0x20000""")

def bf16_round(g, d, s):
    g(f"v_cvt_pk_bf16_f32 v{d}, v{s}, v{s}")
    g(f"v_lshlrev_b32 v{d}, 16, v{d}")

def xreduce(g, v, t, op, steps):
    for st in steps:
        if st in (1, 2, 4, 8):
            mod = {1: "quad_perm:[1,0,3,2]", 2: "quad_perm:[2,3,0,1]", 4: "row_ror:4", 8: "row_ror:8"}[st]
            g.nop(2); g(f"{op}_dpp v{v}, v{v}, v{v} {mod} row_mask:0xf bank_mask:0xf")
        else:
            g(f"v_mov_b32 v{t}, v{v}"); g.nop(2)
            g(f"v_permlane{st}_swap_b32 v{v}, v{t}"); g.nop(1)
            g(f"{op} v{v}, v{v}, v{t}")

def poll_branch(g, lab, cond="vccz"):
    g(f"""s_cbranch_{cond} {lab}_ok
          s_sub_u32 s{S_POLL}, s{S_POLL}, 1
          s_cmp_eq_u32 s{S_POLL}, 0
          s_cbranch_scc1 L_end
          s_branch {lab}""")
    g.label(lab + "_ok")

def canon(g, v, t=None):
    g(f"v_min_u32 v{v}, 0xfffffffe, v{v}")

def k_loads(g, which):
    vo, r = (V_K0, R_K0) if which == 0 else (V_K1, R_K1)
    for j in range(8):
        g(f"buffer_load_dwordx4 {vr(r+4*j)}, v{vo}, {S4(S_K)}, s{S_OFF} offen offset:{j*64} nt")

def v_loads(g, half):
    r = R_V0 if half == 0 else R_V1
    for j in range(8):
        vo = V_V0 if j < 4 else V_V1
        g(f"buffer_load_dwordx4 {vr(r+4*j)}, v{vo}, {S4(S_V)}, s{S_OFF} offen offset:{(j&3)*512+half*256} nt")

def tile_body(g, nwait, loads):
    for t, r in ((0, R_K0), (1, R_K1)):
        g(f"s_waitcnt vmcnt({nwait[t]})")
        s = V_S + 4*t
        for j in range(8):
            c = "0" if j == 0 else vr(s)
            g(f"v_mfma_f32_16x16x32_bf16 {vr(s)}, {vr(r+4*j)}, {vr(V_Q+4*j)}, {c}")
        if loads: k_loads(g, t)
        elif t == 1: g.nop(8)
    S = [V_S + i for i in range(8)]
    for i in range(4):
        g(f"v_cvt_pk_bf16_f32 v{V_P+i}, v{S[2*i]}, v{S[2*i+1]}")
    for i in range(4):
        g(f"v_lshlrev_b32 v{S[2*i]}, 16, v{V_P+i}")
        g(f"v_and_b32 v{S[2*i+1]}, s{S_HIM}, v{V_P+i}")
    g(f"""v_max3_f32 v{V_T0}, v{S[0]}, v{S[1]}, v{S[2]}
          v_max3_f32 v{V_T1}, v{S[3]}, v{S[4]}, v{S[5]}
          v_max3_f32 v{V_T0}, v{V_T0}, v{S[6]}, v{S[7]}
          v_max_f32 v{V_T0}, v{V_T0}, v{V_T1}""")
    xreduce(g, V_T0, V_T1, "v_max_f32", [16, 32])
    g(f"""v_max_f32 v{V_T0}, v{V_T0}, v{V_M}
          v_sub_f32 v{V_AL}, v{V_M}, v{V_T0}
          v_mul_f32 v{V_AL}, s{S_C}, v{V_AL}
          v_exp_f32 v{V_AL}, v{V_AL}
          v_mov_b32 v{V_M}, v{V_T0}
          v_mul_f32 v{V_NMC}, s{S_C}, v{V_T0}""")
    for i in range(8):
        g(f"v_fma_f32 v{S[i]}, v{S[i]}, s{S_C}, -v{V_NMC}")
    for i in range(8):
        g(f"v_exp_f32 v{S[i]}, v{S[i]}")
    for r in range(8):
        qp = "[0,0,2,2]" if (r & 1) == 0 else "[1,1,3,3]"
        g(f"v_mul_f32_dpp v{V_ACC+r}, v{V_AL}, v{V_ACC+r} quad_perm:{qp} row_mask:0xf bank_mask:0xf")
    for i in range(4):
        g(f"v_cvt_pk_bf16_f32 v{V_P+i}, v{S[2*i]}, v{S[2*i+1]}")
    g(f"""v_add_f32 v{V_T0}, v{S[0]}, v{S[1]}
          v_add_f32 v{V_T1}, v{S[2]}, v{S[3]}
          v_add_f32 v{V_T2}, v{S[4]}, v{S[5]}
          v_add_f32 v{V_T3}, v{S[6]}, v{S[7]}
          v_add_f32 v{V_T0}, v{V_T0}, v{V_T1}
          v_add_f32 v{V_T2}, v{V_T2}, v{V_T3}
          v_add_f32 v{V_T0}, v{V_T0}, v{V_T2}
          v_fma_f32 v{V_L}, v{V_L}, v{V_AL}, v{V_T0}""")
    for e in range(8):
        for i in range(4):
            g(f"v_cndmask_b32 v{V_A+4*e+i}, 0, v{V_P+i}, s[{S_MASK+2*e}:{S_MASK+2*e+1}]")
    for half, r in ((0, R_V0), (1, R_V1)):
        g(f"s_waitcnt vmcnt({nwait[2+half]})")
        acc = V_ACC + 4*half
        def perms(e):
            b = V_B + 4*(e & 3); q = e >> 1
            sel = S_SELLO if (e & 1) == 0 else S_SELHI
            for p in range(4):
                g(f"v_perm_b32 v{b+p}, v{r+4*(2*p+1)+q}, v{r+4*(2*p)+q}, s{sel}")
        perms(0); perms(1)
        for e in range(8):
            if e + 2 < 8: perms(e + 2)
            else: g.nop(1)
            g(f"v_mfma_f32_16x16x32_bf16 {vr(acc)}, {vr(V_A+4*e)}, {vr(V_B+4*(e&3))}, {vr(acc)}")
        if loads: v_loads(g, half)
    if not loads: g.nop(8)

def ln_finish(g, steps):
    g(f"""v_pk_add_f32 v[{V_T0}:{V_T1}], v[{V_T0}:{V_T1}], v[{V_T2}:{V_T3}]
          v_add_f32 v{V_T0}, v{V_T0}, v{V_T1}""")
    xreduce(g, V_T0, V_T1, "v_add_f32", steps)
    g(f"v_mul_f32 v{V_T0}, {f32bits(1.0/448.0):#x}, v{V_T0}")
    bf16_round(g, V_T0, V_T0)
    g(f"v_add_f32 v{V_T0}, {f32bits(1e-5):#x}, v{V_T0}")
    bf16_round(g, V_T0, V_T0)
    g(f"v_sqrt_f32 v{V_T0}, v{V_T0}")
    bf16_round(g, V_T4, V_T4)
    bf16_round(g, V_T0, V_T0)
    g(f"""v_rcp_f32 v{V_T2}, v{V_T0}
          v_mov_b32 v{V_T5}, v{V_T4}
          v_mov_b32 v{V_T1}, v{V_T0}
          v_mov_b32 v{V_T3}, v{V_T2}""")

def ln_stats(g, XR, ndw, steps, T):
    def unp(i, t):
        g(f"v_lshlrev_b32 v{t}, 16, v{XR+i}")
        g(f"v_and_b32 v{t+1}, s{S_HIM}, v{XR+i}")
    unp(0, V_T0); unp(1, V_T2)
    for i in range(2, ndw):
        t = T + 2*(i & 1); a = V_T0 + 2*(i & 1)
        unp(i, t)
        g(f"v_pk_add_f32 v[{a}:{a+1}], v[{a}:{a+1}], v[{t}:{t+1}]")
    g(f"""v_pk_add_f32 v[{V_T0}:{V_T1}], v[{V_T0}:{V_T1}], v[{V_T2}:{V_T3}]
          v_add_f32 v{V_T0}, v{V_T0}, v{V_T1}""")
    xreduce(g, V_T0, V_T1, "v_add_f32", steps)
    g(f"""v_mul_f32 v{V_T4}, {f32bits(1.0/448.0):#x}, v{V_T0}
          v_mul_f32 v{V_T5}, {f32bits(1.0/448.0):#x}, v{V_T0}
          v_mov_b32 v{V_T0}, 0
          v_mov_b32 v{V_T1}, 0
          v_mov_b32 v{V_T2}, 0
          v_mov_b32 v{V_T3}, 0""")
    for i in range(ndw):
        t = T + 2*(i & 1); a = V_T0 + 2*(i & 1)
        unp(i, t)
        g(f"v_pk_add_f32 v[{t}:{t+1}], v[{t}:{t+1}], v[{V_T4}:{V_T5}] neg_lo:[0,1] neg_hi:[0,1]")
        g(f"v_pk_fma_f32 v[{a}:{a+1}], v[{t}:{t+1}], v[{t}:{t+1}], v[{a}:{a+1}]")
    ln_finish(g, steps)

def ln_apply(g, X, ndw, T):
    for i in range(ndw):
        a, c, e = T, T+2, T+4
        g(f"""v_lshlrev_b32 v{a}, 16, v{X+i}
              v_and_b32 v{a+1}, s{S_HIM}, v{X+i}
              v_pk_add_f32 v[{a}:{a+1}], v[{a}:{a+1}], v[{V_T4}:{V_T5}] neg_lo:[0,1] neg_hi:[0,1]
              v_cvt_pk_bf16_f32 v{a+1}, v{a}, v{a+1}
              v_lshlrev_b32 v{a}, 16, v{a+1}
              v_and_b32 v{a+1}, s{S_HIM}, v{a+1}
              v_pk_mul_f32 v[{c}:{c+1}], v[{a}:{a+1}], v[{V_T2}:{V_T3}]
              v_pk_fma_f32 v[{e}:{e+1}], v[{c}:{c+1}], v[{V_T0}:{V_T1}], v[{a}:{a+1}] neg_lo:[1,0,0] neg_hi:[1,0,0]
              v_pk_fma_f32 v[{c}:{c+1}], v[{e}:{e+1}], v[{V_T2}:{V_T3}], v[{c}:{c+1}]
              v_cvt_pk_bf16_f32 v{X+i}, v{c}, v{c+1}""")

def dma(g, voff, srdreg, soff, m0reg, fl=""):
    g(f"""s_mov_b32 m0, s{m0reg}
          s_add_u32 s{m0reg}, s{m0reg}, 1024
          buffer_load_dwordx4 v{voff}, {S4(srdreg)}, s{soff} offen {fl} lds""")


def small_dma(g):
    g(f"s_sub_u32 s{S_Cx}, s{S_WAVE}, 4")
    g(f"s_cmp_ge_u32 s{S_CS}, 56")
    g(f"s_cbranch_scc1 L_nowd")
    srd(g, S_T, P_WD, 1792*448*2)
    g(f"""v_mul_u32_u24 v{V_T0}, 896, v{V_LANE}
          s_mul_i32 s{S_A}, s{S_Cx}, {7*64*896}
          s_lshl_b32 s{S_Bx}, s{S_CS}, 4
          s_add_u32 s{S_A}, s{S_A}, s{S_Bx}
          s_mul_i32 s{S_Bx}, s{S_Cx}, 7168
          s_add_u32 s{S_Bx}, s{S_Bx}, {L_WD}""")
    for i in range(7):
        dma(g, V_T0, S_T, S_A, S_Bx)
        g(f"s_add_u32 s{S_A}, s{S_A}, {64*896}")
    g.label(f"L_nowd")
    g(f"""s_cmp_ge_u32 s{S_J}, 112
          s_cbranch_scc1 L_nogu
          s_cmp_ge_u32 s{S_Cx}, 2
          s_cselect_b32 s{S_T}, s{P_WU}, s{P_WG}
          s_cselect_b32 s{S_T+1}, s{P_WU+1}, s{P_WG+1}
          s_and_b32 s{S_T+1}, s{S_T+1}, 0xffff
          s_mov_b32 s{S_T+2}, {448*1792*2}
          s_mov_b32 s{S_T+3}, 0x20000
          v_lshrrev_b32 v{V_T0}, 1, v{V_LANE}
          v_mul_u32_u24 v{V_T0}, 3584, v{V_T0}
          v_and_b32 v{V_T1}, 1, v{V_LANE}
          v_lshl_add_u32 v{V_T0}, v{V_T1}, 4, v{V_T0}
          s_and_b32 s{S_A}, s{S_Cx}, 1
          s_mul_i32 s{S_A}, s{S_A}, {224*3584}
          s_lshl_b32 s{S_Bx}, s{S_J}, 5
          s_add_u32 s{S_A}, s{S_A}, s{S_Bx}
          s_mul_i32 s{S_Bx}, s{S_Cx}, 7168
          s_add_u32 s{S_Bx}, s{S_Bx}, {L_WD}""")
    for i in range(7):
        dma(g, V_T0, S_T, S_A, S_Bx)
        g(f"s_add_u32 s{S_A}, s{S_A}, {32*3584}")
    g.label(f"L_nogu")

def wo_dma(g):
    g(f"s_sub_u32 s{S_Cx}, s{S_WAVE}, 4")
    srd(g, S_T, P_WO, 4096*448*2)
    g(f"""v_lshrrev_b32 v{V_T0}, 3, v{V_LANE}
          v_bfe_u32 v{V_T1}, v{V_LANE}, 1, 2
          v_lshrrev_b32 v{V_T2}, 4, v{V_LANE}
          v_xor_b32 v{V_T1}, v{V_T1}, v{V_T2}
          v_mul_u32_u24 v{V_T0}, 896, v{V_T0}
          v_and_b32 v{V_T2}, 1, v{V_LANE}
          v_lshl_add_u32 v{V_T0}, v{V_T2}, 4, v{V_T0}
          v_lshl_add_u32 v{V_T2}, v{V_T1}, 5, v{V_T0}
          v_xor_b32 v{V_T1}, 2, v{V_T1}
          v_lshl_add_u32 v{V_T3}, v{V_T1}, 5, v{V_T0}
          s_lshl_b32 s{S_A}, s{S_I}, 7
          s_lshl_b32 s{S_Bx}, s{S_Cx}, 5
          s_add_u32 s{S_A}, s{S_A}, s{S_Bx}
          s_mul_i32 s{S_A}, s{S_A}, 896
          s_mul_i32 s{S_Bx}, s{S_Cx}, {28*1024}""")
    for kg in range(4):
        for cb7 in range(7):
            dma(g, V_T2 + (kg & 1), S_T, S_A, S_Bx)
            g(f"s_add_u32 s{S_A}, s{S_A}, {128 if cb7 < 6 else 8*896-6*128}")

STAG = int(os.environ.get("STAG", "0"))
BAL = int(os.environ.get("BAL", "1"))
NB1 = 16
def wait_flag(g, tag, off, val):
    g(f"v_mov_b32 v{V_T0}, {L_FLAG}")
    g.label(f"L_wf{tag}")
    g(f"""ds_read_b32 v{V_T1}, v{V_T0} offset:{off}
          s_waitcnt lgkmcnt(0)
          v_cmp_gt_u32 vcc, {val}, v{V_T1}""")
    poll_branch(g, f"L_wf{tag}")

def flag_add(g, off):
    g(f"""v_mov_b32 v{V_T0}, {L_FLAG}
          v_mov_b32 v{V_T1}, 1
          s_mov_b64 exec, 1
          ds_add_u32 v{V_T0}, v{V_T1} offset:{off}
          s_mov_b64 exec, -1""")

def prefetch(g):
    k_loads(g, 0); k_loads(g, 1); v_loads(g, 0); v_loads(g, 1)

def lds_prefetch(g):
    g(f"""s_add_u32 s{S_A}, s{S_OFF}, {8*16384}
          s_lshl_b32 s{S_Bx}, s{S_WAVE}, 15""")
    for which in range(2):
        vo = V_K0 if which == 0 else V_K1
        for j in range(8):
            g(f"""s_mov_b32 m0, s{S_Bx}
                  s_add_u32 s{S_Bx}, s{S_Bx}, {1024-64 if j < 7 else 1024+7*64}
                  buffer_load_dwordx4 v{vo}, {S4(S_K)}, s{S_A} offen offset:{j*64} nt lds""")
    for half in range(2):
        for j in range(8):
            vo = V_V0 if j < 4 else V_V1
            off = (j & 3)*512 + half*256
            idx = half*8 + j + 1
            noff = ((idx & 3)*512 + (idx >> 3)*256) if idx < 16 else 0
            g(f"""s_mov_b32 m0, s{S_Bx}
                  s_add_u32 s{S_Bx}, s{S_Bx}, {(1024 + off - noff) & 0xffffffff:#x}
                  buffer_load_dwordx4 v{vo}, {S4(S_V)}, s{S_A} offen offset:{off} nt lds""")

def q_gather(g):
    g(f"""s_lshl_b32 s{S_A}, s{S_WG}, 13
          s_add_u32 s{S_A}, s{S_A}, {WS_IN+6144:#x}
          s_add_u32 s{S_Cx}, s{P_WS}, s{S_A}
          s_addc_u32 s{S_Dx}, s{P_WS+1}, 0
          s_lshl_b32 s{S_A}, s{S_B}, 13
          s_lshl_b32 s{S_Bx}, s{S_HKV}, 10
          s_add_u32 s{S_A}, s{S_A}, s{S_Bx}
          s_lshl_b32 s{S_Bx}, s{S_S}, 16
          s_add_u32 s{S_A}, s{S_A}, s{S_Bx}
          s_sub_u32 s{S_Bx}, s{S_WAVE}, 4
          s_lshl_b32 s{S_Bx}, s{S_Bx}, 8
          s_add_u32 s{S_A}, s{S_A}, s{S_Bx}
          s_add_u32 s{S_EX}, s{P_WS}, s{S_A}
          s_addc_u32 s{S_EX+1}, s{P_WS+1}, 0
          s_add_u32 s{S_Bx}, s{S_Bx}, {L_QIMG}
          v_mov_b32 v{V_T2}, s{S_Bx}""")
    g.label(f"L_pq")
    g(f"""s_load_dword s64, s[{S_Cx}:{S_Dx}], 0 glc
          s_waitcnt lgkmcnt(0)
          s_cmp_lg_u32 s64, -1""")
    poll_branch(g, f"L_pq", "scc1")
    g.stamp(3)
    for rnd in range(2):
        g(f"s_load_dwordx16 s[64:79], s[{S_EX}:{S_EX+1}], {rnd*128} glc")
        g(f"s_load_dwordx16 s[36:51], s[{S_EX}:{S_EX+1}], {rnd*128+64} glc")
        g("s_waitcnt lgkmcnt(0)")
        for i in range(16):
            g(f"v_mov_b32 v{16+rnd*32+i}, s{64+i}")
        for i in range(16):
            g(f"v_mov_b32 v{32+rnd*32+i}, s{36+i}")
    g(f"s_load_dwordx16 s[36:51], s[0:1], 0")
    g("s_mov_b64 exec, 1")
    for u in range(16):
        g(f"ds_write_b128 v{V_T2}, {vr(16+4*u)} offset:{u*16}")
    g("s_mov_b64 exec, -1")
    g("s_waitcnt lgkmcnt(0)")
    flag_add(g, 12)

def gen(debug=0):
    g = G(); g.prof = debug & 2
    g(f"s_cmp_ge_u32 s{S_WG}, 256")
    g("s_cbranch_scc1 L_end")
    g(f"s_load_dwordx16 s[36:51], s[0:1], 0")
    g(f"s_load_dwordx8 s[52:59], s[0:1], 64")
    g(f"""v_lshrrev_b32 v{V_T0}, 6, v0
          v_and_b32 v{V_LANE}, 63, v0
          v_and_b32 v{V_N}, 15, v0
          v_bfe_u32 v{V_G}, v0, 4, 2
          v_readfirstlane_b32 s{S_WAVE}, v{V_T0}
          s_and_b32 s{S_HKV}, s{S_WG}, 7
          s_lshr_b32 s{S_R}, s{S_WG}, 3
          s_lshr_b32 s{S_B}, s{S_WG}, 5
          s_and_b32 s{S_S}, s{S_R}, 3
          s_lshl_b32 s{S_I}, s{S_HKV}, 2
          s_add_u32 s{S_I}, s{S_I}, s{S_S}
          s_mov_b32 s{S_C}, {f32bits(C_SC):#x}
          s_mov_b32 s{S_SELLO}, 0x05040100
          s_mov_b32 s{S_SELHI}, 0x07060302
          s_mov_b32 s{S_HIM}, 0xffff0000
          s_mov_b32 s{S_POLL}, 0x100000
          s_mul_i32 s{S_J}, s{S_HKV}, 14
          s_lshl_b32 s{S_A}, s{S_B}, 1
          s_add_u32 s{S_J}, s{S_J}, s{S_A}
          s_add_u32 s{S_J}, s{S_J}, s{S_S}
          s_sub_u32 s{S_J}, s{S_J}, 1
          s_cmp_eq_u32 s{S_B}, 7
          s_cselect_b32 s{S_J}, 0xffff, s{S_J}
          s_cmp_eq_u32 s{S_S}, 0
          s_cselect_b32 s{S_J}, 0xffff, s{S_J}
          s_cmp_eq_u32 s{S_S}, 3
          s_cselect_b32 s{S_J}, 0xffff, s{S_J}
          s_mul_i32 s{S_CS}, s{S_HKV}, 7
          s_add_u32 s{S_CS}, s{S_CS}, s{S_B}
          s_cmp_eq_u32 s{S_B}, 7
          s_cselect_b32 s{S_CS}, 0xffff, s{S_CS}
          s_cmp_lg_u32 s{S_S}, 0
          s_cselect_b32 s{S_CS}, 0xffff, s{S_CS}""")
    g(f"""v_lshlrev_b32 v{V_K0}, 9, v{V_N}
          v_lshl_add_u32 v{V_K0}, v{V_G}, 4, v{V_K0}
          v_add_u32 v{V_K1}, 0x2000, v{V_K0}
          v_lshlrev_b32 v{V_V0}, 11, v{V_G}
          v_lshl_add_u32 v{V_V0}, v{V_N}, 4, v{V_V0}
          v_add_u32 v{V_V1}, 0x2000, v{V_V0}""")
    g(f"""s_lshl_b32 s{S_A}, s{S_B}, 3
          s_add_u32 s{S_A}, s{S_A}, s{S_HKV}
          s_lshl_b32 s{S_BASE}, s{S_A}, 22
          s_lshl_b32 s{S_Bx}, s{S_S}, 20
          s_add_u32 s{S_BASE}, s{S_BASE}, s{S_Bx}
          s_lshl_b32 s{S_Bx}, s{S_WAVE}, 14
          s_add_u32 s{S_OFF}, s{S_BASE}, s{S_Bx}
          s_lshl_b32 s{S_Dx}, s{S_A}, 8
          s_add_u32 s{S_Dx}, s{S_Dx}, {WS_TC:#x}""")
    g(f"""v_mov_b32 v{V_T0}, {L_FLAG}
          v_mov_b32 v16, 0
          v_mov_b32 v17, 0
          v_mov_b32 v18, 0
          v_mov_b32 v19, 0
          s_cmp_eq_u32 s{S_WAVE}, 4
          s_cbranch_scc0 L_nz
          ds_write_b128 v{V_T0}, v[16:19]
          ds_write_b128 v{V_T0}, v[16:19] offset:16
          ds_write_b128 v{V_T0}, v[16:19] offset:32""")
    g.label("L_nz")
    g("s_waitcnt lgkmcnt(0)")
    if g.prof:
        for sl in STAMP_SLOTS: g(f"s_mov_b32 s{sl}, 0")
    g.stamp(0)
    g(f"s_cmp_lt_u32 s{S_WAVE}, 4")
    g("s_cbranch_scc1 L_qphase")
    srd(g, S_K, P_K, 0x10000000)
    srd(g, S_V, P_V, 0x10000000)
    srd(g, S_WS, P_WS, WS_BYTES)
    g("s_setprio 2")
    g("s_barrier")
    prefetch(g)
    g("s_setprio 0")
    g.stamp(2)
    q_gather(g)
    g(f"s_mov_b32 s{S_NEXT}, 256")
    g("s_branch L_qwait")
    g.label("L_qphase")
    srd(g, S_T2, P_WQ, 448*4096*2)
    XR = 16; XA = 44; WB = 64
    g(f"""v_lshrrev_b32 v{V_T3}, 1, v{V_LANE}
          v_lshlrev_b32 v{V_T3}, 13, v{V_T3}
          v_and_b32 v{V_T4}, 1, v{V_LANE}
          v_lshl_add_u32 v{V_T3}, v{V_T4}, 4, v{V_T3}
          s_lshl_b32 s{S_A}, s{S_WAVE}, 20
          s_lshl_b32 s{S_Bx}, s{S_HKV}, 10
          s_add_u32 s{S_A}, s{S_A}, s{S_Bx}
          s_lshl_b32 s{S_Bx}, s{S_R}, 5
          s_add_u32 s{S_A}, s{S_A}, s{S_Bx}
          s_mul_i32 s{S_Bx}, s{S_WAVE}, 28672""")
    for i in range(4):
        dma(g, V_T3, S_T2, S_A, S_Bx)
        g(f"s_add_u32 s{S_A}, s{S_A}, 0x40000")
    srd(g, S_T, P_X, 7168)
    g(f"""v_and_b32 v{V_T0}, 7, v{V_LANE}
          v_mul_u32_u24 v{V_T0}, 896, v{V_T0}
          v_lshrrev_b32 v{V_T1}, 3, v{V_LANE}
          v_lshl_add_u32 v{V_T1}, v{V_T1}, 4, v{V_T0}
          v_lshl_add_u32 v{V_T2}, v{V_G}, 4, v{V_T0}
          s_lshl_b32 s{S_A}, s{S_WAVE}, 8""")
    for t in range(7):
        g(f"buffer_load_dwordx4 {vr(XR+4*t)}, v{V_T1}, {S4(S_T)}, 0 offen offset:{t*128}")
    for ks in range(4):
        g(f"buffer_load_dwordx4 {vr(XA+4*ks)}, v{V_T2}, {S4(S_T)}, s{S_A} offen offset:{ks*64}")
    srd(g, S_WS, P_WS, WS_BYTES)
    CLR = 124
    g(f"""v_mov_b32 v{CLR}, -1
          v_mov_b32 v{CLR+1}, -1
          v_mov_b32 v{CLR+2}, -1
          v_mov_b32 v{CLR+3}, -1
          v_lshlrev_b32 v{V_T0}, 4, v0
          s_lshl_b32 s{S_A}, s{S_WG}, 13
          s_add_u32 s{S_A}, s{S_A}, {WS_IN:#x}
          s_add_u32 s{S_Bx}, s{S_A}, 4096
          buffer_store_dwordx4 {vr(CLR)}, v{V_T0}, {S4(S_WS)}, s{S_A} offen sc1
          buffer_store_dwordx4 {vr(CLR)}, v{V_T0}, {S4(S_WS)}, s{S_Bx} offen sc1
          s_cmp_eq_u32 s{S_WAVE}, 3
          s_cbranch_scc0 L_noclr
          s_lshl_b32 s{S_A}, s{S_WG}, 5
          s_add_u32 s{S_A}, s{S_A}, {WS_H:#x}
          s_lshl_b32 s{S_Bx}, s{S_WG}, 7
          s_add_u32 s{S_Bx}, s{S_Bx}, {WS_HH:#x}
          v_lshlrev_b32 v{V_T0}, 4, v{V_LANE}
          v_mov_b32 v{V_T1}, 32
          s_mov_b64 exec, 3
          buffer_store_dwordx4 {vr(CLR)}, v{V_T0}, {S4(S_WS)}, s{S_A} offen sc1
          s_mov_b64 exec, 0xff
          buffer_store_dwordx4 {vr(CLR)}, v{V_T0}, {S4(S_WS)}, s{S_Bx} offen sc1
          s_mov_b64 exec, 1
          s_cmp_eq_u32 s{S_S}, 0
          s_cbranch_scc0 L_notc
          buffer_store_dword v{V_T1}, v{V_T0}, {S4(S_WS)}, s{S_Dx} offen sc1""")
    g.label("L_notc")
    g("s_mov_b64 exec, -1")
    g.label("L_noclr")
    g("s_barrier")
    srd(g, S_K, P_K, 0x10000000)
    srd(g, S_V, P_V, 0x10000000)
    g(f"""s_add_u32 s{S_TC}, s{P_WS}, s{S_Dx}
          s_addc_u32 s{S_TC+1}, s{P_WS+1}, 0
          v_lshlrev_b32 v104, 8, v{V_G}
          v_lshl_add_u32 v104, v{V_N}, 3, v104
          s_mul_i32 s{S_Bx}, s{S_WAVE}, 28672
          v_add_u32 v104, s{S_Bx}, v104""")
    g("s_waitcnt vmcnt(6)")
    for ks in range(4):
        g(f"ds_read_b64_tr_b16 v[{WB+4*ks}:{WB+4*ks+1}], v104 offset:{ks*1024}")
        g(f"ds_read_b64_tr_b16 v[{WB+4*ks+2}:{WB+4*ks+3}], v104 offset:{ks*1024+128}")
    ln_stats(g, XR, 28, [8, 16, 32], 96)
    g("s_waitcnt vmcnt(2)")
    ln_apply(g, XA, 16, 96)
    g("s_waitcnt lgkmcnt(0)")
    for ks in range(4):
        c = "0" if ks == 0 else vr(120)
        g(f"v_mfma_f32_16x16x32_bf16 {vr(120)}, {vr(WB+4*ks)}, {vr(XA+4*ks)}, {c}")
    g(f"""v_lshlrev_b32 v{V_T4}, 7, v{V_G}
          v_lshl_add_u32 v{V_T4}, v{V_N}, 4, v{V_T4}
          s_mov_b32 s{S_EX}, 0x00ff00ff
          s_mov_b32 s{S_EX+1}, 0x00ff00ff
          s_cmp_eq_u32 s{S_WAVE}, 0
          s_cbranch_scc1 L_w0
          s_lshl_b32 s{S_A}, s{S_WAVE}, 9
          s_add_u32 s{S_A}, s{S_A}, {L_QP-512}
          v_add_u32 v{V_T4}, s{S_A}, v{V_T4}
          s_mov_b64 exec, s[{S_EX}:{S_EX+1}]
          s_nop 1
          ds_write_b128 v{V_T4}, {vr(120)}
          s_mov_b64 exec, -1
          s_waitcnt lgkmcnt(0)""")
    flag_add(g, 0)
    g.stamp(1)
    g("s_waitcnt vmcnt(0)")
    flag_add(g, 4)
    g("s_branch L_pf")
    g.label("L_w0")
    g("s_setprio 3")
    g(f"v_add_u32 v{V_T4}, {L_QP}, v{V_T4}")
    wait_flag(g, "c", 0, 3)
    for w in range(3):
        g(f"ds_read_b128 {vr(16+4*w)}, v{V_T4} offset:{w*512}")
    g(f"""v_lshlrev_b32 v{V_T4}, 5, v{V_N}
          v_lshl_add_u32 v{V_T4}, v{V_G}, 3, v{V_T4}
          v_add_u32 v{V_T4}, {L_QP+1536}, v{V_T4}
          v_and_b32 v{V_T2}, 15, v{V_LANE}
          v_lshlrev_b32 v{V_T2}, 4, v{V_T2}
          v_add_u32 v{V_T2}, {L_QP+1536}, v{V_T2}
          v_bfe_u32 v{V_T3}, v{V_LANE}, 1, 3
          v_lshlrev_b32 v{V_T3}, 13, v{V_T3}
          v_lshl_add_u32 v{V_T3}, v{V_G}, 16, v{V_T3}
          v_and_b32 v{V_T5}, 1, v{V_LANE}
          v_lshl_add_u32 v{V_T3}, v{V_T5}, 4, v{V_T3}
          s_lshl_b32 s{S_A}, s{S_HKV}, 10
          s_lshl_b32 s{S_Bx}, s{S_R}, 5
          s_add_u32 s{S_A}, s{S_A}, s{S_Bx}
          s_waitcnt lgkmcnt(0)""")
    for w in range(3):
        g(f"v_pk_add_f32 v[120:121], v[120:121], v[{16+4*w}:{17+4*w}]")
        g(f"v_pk_add_f32 v[122:123], v[122:123], v[{18+4*w}:{19+4*w}]")
    g(f"""v_cvt_pk_bf16_f32 v16, v120, v121
          v_cvt_pk_bf16_f32 v17, v122, v123
          s_mov_b64 exec, s[{S_EX}:{S_EX+1}]
          ds_write_b64 v{V_T4}, v[16:17]
          s_mov_b64 exec, -1
          s_waitcnt lgkmcnt(0)
          ds_read_b128 v[20:23], v{V_T2}
          s_waitcnt lgkmcnt(0)
          buffer_store_dwordx4 v[20:23], v{V_T3}, {S4(S_WS)}, s{S_A} offen sc1""")
    g("s_setprio 0")
    g.stamp(1)
    wait_flag(g, "d", 4, 3)
    g(f"""s_lshl_b32 s{S_A}, s{S_HKV}, 5
          s_add_u32 s{S_Cx}, s{P_DBG}, s{S_A}
          s_addc_u32 s{S_Dx}, s{P_DBG+1}, 0
          s_mov_b32 s{S_A}, 1
          s_waitcnt vmcnt(0)
          s_atomic_add s{S_A}, s[{S_Cx}:{S_Dx}], 0 glc
          s_lshl_b32 s{S_Bx}, s{S_HKV}, 13
          s_add_u32 s{S_Bx}, s{S_Bx}, {WS_IN+6144:#x}
          s_add_u32 s{S_Cx}, s{P_WS}, s{S_Bx}
          s_addc_u32 s{S_Dx}, s{P_WS+1}, 0
          s_waitcnt lgkmcnt(0)""")
    g.stamp(2)
    g(f"""s_and_b32 s{S_A}, s{S_A}, 31
          s_cmp_eq_u32 s{S_A}, 31
          s_cbranch_scc0 L_pf
          s_mov_b32 s{S_A}, 1""")
    for half in range(2):
        for r in range(16):
            g(f"s_atomic_add s{S_A}, s[{S_Cx}:{S_Dx}], {r*65536:#x}")
        if half == 0:
            g(f"""s_add_u32 s{S_Cx}, s{S_Cx}, 0x100000
                  s_addc_u32 s{S_Dx}, s{S_Dx}, 0""")
    g.label("L_pf")
    prefetch(g)
    lds_prefetch(g)
    g.label("L_qwait")
    for e in range(8):
        m16 = 3 << (2*e); m32 = m16 | (m16 << 16)
        g(f"s_mov_b32 s{S_MASK+2*e}, {m32:#x}")
        g(f"s_mov_b32 s{S_MASK+2*e+1}, {m32:#x}")
    g(f"""v_lshrrev_b32 v{V_T2}, 7, v0
          s_lshl_b32 s{S_A}, s{S_B}, 5
          s_add_u32 s{S_A}, s{S_A}, s{S_HKV}
          v_lshlrev_b32 v{V_T2}, 3, v{V_T2}
          v_add_u32 v{V_T2}, s{S_A}, v{V_T2}
          v_lshlrev_b32 v{V_IN1}, 13, v{V_T2}
          v_and_b32 v{V_T3}, 127, v0
          v_lshl_add_u32 v{V_IN1}, v{V_T3}, 2, v{V_IN1}
          s_lshl_b32 s{S_A}, s{S_S}, 9
          s_add_u32 s{S_A}, s{S_A}, {WS_IN:#x}
          v_add_u32 v{V_IN1}, s{S_A}, v{V_IN1}""")
    g(f"""v_lshlrev_b32 v{V_T2}, 3, v{V_G}
          v_add_u32 v{V_T2}, s{S_WAVE}, v{V_T2}
          v_lshl_add_u32 v{V_T2}, v{V_T2}, 4, v{V_N}
          v_mul_u32_u24 v{V_T3}, 4682, v{V_T2}
          v_lshrrev_b32 v{V_T3}, 16, v{V_T3}
          v_mul_u32_u24 v{V_T4}, 14, v{V_T3}
          v_sub_u32 v{V_T4}, v{V_T2}, v{V_T4}
          v_and_b32 v{V_T5}, 3, v{V_T3}
          v_lshlrev_b32 v{V_T5}, 3, v{V_T5}
          v_lshrrev_b32 v{V_T3}, 2, v{V_T3}
          v_add_u32 v{V_T5}, v{V_T5}, v{V_T3}
          s_lshl_b32 s{S_A}, s{S_B}, 5
          v_add_u32 v{V_T5}, s{S_A}, v{V_T5}
          v_lshlrev_b32 v{V_IN2}, 13, v{V_T5}
          v_lshl_add_u32 v{V_IN2}, v{V_T4}, 2, v{V_IN2}
          s_lshl_b32 s{S_A}, s{S_I}, 6
          s_add_u32 s{S_A}, s{S_A}, {WS_IN+4096:#x}
          v_add_u32 v{V_IN2}, s{S_A}, v{V_IN2}
          v_cmp_lt_u32 vcc, 447, v{V_T2}
          v_mov_b32 v{V_T3}, 0x7ffffff0
          s_nop 0
          v_cndmask_b32 v{V_IN2}, v{V_IN2}, v{V_T3}, vcc""")
    for r in range(8):
        g(f"v_mov_b32 v{V_ACC+r}, 0")
    g(f"""v_mov_b32 v{V_M}, 0xf149f2ca
          v_mov_b32 v{V_L}, 0
          v_and_b32 v{V_T4}, 1, v{V_N}
          v_lshlrev_b32 v{V_T4}, 9, v{V_T4}
          v_lshl_add_u32 v{V_T4}, v{V_G}, 4, v{V_T4}
          v_add_u32 v{V_T4}, {L_QIMG}, v{V_T4}
          s_nop 0""")
    wait_flag(g, "q", 12, 4)
    for j in range(8):
        g(f"ds_read_b128 {vr(V_Q+4*j)}, v{V_T4} offset:{j*64}")
    g("s_waitcnt lgkmcnt(0)")
    g.stamp(4)
    g(f"""s_cmp_ge_u32 s{S_WAVE}, 4
          s_cbranch_scc1 L_last
          s_add_u32 s{S_OFF}, s{S_OFF}, {12*16384}""")
    tile_body(g, [56, 56, 56, 56], True)
    g(f"""s_add_u32 s{S_OFF}, s{S_OFF}, {4*16384}
          s_mov_b32 s{S_NEXT}, 12
          s_mov_b32 s{S_NEXT2}, 0
          s_lshl_b32 s{S_A}, s{S_WAVE}, 2
          s_add_u32 s{S_A}, s{S_A}, {L_FLAG+16}
          v_mov_b32 v{V_T0}, s{S_A}
          v_mov_b32 v{V_T1}, 1
          s_waitcnt vmcnt(32)
          s_mov_b64 exec, 1
          ds_write_b32 v{V_T0}, v{V_T1}
          s_mov_b64 exec, -1""")
    if BAL:
        g(f"""s_cmp_eq_u32 s{S_B}, 7
              s_cbranch_scc1 L_nobal
              s_lshl_b32 s{S_A}, s{S_S}, 2
              s_add_u32 s{S_A}, s{S_A}, s{S_WAVE}
              s_cmp_eq_u32 s{S_A}, 3
              s_cselect_b32 s{S_NEXT}, 11, s{S_NEXT}
              s_cmp_eq_u32 s{S_A}, 12
              s_cselect_b32 s{S_NEXT}, 13, s{S_NEXT}
              s_cselect_b32 s{S_NEXT2}, 1, 0""")
        g.label("L_nobal")
    g.label("L_loop")
    if BAL:
        g(f"""s_cmp_eq_u32 s{S_NEXT}, s{S_NEXT2}
              s_cbranch_scc0 L_nosp
              s_sub_u32 s{S_OFF}, s{S_BASE}, {(3*64-63)*16384}""")
        g.label("L_nosp")
    if STAG:
        g(f"""s_cmp_eq_u32 s{S_WAVE}, 0
              s_cbranch_scc0 L_nopc""")
        flag_add(g, 44)
        g.label("L_nopc")
    if g.prof:
        for val, sl in ((12, 1), (8, 2), (4, 3)):
            g(f"s_cmp_eq_u32 s{S_NEXT}, {val}")
            g(f"s_cbranch_scc0 L_ps{val}")
            g.stamp(sl)
            g.label(f"L_ps{val}")
    tile_body(g, [24, 24, 24, 24], True)
    g(f"""s_add_u32 s{S_OFF}, s{S_OFF}, {4*16384}
          s_sub_u32 s{S_NEXT}, s{S_NEXT}, 1
          s_cmp_gt_u32 s{S_NEXT}, 0
          s_cbranch_scc1 L_loop""")
    g.label("L_last")
    tile_body(g, [24, 16, 8, 0], False)
    g(f"""s_cmp_lt_u32 s{S_WAVE}, 4
          s_cbranch_scc1 L_tail0
          s_cmp_eq_u32 s{S_NEXT}, 257
          s_cbranch_scc1 L_wdma
          s_mov_b32 s{S_NEXT}, 257
          s_lshl_b32 s{S_A}, s{S_WAVE}, 2
          s_add_u32 s{S_A}, s{S_A}, {L_FLAG}
          v_mov_b32 v{V_T0}, s{S_A}""")
    g.label("L_wl")
    g(f"""ds_read_b32 v{V_T1}, v{V_T0}
          s_waitcnt lgkmcnt(0)
          v_cmp_eq_u32 vcc, 0, v{V_T1}""")
    poll_branch(g, "L_wl")
    g(f"""s_sub_u32 s{S_A}, s{S_WAVE}, 4
          s_lshl_b32 s{S_A}, s{S_A}, 15
          v_lshlrev_b32 v{V_T0}, 4, v{V_LANE}
          v_add_u32 v{V_T0}, s{S_A}, v{V_T0}""")
    for u in range(32):
        g(f"ds_read_b128 {vr(128+4*u)}, v{V_T0} offset:{u*1024}")
    g("s_waitcnt lgkmcnt(0)")
    flag_add(g, 32)
    g("s_branch L_last")
    g.label("L_wdma")
    wait_flag(g, "w", 32, 4)
    g("s_setprio 2")
    small_dma(g)
    if STAG:
        g(f"v_mov_b32 v{V_T0}, {L_FLAG}")
        g(f"v_mov_b32 v{V_T2}, s{S_B}")
        g.label("L_wst")
        g(f"""s_sleep 8
              ds_read_b32 v{V_T1}, v{V_T0} offset:44
              s_waitcnt lgkmcnt(0)
              v_cmp_gt_u32 vcc, v{V_T2}, v{V_T1}""")
        poll_branch(g, "L_wst")
    wo_dma(g)
    g(f"s_cmp_eq_u32 s{S_WAVE}, 7")
    g("s_cbranch_scc0 L_nocert")
    srd(g, S_T, P_DBG, 256)
    g(f"v_lshlrev_b32 v{V_T0}, 5, v{V_LANE}")
    g("s_mov_b64 exec, 0xff")
    g.label("L_cert")
    g(f"""buffer_load_dword v{V_T1}, v{V_T0}, {S4(S_T)}, 0 offen sc1
          s_waitcnt vmcnt(0)
          v_cmp_gt_u32 vcc, 32, v{V_T1}""")
    poll_branch(g, "L_cert")
    g("s_mov_b64 exec, -1")
    g.label("L_nocert")
    g("s_waitcnt vmcnt(0)")
    g("s_setprio 0")
    g.label("L_tail0")
    g.stamp(5)
    tail(g, debug)
    g.label("L_end")
    if g.prof:
        g(f"s_cmp_ge_u32 s{S_WG}, 256")
        g("s_cbranch_scc1 L_end2")
        g("s_waitcnt vmcnt(0)")
        g.stamp(15)
        g("s_mov_b64 exec, 1")
        g(f"s_lshl_b32 s{S_A}, s{S_WG}, 3")
        g(f"s_add_u32 s{S_A}, s{S_A}, s{S_WAVE}")
        g(f"s_lshl_b32 s{S_A}, s{S_A}, 7")
        g(f"s_add_u32 s{S_A}, s{S_A}, {WS_DBG+0x100000:#x}")
        g("v_mov_b32 v1, 0")
        for i, sl in enumerate(STAMP_SLOTS):
            g(f"v_mov_b32 v{16+i}, s{sl}")
            g(f"buffer_store_dword v{16+i}, v1, {S4(S_WS)}, s{S_A} offen offset:{i*4}")
        g.label("L_end2")
    g("s_endpgm")
    return g.L

def tail(g, debug):
    R = 128
    xreduce(g, V_L, V_T0, "v_add_f32", [16, 32])
    g(f"""v_lshlrev_b32 v{V_T0}, 5, v{V_N}
          v_lshl_add_u32 v{V_T0}, v{V_G}, 3, v{V_T0}
          s_lshl_b32 s{S_A}, s{S_WAVE}, 11
          s_add_u32 s{S_A}, s{S_A}, {L_CB}
          v_add_u32 v{V_T0}, s{S_A}, v{V_T0}
          v_add_u32 v{V_T1}, 1024, v{V_T0}""")
    for half in range(2):
        a = V_ACC + 4*half
        g(f"ds_write2_b32 v{V_T0}, v{a}, v{a+2} offset0:{half*128} offset1:{half*128+1}")
        g(f"ds_write2_b32 v{V_T1}, v{a+1}, v{a+3} offset0:{half*128} offset1:{half*128+1}")
    g(f"""s_lshl_b32 s{S_A}, s{S_WAVE}, 4
          s_add_u32 s{S_A}, s{S_A}, {L_STAT}
          v_lshlrev_b32 v{V_T2}, 3, v{V_LANE}
          v_add_u32 v{V_T2}, s{S_A}, v{V_T2}
          s_mov_b64 exec, 3
          ds_write_b64 v{V_T2}, v[{V_M}:{V_L}]
          s_mov_b64 exec, -1""")
    g(f"""v_lshlrev_b32 v{V_T0}, 2, v0
          v_add_u32 v{V_T0}, {L_CB}, v{V_T0}
          v_lshrrev_b32 v{V_T1}, 8, v0
          v_lshlrev_b32 v{V_T1}, 3, v{V_T1}
          v_add_u32 v{V_T1}, {L_STAT}, v{V_T1}
          v_bfe_u32 v{V_T2}, v{V_LANE}, 2, 2
          v_lshrrev_b32 v{V_T3}, 1, v{V_T2}
          v_and_b32 v{V_T4}, 1, v{V_G}
          v_lshlrev_b32 v{V_T4}, 1, v{V_T4}
          v_xor_b32 v{V_T3}, v{V_T3}, v{V_T4}
          s_and_b32 s{S_A}, s{S_WAVE}, 3
          v_xor_b32 v{V_T3}, s{S_A}, v{V_T3}
          v_mul_u32_u24 v{V_T4}, 7168, v{V_G}
          v_lshl_add_u32 v{V_T4}, v{V_T2}, 7, v{V_T4}
          v_and_b32 v{V_T2}, 3, v{V_LANE}
          v_lshl_add_u32 v{V_T4}, v{V_T2}, 3, v{V_T4}
          s_lshr_b32 s{S_A}, s{S_WAVE}, 2
          s_lshl_b32 s{S_A}, s{S_A}, 10
          v_add_u32 v{V_T4}, s{S_A}, v{V_T4}
          v_lshl_add_u32 v{V_A}, v{V_T3}, 5, v{V_T4}
          v_xor_b32 v{V_T3}, 2, v{V_T3}
          v_lshl_add_u32 v{V_A+1}, v{V_T3}, 5, v{V_T4}
          v_add_u32 v{V_A+1}, 512, v{V_A+1}
          v_add_u32 v{V_A+2}, 57344, v{V_A}
          v_add_u32 v{V_A+3}, 57344, v{V_A+1}
          s_waitcnt lgkmcnt(0)
          s_barrier""")
    g.stamp(6)
    for w in range(8):
        g(f"ds_read_b64 v[{16+2*w}:{17+2*w}], v{V_T1} offset:{w*16}")
    for w in range(8):
        g(f"ds_read_b32 v{32+w}, v{V_T0} offset:{w*2048}")
    g("s_waitcnt lgkmcnt(8)")
    g(f"""v_max3_f32 v{V_T0}, v16, v18, v20
          v_max3_f32 v{V_T1}, v22, v24, v26
          v_max3_f32 v{V_T0}, v{V_T0}, v28, v30
          v_max_f32 v{V_T0}, v{V_T0}, v{V_T1}""")
    for w in range(8): g(f"v_sub_f32 v{16+2*w}, v{16+2*w}, v{V_T0}")
    for w in range(8): g(f"v_mul_f32 v{16+2*w}, s{S_C}, v{16+2*w}")
    for w in range(8): g(f"v_exp_f32 v{16+2*w}, v{16+2*w}")
    g("s_waitcnt lgkmcnt(0)")
    g(f"""v_mul_f32 v{V_T1}, v16, v17
          v_mul_f32 v{V_T2}, v16, v32""")
    for w in range(1, 8):
        g(f"v_fma_f32 v{V_T1}, v{16+2*w}, v{17+2*w}, v{V_T1}")
        g(f"v_fma_f32 v{V_T2}, v{16+2*w}, v{32+w}, v{V_T2}")
    g(f"""v_rcp_f32 v{V_T3}, v{V_T1}
          v_log_f32 v{V_T4}, v{V_T1}
          s_mul_i32 s{S_A}, s{S_S}, 508
          s_sub_u32 s{S_A}, 2048, s{S_A}
          v_mul_f32 v40, v{V_T2}, v{V_T3}
          v_fma_f32 v42, v{V_T0}, s{S_C}, v{V_T4}""")
    canon(g, 40); canon(g, 42)
    g(f"""buffer_store_dword v40, v{V_IN1}, {S4(S_WS)}, 0 offen sc1
          v_and_b32 v{V_T1}, 127, v0
          v_cmp_eq_u32 vcc, 0, v{V_T1}
          s_and_saveexec_b64 s[{S_EX}:{S_EX+1}], vcc
          s_cbranch_execz L_t1s
          buffer_store_dword v42, v{V_IN1}, {S4(S_WS)}, s{S_A} offen sc1""")
    g.label("L_t1s")
    g(f"s_mov_b64 exec, s[{S_EX}:{S_EX+1}]")
    for q in range(4):
        for ks in range(4):
            a1, a2 = (V_A, V_A+1) if ks < 2 else (V_A+2, V_A+3)
            off = (ks & 1) * 28672 + q * 2048
            r = R + (q*4 + ks) * 4
            g(f"ds_read_b64_tr_b16 v[{r}:{r+1}], v{a1} offset:{off}")
            g(f"ds_read_b64_tr_b16 v[{r+2}:{r+3}], v{a2} offset:{off}")
    g.stamp(7)
    g(f"""s_lshl_b32 s{S_Cx}, s{S_WG}, 13
          s_add_u32 s{S_Cx}, s{S_Cx}, {WS_IN:#x}
          s_cmp_ge_u32 s{S_WAVE}, 2
          s_cbranch_scc1 L_t2b
          v_lshlrev_b32 v{V_T0}, 2, v0
          v_mov_b32 v{V_T1}, 2048""")
    g.label("L_p1")
    for s in range(4):
        g(f"buffer_load_dword v{16+s}, v{V_T0}, {S4(S_WS)}, s{S_Cx} offen offset:{s*512} sc1")
    g(f"""buffer_load_dwordx4 v[24:27], v{V_T1}, {S4(S_WS)}, s{S_Cx} offen sc1
          s_waitcnt vmcnt(0)
          v_max3_u32 v{V_T2}, v16, v17, v18
          v_max3_u32 v{V_T3}, v19, v24, v25
          v_max3_u32 v{V_T2}, v{V_T2}, v26, v27
          v_max_u32 v{V_T2}, v{V_T2}, v{V_T3}
          v_cmp_eq_u32 vcc, -1, v{V_T2}""")
    poll_branch(g, "L_p1")
    g(f"""v_max3_f32 v{V_T2}, v24, v25, v26
          v_max_f32 v{V_T2}, v{V_T2}, v27
          v_sub_f32 v24, v24, v{V_T2}
          v_sub_f32 v25, v25, v{V_T2}
          v_sub_f32 v26, v26, v{V_T2}
          v_sub_f32 v27, v27, v{V_T2}
          v_exp_f32 v24, v24
          v_exp_f32 v25, v25
          v_exp_f32 v26, v26
          v_exp_f32 v27, v27
          v_lshlrev_b32 v{V_T0}, 1, v0
          v_add_f32 v{V_T2}, v24, v25
          v_add_f32 v{V_T3}, v26, v27
          v_add_f32 v{V_T2}, v{V_T2}, v{V_T3}
          v_rcp_f32 v{V_T2}, v{V_T2}
          v_mul_f32 v{V_T3}, v24, v16
          v_fma_f32 v{V_T3}, v25, v17, v{V_T3}
          v_fma_f32 v{V_T3}, v26, v18, v{V_T3}
          v_fma_f32 v{V_T3}, v27, v19, v{V_T3}
          v_mul_f32 v{V_T3}, v{V_T3}, v{V_T2}
          v_cvt_pk_bf16_f32 v{V_T3}, v{V_T3}, v{V_T3}
          v_add_u32 v{V_T1}, {L_OF}, v{V_T0}
          ds_write_b16 v{V_T1}, v{V_T3}""")
    if debug & 1:
        g(f"""s_lshl_b32 s{S_A}, s{S_WG}, 8
              s_add_u32 s{S_A}, s{S_A}, {WS_DBG:#x}
              buffer_store_short v{V_T3}, v{V_T0}, {S4(S_WS)}, s{S_A} offen""")
    g.label("L_t2b")
    g(f"""v_lshlrev_b32 v{V_T0}, 4, v{V_G}
          v_add_u32 v{V_T0}, {L_OF}, v{V_T0}
          v_cmp_eq_u32 vcc, 1, v{V_G}
          v_cmp_eq_u32 s[{S_A}:{S_A+1}], 2, v{V_G}
          v_cmp_eq_u32 s[{S_EX}:{S_EX+1}], 3, v{V_G}
          s_waitcnt lgkmcnt(0)
          s_barrier""")
    g.stamp(8)
    for ks in range(4):
        g(f"ds_read_b128 {vr(16+4*ks)}, v{V_T0} offset:{ks*64}")
    g(f"v_lshlrev_b32 v{V_T0}, 2, v0")
    g(f"v_add_u32 v{V_T0}, 4096, v{V_T0}")
    for ks in range(4):
        g(f"s_waitcnt lgkmcnt({3-ks})")
        for q in range(4):
            c = "0" if ks == 0 else vr(32+4*q)
            g(f"v_mfma_f32_16x16x32_bf16 {vr(32+4*q)}, {vr(16+4*ks)}, {vr(R+(q*4+ks)*4)}, {c}")
    g.nop(8)
    g(f"""v_cndmask_b32 v48, v32, v36, vcc
          v_cndmask_b32 v48, v48, v40, s[{S_A}:{S_A+1}]
          v_cndmask_b32 v48, v48, v44, s[{S_EX}:{S_EX+1}]""")
    canon(g, 48)
    g(f"buffer_store_dword v48, v{V_IN2}, {S4(S_WS)}, 0 offen sc1")
    g.stamp(9)
    g(f"""v_cmp_gt_u32 s[{S_A}:{S_A+1}], 14, v{V_N}
          s_lshl_b32 s{S_Dx}, s{S_WAVE}, 6
          s_add_u32 s{S_Dx}, s{S_Dx}, {L_P2}
          v_lshl_add_u32 v{V_T1}, v{V_N}, 2, s{S_Dx}""")
    g.label("L_p2")
    g(f"""buffer_load_dword v16, v{V_T0}, {S4(S_WS)}, s{S_Cx} offen sc1
          s_waitcnt vmcnt(0)
          v_cmp_eq_u32 vcc, -1, v16
          s_and_b64 vcc, vcc, s[{S_A}:{S_A+1}]""")
    poll_branch(g, "L_p2", "scc0")
    xreduce(g, 16, 18, "v_add_f32", [16, 32])
    g(f"""s_mov_b64 exec, 0xffff
          ds_write_b32 v{V_T1}, v16
          s_mov_b64 exec, -1""")
    srd(g, S_T, P_X, 7168)
    g(f"""s_mul_i32 s{S_A}, s{S_B}, 896
          s_mul_i32 s{S_Bx}, s{S_I}, 28
          s_add_u32 s{S_A}, s{S_A}, s{S_Bx}
          v_lshlrev_b32 v{V_T5}, 1, v{V_N}
          v_lshlrev_b32 v{V_T0}, 4, v0
          v_and_b32 v{V_T1}, 1, v0
          v_cmp_eq_u32 s[{S_EX}:{S_EX+1}], 1, v{V_T1}
          v_lshrrev_b32 v{V_T2}, 6, v0
          v_mul_u32_u24 v{V_T2}, 896, v{V_T2}
          v_bfe_u32 v{V_T3}, v0, 1, 3
          v_lshlrev_b32 v{V_T3}, 2, v{V_T3}
          v_bfe_u32 v{V_T4}, v0, 4, 2
          v_add_u32 v{V_T3}, v{V_T3}, v{V_T4}
          v_mul_u32_u24 v{V_T3}, 28, v{V_T3}
          v_add_u32 v{V_T2}, v{V_T2}, v{V_T3}
          v_lshl_add_u32 v{V_T2}, v{V_T1}, 4, v{V_T2}
          v_add_u32 v{V_T2}, {L_HIMG}, v{V_T2}
          s_mov_b32 s{S_Cx}, {WS_H:#x}
          s_cmp_eq_u32 s{S_WAVE}, 0
          s_cbranch_scc0 L_t4b
          buffer_load_ushort v40, v{V_T5}, {S4(S_T)}, s{S_A} offen""")
    g.label("L_t4b")
    g(f"""s_waitcnt lgkmcnt(0)
          s_barrier
          s_cmp_eq_u32 s{S_WAVE}, 0
          s_cbranch_scc0 L_t5
          v_lshlrev_b32 v{V_T3}, 2, v{V_N}
          v_add_u32 v{V_T3}, {L_P2}, v{V_T3}""")
    for w in range(8):
        g(f"ds_read_b32 v{16+w}, v{V_T3} offset:{w*64}")
    g(f"""s_lshl_b32 s{S_A}, s{S_WG}, 5
          s_add_u32 s{S_A}, s{S_A}, {WS_H:#x}
          s_waitcnt lgkmcnt(0)
          v_add_f32 v16, v16, v17
          v_add_f32 v18, v18, v19
          v_add_f32 v20, v20, v21
          v_add_f32 v22, v22, v23
          v_add_f32 v16, v16, v18
          v_add_f32 v20, v20, v22
          v_add_f32 v16, v16, v20""")
    bf16_round(g, 16, 16)
    g(f"""s_waitcnt vmcnt(0)
          v_lshlrev_b32 v40, 16, v40
          v_add_f32 v16, v16, v40
          s_nop 1
          v_mov_b32_dpp v17, v16 quad_perm:[1,1,3,3] row_mask:0xf bank_mask:0xf
          v_cvt_pk_bf16_f32 v16, v16, v17""")
    canon(g, 16)
    g(f"""s_mov_b64 exec, 0x1555
          buffer_store_dword v16, v{V_T5}, {S4(S_WS)}, s{S_A} offen sc1
          s_mov_b64 exec, -1""")
    g.label("L_t5")
    g.stamp(10)
    g(f"""s_min_u32 s{S_A}, s{S_J}, s{S_CS}
          s_cmp_ge_u32 s{S_A}, 112
          s_cbranch_scc1 L_end""")
    g(f"""v_bfe_u32 v{V_T3}, v{V_LANE}, 2, 2
          v_and_b32 v{V_T4}, 3, v{V_LANE}
          s_cmp_ge_u32 s{S_J}, 112
          s_cbranch_scc1 L_plwd
          v_lshlrev_b32 v{V_T5}, 8, v{V_G}
          v_lshl_add_u32 v{V_T5}, v{V_T3}, 5, v{V_T5}
          v_lshl_add_u32 v{V_T5}, v{V_T4}, 3, v{V_T5}
          s_lshl_b32 s{S_A}, s{S_WAVE}, 11
          s_add_u32 s{S_A}, s{S_A}, {L_WD}
          v_add_u32 v{V_T5}, s{S_A}, v{V_T5}""")
    for m in range(2):
        for ks in range(2):
            r = R + m*8 + ks*4
            g(f"ds_read_b64_tr_b16 v[{r}:{r+1}], v{V_T5} offset:{m*14336+ks*1024}")
            g(f"ds_read_b64_tr_b16 v[{r+2}:{r+3}], v{V_T5} offset:{m*14336+ks*1024+128}")
    g("s_branch L_pldone")
    g.label("L_plwd")
    g(f"""v_lshlrev_b32 v{V_T5}, 7, v{V_G}
          v_lshl_add_u32 v{V_T5}, v{V_T3}, 4, v{V_T5}
          v_lshl_add_u32 v{V_T5}, v{V_T4}, 3, v{V_T5}
          s_mul_i32 s{S_A}, s{S_WAVE}, {7*512}
          s_add_u32 s{S_A}, s{S_A}, {L_WD}
          v_add_u32 v{V_T5}, s{S_A}, v{V_T5}""")
    for ks in range(7):
        g(f"ds_read_b64_tr_b16 v[{R+4*ks}:{R+4*ks+1}], v{V_T5} offset:{ks*512}")
        g(f"ds_read_b64_tr_b16 v[{R+4*ks+2}:{R+4*ks+3}], v{V_T5} offset:{ks*512+64}")
    g.label("L_pldone")
    g.label("L_p3")
    g(f"""buffer_load_dwordx4 v[16:19], v{V_T0}, {S4(S_WS)}, s{S_Cx} offen sc1
          s_waitcnt vmcnt(0)
          v_cndmask_b32 v20, v19, 0, s[{S_EX}:{S_EX+1}]
          v_max3_u32 v{V_T3}, v16, v17, v18
          v_max_u32 v{V_T3}, v{V_T3}, v20
          v_cmp_eq_u32 vcc, -1, v{V_T3}""")
    poll_branch(g, "L_p3")
    g(f"""ds_write2_b32 v{V_T2}, v16, v17 offset0:0 offset1:1
          ds_write_b32 v{V_T2}, v18 offset:8
          s_andn2_b64 exec, exec, s[{S_EX}:{S_EX+1}]
          ds_write_b32 v{V_T2}, v19 offset:12
          s_mov_b64 exec, -1
          s_mul_i32 s{S_A}, s{S_WAVE}, 896
          v_lshlrev_b32 v{V_M}, 4, v{V_LANE}
          v_add_u32 v{V_M}, s{S_A}, v{V_M}
          v_add_u32 v{V_L}, {L_HIMG}, v{V_M}
          v_mov_b32 v16, 0
          v_mov_b32 v17, 0
          v_mov_b32 v18, 0
          v_mov_b32 v19, 0
          s_mov_b32 s{S_EX}, -1
          s_mov_b32 s{S_EX+1}, 0x00ffffff
          s_waitcnt lgkmcnt(0)
          s_barrier""")
    g.stamp(11)
    g(f"s_cmp_ge_u32 s{S_J}, 112")
    g("s_cbranch_scc1 L_t8")
    g(f"""s_mov_b64 exec, s[{S_EX}:{S_EX+1}]
          ds_read_b128 v[16:19], v{V_L}
          s_mov_b64 exec, -1
          s_waitcnt lgkmcnt(0)""")
    for i in range(4):
        g(f"v_lshlrev_b32 v{24+2*i}, 16, v{16+i}")
        g(f"v_and_b32 v{25+2*i}, s{S_HIM}, v{16+i}")
    g(f"""v_pk_add_f32 v[{V_T0}:{V_T1}], v[24:25], v[26:27]
          v_pk_add_f32 v[{V_T2}:{V_T3}], v[28:29], v[30:31]
          v_pk_add_f32 v[{V_T0}:{V_T1}], v[{V_T0}:{V_T1}], v[{V_T2}:{V_T3}]
          v_add_f32 v{V_T0}, v{V_T0}, v{V_T1}""")
    xreduce(g, V_T0, V_T1, "v_add_f32", [1, 2, 4, 8, 16, 32])
    g(f"""v_mul_f32 v{V_T4}, {f32bits(1.0/448.0):#x}, v{V_T0}
          v_mul_f32 v{V_T5}, {f32bits(1.0/448.0):#x}, v{V_T0}""")
    for i in range(4):
        g(f"v_pk_add_f32 v[{24+2*i}:{25+2*i}], v[{24+2*i}:{25+2*i}], v[{V_T4}:{V_T5}] neg_lo:[0,1] neg_hi:[0,1]")
    g(f"""v_pk_mul_f32 v[{V_T0}:{V_T1}], v[24:25], v[24:25]
          v_pk_mul_f32 v[{V_T2}:{V_T3}], v[26:27], v[26:27]
          v_pk_fma_f32 v[{V_T0}:{V_T1}], v[28:29], v[28:29], v[{V_T0}:{V_T1}]
          v_pk_fma_f32 v[{V_T2}:{V_T3}], v[30:31], v[30:31], v[{V_T2}:{V_T3}]
          s_not_b64 exec, s[{S_EX}:{S_EX+1}]
          v_mov_b32 v{V_T0}, 0
          v_mov_b32 v{V_T1}, 0
          v_mov_b32 v{V_T2}, 0
          v_mov_b32 v{V_T3}, 0
          s_mov_b64 exec, -1""")
    ln_finish(g, [1, 2, 4, 8, 16, 32])
    ln_apply(g, 16, 4, 32)
    g(f"""v_add_u32 v{V_L}, {L_HN}, v{V_M}
          s_mov_b64 exec, s[{S_EX}:{S_EX+1}]
          ds_write_b128 v{V_L}, v[16:19]
          s_mov_b64 exec, -1
          v_and_b32 v{V_T0}, 7, v{V_LANE}
          v_mul_u32_u24 v{V_T0}, 896, v{V_T0}
          v_lshl_add_u32 v{V_T0}, v{V_G}, 4, v{V_T0}
          s_lshl_b32 s{S_A}, s{S_WAVE}, 7
          s_add_u32 s{S_A}, s{S_A}, {L_HN}
          v_add_u32 v{V_T0}, s{S_A}, v{V_T0}
          v_lshlrev_b32 v{V_T1}, 7, v{V_G}
          v_lshl_add_u32 v{V_T1}, v{V_N}, 4, v{V_T1}
          s_lshl_b32 s{S_A}, s{S_WAVE}, 10
          s_add_u32 s{S_A}, s{S_A}, {L_WO}
          v_add_u32 v{V_T5}, s{S_A}, v{V_T1}
          s_mov_b32 s{S_EX}, 0x00ff00ff
          s_mov_b32 s{S_EX+1}, 0x00ff00ff
          s_waitcnt lgkmcnt(0)
          s_barrier""")
    g.stamp(12)
    g(f"s_cmp_eq_u32 s{S_WAVE}, 7")
    g("s_cbranch_scc1 L_t7b")
    g(f"""ds_read_b128 v[16:19], v{V_T0}
          ds_read_b128 v[20:23], v{V_T0} offset:64
          s_waitcnt lgkmcnt(1)
          v_mfma_f32_16x16x32_bf16 v[24:27], {vr(R)}, v[16:19], 0
          v_mfma_f32_16x16x32_bf16 v[28:31], {vr(R+8)}, v[16:19], 0
          s_waitcnt lgkmcnt(0)
          v_mfma_f32_16x16x32_bf16 v[24:27], {vr(R+4)}, v[20:23], v[24:27]
          v_mfma_f32_16x16x32_bf16 v[28:31], {vr(R+12)}, v[20:23], v[28:31]
          s_mov_b64 exec, s[{S_EX}:{S_EX+1}]""")
    g.nop(8)
    g(f"""ds_write_b128 v{V_T5}, v[24:27]
          ds_write_b128 v{V_T5}, v[28:31] offset:512
          s_mov_b64 exec, -1""")
    g.label("L_t7b")
    g(f"""s_waitcnt lgkmcnt(0)
          s_barrier
          s_cmp_eq_u32 s{S_WAVE}, 7
          s_cbranch_scc0 L_end
          v_add_u32 v{V_T0}, {L_WO}, v{V_T1}""")
    for w in range(7):
        g(f"ds_read_b128 {vr(16+8*w)}, v{V_T0} offset:{w*1024}")
        g(f"ds_read_b128 {vr(20+8*w)}, v{V_T0} offset:{w*1024+512}")
    g(f"""s_lshl_b32 s{S_A}, s{S_J}, 8
          s_add_u32 s{S_A}, s{S_A}, {WS_HH:#x}
          v_lshlrev_b32 v{V_T0}, 5, v{V_N}
          v_lshl_add_u32 v{V_T0}, v{V_G}, 3, v{V_T0}
          s_waitcnt lgkmcnt(0)""")
    for w in range(1, 7):
        for q in range(4):
            g(f"v_pk_add_f32 v[{16+2*q}:{17+2*q}], v[{16+2*q}:{17+2*q}], v[{16+8*w+2*q}:{17+8*w+2*q}]")
    for r in range(8):
        bf16_round(g, 16+r, 16+r)
    g(f"""v_pk_mul_f32 v[16:17], v[16:17], v[20:21]
          v_pk_mul_f32 v[18:19], v[18:19], v[22:23]
          v_cvt_pk_bf16_f32 v16, v16, v17
          v_cvt_pk_bf16_f32 v17, v18, v19""")
    canon(g, 16); canon(g, 17)
    g(f"""s_mov_b64 exec, s[{S_EX}:{S_EX+1}]
          buffer_store_dwordx2 v[16:17], v{V_T0}, {S4(S_WS)}, s{S_A} offen sc1
          s_mov_b64 exec, -1""")
    g.stamp(13)
    g("s_branch L_end")
    g.label("L_t8")
    g(f"""v_and_b32 v{V_T0}, 7, v{V_LANE}
          v_lshlrev_b32 v{V_T0}, 5, v{V_T0}
          v_lshrrev_b32 v{V_T1}, 1, v{V_G}
          v_lshl_add_u32 v{V_T0}, v{V_T1}, 8, v{V_T0}
          v_and_b32 v{V_T1}, 1, v{V_G}
          v_lshl_add_u32 v{V_T0}, v{V_T1}, 4, v{V_T0}
          s_mul_i32 s{S_A}, s{S_WAVE}, {7*512}
          s_add_u32 s{S_A}, s{S_A}, {WS_HH:#x}
          v_lshlrev_b32 v{V_T1}, 4, v{V_LANE}
          s_lshl_b32 s{S_Bx}, s{S_WAVE}, 9
          s_add_u32 s{S_Bx}, s{S_Bx}, {L_WO}
          v_add_u32 v{V_T1}, s{S_Bx}, v{V_T1}""")
    g.label("L_p4")
    for ks in range(7):
        g(f"buffer_load_dwordx4 {vr(16+4*ks)}, v{V_T0}, {S4(S_WS)}, s{S_A} offen offset:{ks*512} sc1")
    g("s_waitcnt vmcnt(0)")
    g(f"v_max3_u32 v{V_T2}, v16, v17, v18")
    for i in range(19, 44, 2):
        if i + 1 <= 43:
            g(f"v_max3_u32 v{V_T2}, v{V_T2}, v{i}, v{i+1}")
        else:
            g(f"v_max_u32 v{V_T2}, v{V_T2}, v{i}")
    g(f"v_cmp_eq_u32 vcc, -1, v{V_T2}")
    poll_branch(g, "L_p4")
    g.stamp(14)
    for ks in range(7):
        c = "0" if ks == 0 else "v[48:51]"
        g(f"v_mfma_f32_16x16x32_bf16 v[48:51], {vr(16+4*ks)}, {vr(R+4*ks)}, {c}")
    g("s_mov_b32 exec_hi, 0")
    g.nop(8)
    g(f"""ds_write_b128 v{V_T1}, v[48:51]
          s_mov_b64 exec, -1
          v_lshlrev_b32 v{V_T0}, 4, v{V_LANE}
          v_mul_u32_u24 v{V_T1}, {4*896}, v{V_G}
          v_lshl_add_u32 v{V_T1}, v{V_N}, 1, v{V_T1}
          s_lshl_b32 s{S_A}, s{S_CS}, 4
          v_add_u32 v{V_T1}, s{S_A}, v{V_T1}
          v_add_u32 v{V_T2}, {L_HIMG}, v{V_T1}
          s_waitcnt lgkmcnt(0)
          s_barrier
          s_cmp_eq_u32 s{S_WAVE}, 0
          s_cbranch_scc0 L_end""")
    for w in range(8):
        g(f"ds_read_b128 {vr(16+4*w)}, v{V_T0} offset:{L_WO+w*512}")
    g("s_mov_b64 exec, 0x00ff00ff")
    for r in range(4):
        g(f"ds_read_u16 v{48+r}, v{V_T2} offset:{r*896}")
    srd(g, S_T, P_OUT, 7168)
    g("s_waitcnt lgkmcnt(0)")
    for w in range(1, 8):
        g(f"v_pk_add_f32 v[16:17], v[16:17], v[{16+4*w}:{17+4*w}]")
        g(f"v_pk_add_f32 v[18:19], v[18:19], v[{18+4*w}:{19+4*w}]")
    for r in range(4):
        bf16_round(g, 16+r, 16+r)
        g(f"v_lshlrev_b32 v{48+r}, 16, v{48+r}")
        g(f"v_add_f32 v{16+r}, v{16+r}, v{48+r}")
        g(f"v_cvt_pk_bf16_f32 v{16+r}, v{16+r}, v{16+r}")
        g(f"buffer_store_short v{16+r}, v{V_T1}, {S4(S_T)}, 0 offen offset:{r*896}")

def emit(path, kname, debug=0):
    hdr = open("cdna_kernels/" + NAME + ".s.ref").read().split("\n")
    out = []
    for line in hdr:
        if line.startswith("; @launch"):
            out.append(f"; @launch grid=(256,1,1) block=(512,1,1) lds={LDS_BYTES}")
            break
        out.append(line)
    out.append('.amdgcn_target "amdgcn-amd-amdhsa--gfx950"')
    out.append(".text")
    out.append(f".globl {kname}")
    out.append(".p2align 8")
    out.append(f".type {kname},@function")
    out.append(f"{kname}:")
    out += gen(debug)
    out.append('.section .rodata,"a"')
    out.append(".p2align 6")
    out.append(f".amdhsa_kernel {kname}")
    out.append("""  .amdhsa_next_free_vgpr 256
  .amdhsa_next_free_sgpr 102
  .amdhsa_accum_offset 256
  .amdhsa_group_segment_fixed_size 0
  .amdhsa_kernarg_size 96
  .amdhsa_user_sgpr_count 2
  .amdhsa_user_sgpr_kernarg_segment_ptr 1
  .amdhsa_system_sgpr_workgroup_id_x 1
  .amdhsa_float_denorm_mode_32 3
.end_amdhsa_kernel""")
    open(path, "w").write("\n".join(out) + "\n")

if __name__ == "__main__":
    debug = int(sys.argv[1]) if len(sys.argv) > 1 else 0
    path = sys.argv[2] if len(sys.argv) > 2 else "cdna_kernels/" + NAME + ".s"
    emit(path, NAME + "_kernel", debug)
```

```python
import sys, struct, os
STATIC = int(os.environ.get('STATIC', '1'))
NOW = int(os.environ.get('NOW', '0'))

NAME = "sequential_preLN__gqa_block_cached__glu_gated_bilinear__decode"
def f32bits(x): return struct.unpack("<I", struct.pack("<f", x))[0]

WS_Q   = 0x000000
WS_IN  = 0x100000
WS_H   = 0x400000
WS_HH  = 0x410000
WS_TC  = 0x420000
WS_DBG = 0x1000000
WS_BYTES = 0x2000000
L_WO  = 0
L_WD  = 114688
L_SCR = 143360
L_CB  = L_SCR
L_HIMG = L_SCR
L_HN  = L_SCR + 7168
L_QP  = L_SCR + 16384
L_PART = L_SCR + 14336
L_STAT = L_SCR + 16384
L_OF  = L_SCR + 16512
L_P2  = L_SCR + 16768
L_QIMG = L_SCR + 18432
L_FLAG = L_SCR + 19456
L_HHL = L_SCR + 19520
LDS_BYTES = 163840
C_SC = 1.4426950408889634 / 16.0

STAMP_SLOTS = [4,5,6,7,63,89,92,93,94,95,96,97,98,99,100,101]
class G:
    def __init__(self):
        self.L = []; self.prof = 0
    def __call__(self, s):
        for line in s.strip().split("\n"):
            line = line.strip()
            if line: self.L.append("  " + line)
    def label(self, l): self.L.append(l + ":")
    def nop(self, n=1):
        while n > 0:
            k = min(n, 16); self.L.append(f"  s_nop {k-1}"); n -= k
    def stamp(self, i):
        if self.prof:
            self.L.append("  s_memrealtime s[90:91]")
            self.L.append("  s_waitcnt lgkmcnt(0)")
            self.L.append(f"  s_mov_b32 s{STAMP_SLOTS[i]}, s90")

def vr(a, n=4): return f"v[{a}:{a+n-1}]"
def S4(s): return f"s[{s}:{s+3}]"

V_LANE, V_N, V_G = 1, 2, 3
V_K0, V_K1, V_V0, V_V1 = 4, 5, 6, 7
V_IN1, V_IN2 = 8, 9
V_T0, V_T1, V_T2, V_T3, V_T4, V_T5 = 10, 11, 12, 13, 14, 15
V_Q = 16; V_ACC = 48; V_S = 56; V_P = 64; V_GU = 68
V_M, V_L, V_AL, V_NMC = 76, 77, 78, 79
V_A = 80; V_B = 112
R_K0, R_K1, R_V0, R_V1 = 128, 160, 192, 224
S_WG, S_WAVE = 2, 3
S_K, S_V, S_WS, S_T, S_T2 = 8, 12, 16, 20, 24
S_OFF, S_BASE = 28, 29
S_HKV, S_B, S_S, S_R = 30, 31, 32, 33
S_C, S_SELLO, S_SELHI = 34, 35, 60
P_X, P_K, P_V, P_WQ, P_WO, P_BX, P_WG, P_WU, P_WD, P_OUT, P_DBG, P_WS = [36 + 2*i for i in range(12)]
S_MASK = 64
S_A, S_Bx, S_Cx, S_Dx = 80, 81, 82, 83
S_EX = 84
S_HIM, S_I, S_POLL = 86, 87, 88
S_J, S_CS = 61, 62
S_TC = P_K
S_NEXT, S_NEXT2 = P_V, P_V + 1

def srd(g, s, p, nbytes):
    g(f"""s_mov_b32 s{s}, s{p}
          s_and_b32 s{s+1}, s{p+1}, 0xffff
          s_mov_b32 s{s+2}, {nbytes}
          s_mov_b32 s{s+3}, 0x20000""")

def bf16_round(g, d, s):
    g(f"v_cvt_pk_bf16_f32 v{d}, v{s}, v{s}")
    g(f"v_lshlrev_b32 v{d}, 16, v{d}")

def xreduce(g, v, t, op, steps):
    for st in steps:
        if st in (1, 2, 4, 8):
            mod = {1: "quad_perm:[1,0,3,2]", 2: "quad_perm:[2,3,0,1]", 4: "row_ror:4", 8: "row_ror:8"}[st]
            g.nop(2); g(f"{op}_dpp v{v}, v{v}, v{v} {mod} row_mask:0xf bank_mask:0xf")
        else:
            g(f"v_mov_b32 v{t}, v{v}"); g.nop(2)
            g(f"v_permlane{st}_swap_b32 v{v}, v{t}"); g.nop(1)
            g(f"{op} v{v}, v{v}, v{t}")

def poll_branch(g, lab, cond="vccz"):
    g(f"""s_cbranch_{cond} {lab}_ok
          s_sub_u32 s{S_POLL}, s{S_POLL}, 1
          s_cmp_eq_u32 s{S_POLL}, 0
          s_cbranch_scc1 L_end
          s_branch {lab}""")
    g.label(lab + "_ok")

def canon(g, v, t=None):
    g(f"v_min_u32 v{v}, 0xfffffffe, v{v}")

def k_loads(g, which):
    vo, r = (V_K0, R_K0) if which == 0 else (V_K1, R_K1)
    for j in range(8):
        g(f"buffer_load_dwordx4 {vr(r+4*j)}, v{vo}, {S4(S_K)}, s{S_OFF} offen offset:{j*64} nt")

def v_loads(g, half):
    r = R_V0 if half == 0 else R_V1
    for j in range(8):
        vo = V_V0 if j < 4 else V_V1
        g(f"buffer_load_dwordx4 {vr(r+4*j)}, v{vo}, {S4(S_V)}, s{S_OFF} offen offset:{(j&3)*512+half*256} nt")

def tile_body(g, nwait, loads):
    for t, r in ((0, R_K0), (1, R_K1)):
        g(f"s_waitcnt vmcnt({nwait[t]})")
        s = V_S + 4*t
        for j in range(8):
            c = "0" if j == 0 else vr(s)
            g(f"v_mfma_f32_16x16x32_bf16 {vr(s)}, {vr(r+4*j)}, {vr(V_Q+4*j)}, {c}")
        if loads: k_loads(g, t)
        elif t == 1: g.nop(8)
    S = [V_S + i for i in range(8)]
    for i in range(4):
        g(f"v_cvt_pk_bf16_f32 v{V_P+i}, v{S[2*i]}, v{S[2*i+1]}")
    for i in range(4):
        g(f"v_lshlrev_b32 v{S[2*i]}, 16, v{V_P+i}")
        g(f"v_and_b32 v{S[2*i+1]}, s{S_HIM}, v{V_P+i}")
    g(f"""v_max3_f32 v{V_T0}, v{S[0]}, v{S[1]}, v{S[2]}
          v_max3_f32 v{V_T1}, v{S[3]}, v{S[4]}, v{S[5]}
          v_max3_f32 v{V_T0}, v{V_T0}, v{S[6]}, v{S[7]}
          v_max_f32 v{V_T0}, v{V_T0}, v{V_T1}""")
    xreduce(g, V_T0, V_T1, "v_max_f32", [16, 32])
    g(f"""v_max_f32 v{V_T0}, v{V_T0}, v{V_M}
          v_sub_f32 v{V_AL}, v{V_M}, v{V_T0}
          v_mul_f32 v{V_AL}, s{S_C}, v{V_AL}
          v_exp_f32 v{V_AL}, v{V_AL}
          v_mov_b32 v{V_M}, v{V_T0}
          v_mul_f32 v{V_NMC}, s{S_C}, v{V_T0}""")
    for i in range(8):
        g(f"v_fma_f32 v{S[i]}, v{S[i]}, s{S_C}, -v{V_NMC}")
    for i in range(8):
        g(f"v_exp_f32 v{S[i]}, v{S[i]}")
    for r in range(8):
        qp = "[0,0,2,2]" if (r & 1) == 0 else "[1,1,3,3]"
        g(f"v_mul_f32_dpp v{V_ACC+r}, v{V_AL}, v{V_ACC+r} quad_perm:{qp} row_mask:0xf bank_mask:0xf")
    for i in range(4):
        g(f"v_cvt_pk_bf16_f32 v{V_P+i}, v{S[2*i]}, v{S[2*i+1]}")
    g(f"""v_add_f32 v{V_T0}, v{S[0]}, v{S[1]}
          v_add_f32 v{V_T1}, v{S[2]}, v{S[3]}
          v_add_f32 v{V_T2}, v{S[4]}, v{S[5]}
          v_add_f32 v{V_T3}, v{S[6]}, v{S[7]}
          v_add_f32 v{V_T0}, v{V_T0}, v{V_T1}
          v_add_f32 v{V_T2}, v{V_T2}, v{V_T3}
          v_add_f32 v{V_T0}, v{V_T0}, v{V_T2}
          v_fma_f32 v{V_L}, v{V_L}, v{V_AL}, v{V_T0}""")
    for e in range(8):
        for i in range(4):
            g(f"v_cndmask_b32 v{V_A+4*e+i}, 0, v{V_P+i}, s[{S_MASK+2*e}:{S_MASK+2*e+1}]")
    for half, r in ((0, R_V0), (1, R_V1)):
        g(f"s_waitcnt vmcnt({nwait[2+half]})")
        acc = V_ACC + 4*half
        def perms(e):
            b = V_B + 4*(e & 3); q = e >> 1
            sel = S_SELLO if (e & 1) == 0 else S_SELHI
            for p in range(4):
                g(f"v_perm_b32 v{b+p}, v{r+4*(2*p+1)+q}, v{r+4*(2*p)+q}, s{sel}")
        perms(0); perms(1)
        for e in range(8):
            if e + 2 < 8: perms(e + 2)
            else: g.nop(1)
            g(f"v_mfma_f32_16x16x32_bf16 {vr(acc)}, {vr(V_A+4*e)}, {vr(V_B+4*(e&3))}, {vr(acc)}")
        if loads: v_loads(g, half)
    if not loads: g.nop(8)

def ln_finish(g, steps):
    g(f"""v_pk_add_f32 v[{V_T0}:{V_T1}], v[{V_T0}:{V_T1}], v[{V_T2}:{V_T3}]
          v_add_f32 v{V_T0}, v{V_T0}, v{V_T1}""")
    xreduce(g, V_T0, V_T1, "v_add_f32", steps)
    g(f"v_mul_f32 v{V_T0}, {f32bits(1.0/448.0):#x}, v{V_T0}")
    bf16_round(g, V_T0, V_T0)
    g(f"v_add_f32 v{V_T0}, {f32bits(1e-5):#x}, v{V_T0}")
    bf16_round(g, V_T0, V_T0)
    g(f"v_sqrt_f32 v{V_T0}, v{V_T0}")
    bf16_round(g, V_T4, V_T4)
    bf16_round(g, V_T0, V_T0)
    g(f"""v_rcp_f32 v{V_T2}, v{V_T0}
          v_mov_b32 v{V_T5}, v{V_T4}
          v_mov_b32 v{V_T1}, v{V_T0}
          v_mov_b32 v{V_T3}, v{V_T2}""")

def ln_stats(g, XR, ndw, steps, T):
    def unp(i, t):
        g(f"v_lshlrev_b32 v{t}, 16, v{XR+i}")
        g(f"v_and_b32 v{t+1}, s{S_HIM}, v{XR+i}")
    unp(0, V_T0); unp(1, V_T2)
    for i in range(2, ndw):
        t = T + 2*(i & 1); a = V_T0 + 2*(i & 1)
        unp(i, t)
        g(f"v_pk_add_f32 v[{a}:{a+1}], v[{a}:{a+1}], v[{t}:{t+1}]")
    g(f"""v_pk_add_f32 v[{V_T0}:{V_T1}], v[{V_T0}:{V_T1}], v[{V_T2}:{V_T3}]
          v_add_f32 v{V_T0}, v{V_T0}, v{V_T1}""")
    xreduce(g, V_T0, V_T1, "v_add_f32", steps)
    g(f"""v_mul_f32 v{V_T4}, {f32bits(1.0/448.0):#x}, v{V_T0}
          v_mul_f32 v{V_T5}, {f32bits(1.0/448.0):#x}, v{V_T0}
          v_mov_b32 v{V_T0}, 0
          v_mov_b32 v{V_T1}, 0
          v_mov_b32 v{V_T2}, 0
          v_mov_b32 v{V_T3}, 0""")
    for i in range(ndw):
        t = T + 2*(i & 1); a = V_T0 + 2*(i & 1)
        unp(i, t)
        g(f"v_pk_add_f32 v[{t}:{t+1}], v[{t}:{t+1}], v[{V_T4}:{V_T5}] neg_lo:[0,1] neg_hi:[0,1]")
        g(f"v_pk_fma_f32 v[{a}:{a+1}], v[{t}:{t+1}], v[{t}:{t+1}], v[{a}:{a+1}]")
    ln_finish(g, steps)

def ln_apply(g, X, ndw, T):
    for i in range(ndw):
        a, c, e = T, T+2, T+4
        g(f"""v_lshlrev_b32 v{a}, 16, v{X+i}
              v_and_b32 v{a+1}, s{S_HIM}, v{X+i}
              v_pk_add_f32 v[{a}:{a+1}], v[{a}:{a+1}], v[{V_T4}:{V_T5}] neg_lo:[0,1] neg_hi:[0,1]
              v_cvt_pk_bf16_f32 v{a+1}, v{a}, v{a+1}
              v_lshlrev_b32 v{a}, 16, v{a+1}
              v_and_b32 v{a+1}, s{S_HIM}, v{a+1}
              v_pk_mul_f32 v[{c}:{c+1}], v[{a}:{a+1}], v[{V_T2}:{V_T3}]
              v_pk_fma_f32 v[{e}:{e+1}], v[{c}:{c+1}], v[{V_T0}:{V_T1}], v[{a}:{a+1}] neg_lo:[1,0,0] neg_hi:[1,0,0]
              v_pk_fma_f32 v[{c}:{c+1}], v[{e}:{e+1}], v[{V_T2}:{V_T3}], v[{c}:{c+1}]
              v_cvt_pk_bf16_f32 v{X+i}, v{c}, v{c+1}""")

def dma(g, voff, srdreg, soff, m0reg, fl=""):
    g(f"""s_mov_b32 m0, s{m0reg}
          s_add_u32 s{m0reg}, s{m0reg}, 1024
          buffer_load_dwordx4 v{voff}, {S4(srdreg)}, s{soff} offen {fl} lds""")


def small_dma(g):
    g(f"s_sub_u32 s{S_Cx}, s{S_WAVE}, 4")
    g(f"s_cmp_ge_u32 s{S_CS}, 56")
    g(f"s_cbranch_scc1 L_nowd")
    srd(g, S_T, P_WD, 1792*448*2)
    g(f"""v_mul_u32_u24 v{V_T0}, 896, v{V_LANE}
          s_mul_i32 s{S_A}, s{S_Cx}, {7*64*896}
          s_lshl_b32 s{S_Bx}, s{S_CS}, 4
          s_add_u32 s{S_A}, s{S_A}, s{S_Bx}
          s_mul_i32 s{S_Bx}, s{S_Cx}, 7168
          s_add_u32 s{S_Bx}, s{S_Bx}, {L_WD}""")
    for i in range(7):
        dma(g, V_T0, S_T, S_A, S_Bx)
        g(f"s_add_u32 s{S_A}, s{S_A}, {64*896}")
    g.label(f"L_nowd")
    g(f"""s_cmp_ge_u32 s{S_J}, 112
          s_cbranch_scc1 L_nogu
          s_cmp_ge_u32 s{S_Cx}, 2
          s_cselect_b32 s{S_T}, s{P_WU}, s{P_WG}
          s_cselect_b32 s{S_T+1}, s{P_WU+1}, s{P_WG+1}
          s_and_b32 s{S_T+1}, s{S_T+1}, 0xffff
          s_mov_b32 s{S_T+2}, {448*1792*2}
          s_mov_b32 s{S_T+3}, 0x20000
          v_lshrrev_b32 v{V_T0}, 1, v{V_LANE}
          v_mul_u32_u24 v{V_T0}, 3584, v{V_T0}
          v_and_b32 v{V_T1}, 1, v{V_LANE}
          v_lshl_add_u32 v{V_T0}, v{V_T1}, 4, v{V_T0}
          s_and_b32 s{S_A}, s{S_Cx}, 1
          s_mul_i32 s{S_A}, s{S_A}, {224*3584}
          s_lshl_b32 s{S_Bx}, s{S_J}, 5
          s_add_u32 s{S_A}, s{S_A}, s{S_Bx}
          s_mul_i32 s{S_Bx}, s{S_Cx}, 7168
          s_add_u32 s{S_Bx}, s{S_Bx}, {L_WD}""")
    for i in range(7):
        dma(g, V_T0, S_T, S_A, S_Bx)
        g(f"s_add_u32 s{S_A}, s{S_A}, {32*3584}")
    g.label(f"L_nogu")

def wo_dma(g):
    g(f"s_sub_u32 s{S_Cx}, s{S_WAVE}, 4")
    srd(g, S_T, P_WO, 4096*448*2)
    g(f"""v_lshrrev_b32 v{V_T0}, 3, v{V_LANE}
          v_bfe_u32 v{V_T1}, v{V_LANE}, 1, 2
          v_lshrrev_b32 v{V_T2}, 4, v{V_LANE}
          v_xor_b32 v{V_T1}, v{V_T1}, v{V_T2}
          v_mul_u32_u24 v{V_T0}, 896, v{V_T0}
          v_and_b32 v{V_T2}, 1, v{V_LANE}
          v_lshl_add_u32 v{V_T0}, v{V_T2}, 4, v{V_T0}
          v_lshl_add_u32 v{V_T2}, v{V_T1}, 5, v{V_T0}
          v_xor_b32 v{V_T1}, 2, v{V_T1}
          v_lshl_add_u32 v{V_T3}, v{V_T1}, 5, v{V_T0}
          s_lshl_b32 s{S_A}, s{S_I}, 7
          s_lshl_b32 s{S_Bx}, s{S_Cx}, 5
          s_add_u32 s{S_A}, s{S_A}, s{S_Bx}
          s_mul_i32 s{S_A}, s{S_A}, 896
          s_mul_i32 s{S_Bx}, s{S_Cx}, {28*1024}""")
    for kg in range(4):
        for cb7 in range(7):
            dma(g, V_T2 + (kg & 1), S_T, S_A, S_Bx)
            g(f"s_add_u32 s{S_A}, s{S_A}, {128 if cb7 < 6 else 8*896-6*128}")

STAG = int(os.environ.get("STAG", "0"))
BAL = int(os.environ.get("BAL", "1"))
WARM = int(os.environ.get("WARM", "0"))
NB1 = 16
def wait_flag(g, tag, off, val):
    g(f"v_mov_b32 v{V_T0}, {L_FLAG}")
    g.label(f"L_wf{tag}")
    g(f"""ds_read_b32 v{V_T1}, v{V_T0} offset:{off}
          s_waitcnt lgkmcnt(0)
          v_cmp_gt_u32 vcc, {val}, v{V_T1}""")
    poll_branch(g, f"L_wf{tag}")

def flag_add(g, off):
    g(f"""v_mov_b32 v{V_T0}, {L_FLAG}
          v_mov_b32 v{V_T1}, 1
          s_mov_b64 exec, 1
          ds_add_u32 v{V_T0}, v{V_T1} offset:{off}
          s_mov_b64 exec, -1""")

def prefetch(g):
    k_loads(g, 0); k_loads(g, 1); v_loads(g, 0); v_loads(g, 1)

def lds_prefetch(g):
    g(f"""s_add_u32 s{S_A}, s{S_OFF}, {8*16384}
          s_lshl_b32 s{S_Bx}, s{S_WAVE}, 15""")
    for which in range(2):
        vo = V_K0 if which == 0 else V_K1
        for j in range(8):
            g(f"""s_mov_b32 m0, s{S_Bx}
                  s_add_u32 s{S_Bx}, s{S_Bx}, {1024-64 if j < 7 else 1024+7*64}
                  buffer_load_dwordx4 v{vo}, {S4(S_K)}, s{S_A} offen offset:{j*64} nt lds""")
    for half in range(2):
        for j in range(8):
            vo = V_V0 if j < 4 else V_V1
            off = (j & 3)*512 + half*256
            idx = half*8 + j + 1
            noff = ((idx & 3)*512 + (idx >> 3)*256) if idx < 16 else 0
            g(f"""s_mov_b32 m0, s{S_Bx}
                  s_add_u32 s{S_Bx}, s{S_Bx}, {(1024 + off - noff) & 0xffffffff:#x}
                  buffer_load_dwordx4 v{vo}, {S4(S_V)}, s{S_A} offen offset:{off} nt lds""")

def q_gather(g):
    g(f"""s_lshl_b32 s{S_A}, s{S_WG}, 13
          s_add_u32 s{S_A}, s{S_A}, {WS_IN+6144:#x}
          s_add_u32 s{S_Cx}, s{P_WS}, s{S_A}
          s_addc_u32 s{S_Dx}, s{P_WS+1}, 0
          s_lshl_b32 s{S_A}, s{S_B}, 13
          s_lshl_b32 s{S_Bx}, s{S_HKV}, 10
          s_add_u32 s{S_A}, s{S_A}, s{S_Bx}
          s_lshl_b32 s{S_Bx}, s{S_S}, 16
          s_add_u32 s{S_A}, s{S_A}, s{S_Bx}
          s_sub_u32 s{S_Bx}, s{S_WAVE}, 4
          s_lshl_b32 s{S_Bx}, s{S_Bx}, 8
          s_add_u32 s{S_A}, s{S_A}, s{S_Bx}
          s_add_u32 s{S_EX}, s{P_WS}, s{S_A}
          s_addc_u32 s{S_EX+1}, s{P_WS+1}, 0
          s_add_u32 s{S_Bx}, s{S_Bx}, {L_QIMG}
          v_mov_b32 v{V_T2}, s{S_Bx}""")
    g.label(f"L_pq")
    g(f"""s_load_dword s64, s[{S_Cx}:{S_Dx}], 0 glc
          s_waitcnt lgkmcnt(0)
          s_cmp_lg_u32 s64, -1""")
    poll_branch(g, f"L_pq", "scc1")
    g.stamp(3)
    for rnd in range(2):
        g(f"s_load_dwordx16 s[64:79], s[{S_EX}:{S_EX+1}], {rnd*128} glc")
        g(f"s_load_dwordx16 s[36:51], s[{S_EX}:{S_EX+1}], {rnd*128+64} glc")
        g("s_waitcnt lgkmcnt(0)")
        for i in range(16):
            g(f"v_mov_b32 v{16+rnd*32+i}, s{64+i}")
        for i in range(16):
            g(f"v_mov_b32 v{32+rnd*32+i}, s{36+i}")
    g(f"s_load_dwordx16 s[36:51], s[0:1], 0")
    g("s_mov_b64 exec, 1")
    for u in range(16):
        g(f"ds_write_b128 v{V_T2}, {vr(16+4*u)} offset:{u*16}")
    g("s_mov_b64 exec, -1")
    g("s_waitcnt lgkmcnt(0)")
    flag_add(g, 12)

def gen(debug=0):
    g = G(); g.prof = debug & 2
    g(f"s_cmp_ge_u32 s{S_WG}, 256")
    g("s_cbranch_scc1 L_end")
    g(f"s_load_dwordx16 s[36:51], s[0:1], 0")
    g(f"s_load_dwordx8 s[52:59], s[0:1], 64")
    g(f"""v_lshrrev_b32 v{V_T0}, 6, v0
          v_and_b32 v{V_LANE}, 63, v0
          v_and_b32 v{V_N}, 15, v0
          v_bfe_u32 v{V_G}, v0, 4, 2
          v_readfirstlane_b32 s{S_WAVE}, v{V_T0}
          s_and_b32 s{S_HKV}, s{S_WG}, 7
          s_lshr_b32 s{S_R}, s{S_WG}, 3
          s_lshr_b32 s{S_B}, s{S_WG}, 5
          s_and_b32 s{S_S}, s{S_R}, 3
          s_lshl_b32 s{S_I}, s{S_HKV}, 2
          s_add_u32 s{S_I}, s{S_I}, s{S_S}
          s_mov_b32 s{S_C}, {f32bits(C_SC):#x}
          s_mov_b32 s{S_SELLO}, 0x05040100
          s_mov_b32 s{S_SELHI}, 0x07060302
          s_mov_b32 s{S_HIM}, 0xffff0000
          s_mov_b32 s{S_POLL}, 0x100000
          s_mul_i32 s{S_J}, s{S_HKV}, 14
          s_lshl_b32 s{S_A}, s{S_B}, 1
          s_add_u32 s{S_J}, s{S_J}, s{S_A}
          s_add_u32 s{S_J}, s{S_J}, s{S_S}
          s_sub_u32 s{S_J}, s{S_J}, 1
          s_cmp_eq_u32 s{S_B}, 7
          s_cselect_b32 s{S_J}, 0xffff, s{S_J}
          s_cmp_eq_u32 s{S_S}, 0
          s_cselect_b32 s{S_J}, 0xffff, s{S_J}
          s_cmp_eq_u32 s{S_S}, 3
          s_cselect_b32 s{S_J}, 0xffff, s{S_J}
          s_mul_i32 s{S_CS}, s{S_HKV}, 7
          s_add_u32 s{S_CS}, s{S_CS}, s{S_B}
          s_cmp_eq_u32 s{S_B}, 7
          s_cselect_b32 s{S_CS}, 0xffff, s{S_CS}
          s_cmp_lg_u32 s{S_S}, 0
          s_cselect_b32 s{S_CS}, 0xffff, s{S_CS}""")
    g(f"""v_lshlrev_b32 v{V_K0}, 9, v{V_N}
          v_lshl_add_u32 v{V_K0}, v{V_G}, 4, v{V_K0}
          v_add_u32 v{V_K1}, 0x2000, v{V_K0}
          v_lshlrev_b32 v{V_V0}, 11, v{V_G}
          v_lshl_add_u32 v{V_V0}, v{V_N}, 4, v{V_V0}
          v_add_u32 v{V_V1}, 0x2000, v{V_V0}""")
    g(f"""s_lshl_b32 s{S_A}, s{S_B}, 3
          s_add_u32 s{S_A}, s{S_A}, s{S_HKV}
          s_lshl_b32 s{S_BASE}, s{S_A}, 22
          s_lshl_b32 s{S_Bx}, s{S_S}, 20
          s_add_u32 s{S_BASE}, s{S_BASE}, s{S_Bx}
          s_lshl_b32 s{S_Bx}, s{S_WAVE}, 14
          s_add_u32 s{S_OFF}, s{S_BASE}, s{S_Bx}
          s_lshl_b32 s{S_Dx}, s{S_A}, 8
          s_add_u32 s{S_Dx}, s{S_Dx}, {WS_TC:#x}""")
    g(f"""v_mov_b32 v{V_T0}, {L_FLAG}
          v_mov_b32 v16, 0
          v_mov_b32 v17, 0
          v_mov_b32 v18, 0
          v_mov_b32 v19, 0
          s_cmp_eq_u32 s{S_WAVE}, 4
          s_cbranch_scc0 L_nz
          ds_write_b128 v{V_T0}, v[16:19]
          ds_write_b128 v{V_T0}, v[16:19] offset:16
          ds_write_b128 v{V_T0}, v[16:19] offset:32""")
    g.label("L_nz")
    g("s_waitcnt lgkmcnt(0)")
    if g.prof:
        for sl in STAMP_SLOTS: g(f"s_mov_b32 s{sl}, 0")
    g.stamp(0)
    g(f"s_cmp_lt_u32 s{S_WAVE}, 4")
    g("s_cbranch_scc1 L_qphase")
    srd(g, S_K, P_K, 0x10000000)
    srd(g, S_V, P_V, 0x10000000)
    srd(g, S_WS, P_WS, WS_BYTES)
    g("s_setprio 2")
    g("s_barrier")
    prefetch(g)
    g("s_setprio 0")
    g.stamp(2)
    q_gather(g)
    g(f"s_mov_b32 s{S_NEXT}, 256")
    g("s_branch L_qwait")
    g.label("L_qphase")
    srd(g, S_T2, P_WQ, 448*4096*2)
    XR = 16; XA = 44; WB = 64
    g(f"""v_lshrrev_b32 v{V_T3}, 1, v{V_LANE}
          v_lshlrev_b32 v{V_T3}, 13, v{V_T3}
          v_and_b32 v{V_T4}, 1, v{V_LANE}
          v_lshl_add_u32 v{V_T3}, v{V_T4}, 4, v{V_T3}
          s_lshl_b32 s{S_A}, s{S_WAVE}, 20
          s_lshl_b32 s{S_Bx}, s{S_HKV}, 10
          s_add_u32 s{S_A}, s{S_A}, s{S_Bx}
          s_lshl_b32 s{S_Bx}, s{S_R}, 5
          s_add_u32 s{S_A}, s{S_A}, s{S_Bx}
          s_mul_i32 s{S_Bx}, s{S_WAVE}, 28672""")
    for i in range(4):
        dma(g, V_T3, S_T2, S_A, S_Bx)
        g(f"s_add_u32 s{S_A}, s{S_A}, 0x40000")
    srd(g, S_T, P_X, 7168)
    g(f"""v_and_b32 v{V_T0}, 7, v{V_LANE}
          v_mul_u32_u24 v{V_T0}, 896, v{V_T0}
          v_lshrrev_b32 v{V_T1}, 3, v{V_LANE}
          v_lshl_add_u32 v{V_T1}, v{V_T1}, 4, v{V_T0}
          v_lshl_add_u32 v{V_T2}, v{V_G}, 4, v{V_T0}
          s_lshl_b32 s{S_A}, s{S_WAVE}, 8""")
    for t in range(7):
        g(f"buffer_load_dwordx4 {vr(XR+4*t)}, v{V_T1}, {S4(S_T)}, 0 offen offset:{t*128}")
    for ks in range(4):
        g(f"buffer_load_dwordx4 {vr(XA+4*ks)}, v{V_T2}, {S4(S_T)}, s{S_A} offen offset:{ks*64}")
    srd(g, S_WS, P_WS, WS_BYTES)
    CLR = 124
    g(f"""v_mov_b32 v{CLR}, -1
          v_mov_b32 v{CLR+1}, -1
          v_mov_b32 v{CLR+2}, -1
          v_mov_b32 v{CLR+3}, -1
          v_lshlrev_b32 v{V_T0}, 4, v0
          s_lshl_b32 s{S_A}, s{S_WG}, 13
          s_add_u32 s{S_A}, s{S_A}, {WS_IN:#x}
          s_add_u32 s{S_Bx}, s{S_A}, 4096
          buffer_store_dwordx4 {vr(CLR)}, v{V_T0}, {S4(S_WS)}, s{S_A} offen sc1
          buffer_store_dwordx4 {vr(CLR)}, v{V_T0}, {S4(S_WS)}, s{S_Bx} offen sc1
          s_cmp_eq_u32 s{S_WAVE}, 3
          s_cbranch_scc0 L_noclr
          s_lshl_b32 s{S_A}, s{S_WG}, 5
          s_add_u32 s{S_A}, s{S_A}, {WS_H:#x}
          s_lshl_b32 s{S_Bx}, s{S_WG}, 7
          s_add_u32 s{S_Bx}, s{S_Bx}, {WS_HH:#x}
          v_lshlrev_b32 v{V_T0}, 4, v{V_LANE}
          v_mov_b32 v{V_T1}, 32
          s_mov_b64 exec, 3
          buffer_store_dwordx4 {vr(CLR)}, v{V_T0}, {S4(S_WS)}, s{S_A} offen sc1
          s_mov_b64 exec, 0xff
          buffer_store_dwordx4 {vr(CLR)}, v{V_T0}, {S4(S_WS)}, s{S_Bx} offen sc1
          s_mov_b64 exec, 1
          s_cmp_eq_u32 s{S_S}, 0
          s_cbranch_scc0 L_notc
          buffer_store_dword v{V_T1}, v{V_T0}, {S4(S_WS)}, s{S_Dx} offen sc1""")
    g.label("L_notc")
    g("s_mov_b64 exec, -1")
    g.label("L_noclr")
    g("s_barrier")
    srd(g, S_K, P_K, 0x10000000)
    srd(g, S_V, P_V, 0x10000000)
    g(f"""s_add_u32 s{S_TC}, s{P_WS}, s{S_Dx}
          s_addc_u32 s{S_TC+1}, s{P_WS+1}, 0
          v_lshlrev_b32 v104, 8, v{V_G}
          v_lshl_add_u32 v104, v{V_N}, 3, v104
          s_mul_i32 s{S_Bx}, s{S_WAVE}, 28672
          v_add_u32 v104, s{S_Bx}, v104""")
    g("s_waitcnt vmcnt(6)")
    for ks in range(4):
        g(f"ds_read_b64_tr_b16 v[{WB+4*ks}:{WB+4*ks+1}], v104 offset:{ks*1024}")
        g(f"ds_read_b64_tr_b16 v[{WB+4*ks+2}:{WB+4*ks+3}], v104 offset:{ks*1024+128}")
    ln_stats(g, XR, 28, [8, 16, 32], 96)
    g("s_waitcnt vmcnt(2)")
    ln_apply(g, XA, 16, 96)
    g("s_waitcnt lgkmcnt(0)")
    for ks in range(4):
        c = "0" if ks == 0 else vr(120)
        g(f"v_mfma_f32_16x16x32_bf16 {vr(120)}, {vr(WB+4*ks)}, {vr(XA+4*ks)}, {c}")
    g(f"""v_lshlrev_b32 v{V_T4}, 7, v{V_G}
          v_lshl_add_u32 v{V_T4}, v{V_N}, 4, v{V_T4}
          s_mov_b32 s{S_EX}, 0x00ff00ff
          s_mov_b32 s{S_EX+1}, 0x00ff00ff
          s_cmp_eq_u32 s{S_WAVE}, 0
          s_cbranch_scc1 L_w0
          s_lshl_b32 s{S_A}, s{S_WAVE}, 9
          s_add_u32 s{S_A}, s{S_A}, {L_QP-512}
          v_add_u32 v{V_T4}, s{S_A}, v{V_T4}
          s_mov_b64 exec, s[{S_EX}:{S_EX+1}]
          s_nop 1
          ds_write_b128 v{V_T4}, {vr(120)}
          s_mov_b64 exec, -1
          s_waitcnt lgkmcnt(0)""")
    flag_add(g, 0)
    g.stamp(1)
    g("s_waitcnt vmcnt(0)")
    flag_add(g, 4)
    g("s_branch L_pf")
    g.label("L_w0")
    g("s_setprio 3")
    g(f"v_add_u32 v{V_T4}, {L_QP}, v{V_T4}")
    wait_flag(g, "c", 0, 3)
    for w in range(3):
        g(f"ds_read_b128 {vr(16+4*w)}, v{V_T4} offset:{w*512}")
    g(f"""v_lshlrev_b32 v{V_T4}, 5, v{V_N}
          v_lshl_add_u32 v{V_T4}, v{V_G}, 3, v{V_T4}
          v_add_u32 v{V_T4}, {L_QP+1536}, v{V_T4}
          v_and_b32 v{V_T2}, 15, v{V_LANE}
          v_lshlrev_b32 v{V_T2}, 4, v{V_T2}
          v_add_u32 v{V_T2}, {L_QP+1536}, v{V_T2}
          v_bfe_u32 v{V_T3}, v{V_LANE}, 1, 3
          v_lshlrev_b32 v{V_T3}, 13, v{V_T3}
          v_lshl_add_u32 v{V_T3}, v{V_G}, 16, v{V_T3}
          v_and_b32 v{V_T5}, 1, v{V_LANE}
          v_lshl_add_u32 v{V_T3}, v{V_T5}, 4, v{V_T3}
          s_lshl_b32 s{S_A}, s{S_HKV}, 10
          s_lshl_b32 s{S_Bx}, s{S_R}, 5
          s_add_u32 s{S_A}, s{S_A}, s{S_Bx}
          s_waitcnt lgkmcnt(0)""")
    for w in range(3):
        g(f"v_pk_add_f32 v[120:121], v[120:121], v[{16+4*w}:{17+4*w}]")
        g(f"v_pk_add_f32 v[122:123], v[122:123], v[{18+4*w}:{19+4*w}]")
    g(f"""v_cvt_pk_bf16_f32 v16, v120, v121
          v_cvt_pk_bf16_f32 v17, v122, v123
          s_mov_b64 exec, s[{S_EX}:{S_EX+1}]
          ds_write_b64 v{V_T4}, v[16:17]
          s_mov_b64 exec, -1
          s_waitcnt lgkmcnt(0)
          ds_read_b128 v[20:23], v{V_T2}
          s_waitcnt lgkmcnt(0)
          buffer_store_dwordx4 v[20:23], v{V_T3}, {S4(S_WS)}, s{S_A} offen sc1""")
    g("s_setprio 0")
    g.stamp(1)
    wait_flag(g, "d", 4, 3)
    g(f"""s_lshl_b32 s{S_A}, s{S_HKV}, 5
          s_add_u32 s{S_Cx}, s{P_DBG}, s{S_A}
          s_addc_u32 s{S_Dx}, s{P_DBG+1}, 0
          s_mov_b32 s{S_A}, 1
          s_waitcnt vmcnt(0)
          s_atomic_add s{S_A}, s[{S_Cx}:{S_Dx}], 0 glc
          s_lshl_b32 s{S_Bx}, s{S_HKV}, 13
          s_add_u32 s{S_Bx}, s{S_Bx}, {WS_IN+6144:#x}
          s_add_u32 s{S_Cx}, s{P_WS}, s{S_Bx}
          s_addc_u32 s{S_Dx}, s{P_WS+1}, 0
          s_waitcnt lgkmcnt(0)""")
    g.stamp(2)
    g(f"""s_and_b32 s{S_A}, s{S_A}, 31
          s_cmp_eq_u32 s{S_A}, 31
          s_cbranch_scc0 L_pf
          s_mov_b32 s{S_A}, 1""")
    for half in range(2):
        for r in range(16):
            g(f"s_atomic_add s{S_A}, s[{S_Cx}:{S_Dx}], {r*65536:#x}")
        if half == 0:
            g(f"""s_add_u32 s{S_Cx}, s{S_Cx}, 0x100000
                  s_addc_u32 s{S_Dx}, s{S_Dx}, 0""")
    g.label("L_pf")
    prefetch(g)
    lds_prefetch(g)
    g.label("L_qwait")
    for e in range(8):
        m16 = 3 << (2*e); m32 = m16 | (m16 << 16)
        g(f"s_mov_b32 s{S_MASK+2*e}, {m32:#x}")
        g(f"s_mov_b32 s{S_MASK+2*e+1}, {m32:#x}")
    g(f"""v_lshrrev_b32 v{V_T2}, 7, v0
          s_lshl_b32 s{S_A}, s{S_B}, 5
          s_add_u32 s{S_A}, s{S_A}, s{S_HKV}
          v_lshlrev_b32 v{V_T2}, 3, v{V_T2}
          v_add_u32 v{V_T2}, s{S_A}, v{V_T2}
          v_lshlrev_b32 v{V_IN1}, 13, v{V_T2}
          v_and_b32 v{V_T3}, 127, v0
          v_lshl_add_u32 v{V_IN1}, v{V_T3}, 2, v{V_IN1}
          s_lshl_b32 s{S_A}, s{S_S}, 9
          s_add_u32 s{S_A}, s{S_A}, {WS_IN:#x}
          v_add_u32 v{V_IN1}, s{S_A}, v{V_IN1}""")
    g(f"""v_lshlrev_b32 v{V_T2}, 3, v{V_G}
          v_add_u32 v{V_T2}, s{S_WAVE}, v{V_T2}
          v_lshl_add_u32 v{V_T2}, v{V_T2}, 4, v{V_N}
          v_mul_u32_u24 v{V_T3}, 4682, v{V_T2}
          v_lshrrev_b32 v{V_T3}, 16, v{V_T3}
          v_mul_u32_u24 v{V_T4}, 14, v{V_T3}
          v_sub_u32 v{V_T4}, v{V_T2}, v{V_T4}
          v_and_b32 v{V_T5}, 3, v{V_T3}
          v_lshlrev_b32 v{V_T5}, 3, v{V_T5}
          v_lshrrev_b32 v{V_T3}, 2, v{V_T3}
          v_add_u32 v{V_T5}, v{V_T5}, v{V_T3}
          s_lshl_b32 s{S_A}, s{S_B}, 5
          v_add_u32 v{V_T5}, s{S_A}, v{V_T5}
          v_lshlrev_b32 v{V_IN2}, 13, v{V_T5}
          v_lshl_add_u32 v{V_IN2}, v{V_T4}, 2, v{V_IN2}
          s_lshl_b32 s{S_A}, s{S_I}, 6
          s_add_u32 s{S_A}, s{S_A}, {WS_IN+4096:#x}
          v_add_u32 v{V_IN2}, s{S_A}, v{V_IN2}
          v_cmp_lt_u32 vcc, 447, v{V_T2}
          v_mov_b32 v{V_T3}, 0x7ffffff0
          s_nop 0
          v_cndmask_b32 v{V_IN2}, v{V_IN2}, v{V_T3}, vcc""")
    for r in range(8):
        g(f"v_mov_b32 v{V_ACC+r}, 0")
    g(f"""v_mov_b32 v{V_M}, 0xf149f2ca
          v_mov_b32 v{V_L}, 0
          v_and_b32 v{V_T4}, 1, v{V_N}
          v_lshlrev_b32 v{V_T4}, 9, v{V_T4}
          v_lshl_add_u32 v{V_T4}, v{V_G}, 4, v{V_T4}
          v_add_u32 v{V_T4}, {L_QIMG}, v{V_T4}
          s_nop 0""")
    wait_flag(g, "q", 12, 4)
    for j in range(8):
        g(f"ds_read_b128 {vr(V_Q+4*j)}, v{V_T4} offset:{j*64}")
    g("s_waitcnt lgkmcnt(0)")
    g.stamp(4)
    g(f"""s_cmp_ge_u32 s{S_WAVE}, 4
          s_cbranch_scc1 L_last
          s_add_u32 s{S_OFF}, s{S_OFF}, {12*16384}""")
    tile_body(g, [56, 56, 56, 56], True)
    g(f"""s_add_u32 s{S_OFF}, s{S_OFF}, {4*16384}
          s_mov_b32 s{S_NEXT}, 12
          s_mov_b32 s{S_NEXT2}, 0
          s_lshl_b32 s{S_A}, s{S_WAVE}, 2
          s_add_u32 s{S_A}, s{S_A}, {L_FLAG+16}
          v_mov_b32 v{V_T0}, s{S_A}
          v_mov_b32 v{V_T1}, 1
          s_waitcnt vmcnt(32)
          s_mov_b64 exec, 1
          ds_write_b32 v{V_T0}, v{V_T1}
          s_mov_b64 exec, -1""")
    if BAL:
        g(f"""s_cmp_eq_u32 s{S_B}, 7
              s_cbranch_scc1 L_nobal
              s_lshl_b32 s{S_A}, s{S_S}, 2
              s_add_u32 s{S_A}, s{S_A}, s{S_WAVE}
              s_cmp_eq_u32 s{S_A}, 3
              s_cselect_b32 s{S_NEXT}, 11, s{S_NEXT}
              s_cmp_eq_u32 s{S_A}, 12
              s_cselect_b32 s{S_NEXT}, 13, s{S_NEXT}
              s_cselect_b32 s{S_NEXT2}, 1, 0""")
        g.label("L_nobal")
    g.label("L_loop")
    if BAL:
        g(f"""s_cmp_eq_u32 s{S_NEXT}, s{S_NEXT2}
              s_cbranch_scc0 L_nosp
              s_sub_u32 s{S_OFF}, s{S_BASE}, {(3*64-63)*16384}""")
        g.label("L_nosp")
    if STAG or WARM:
        g(f"""s_cmp_eq_u32 s{S_WAVE}, 0
              s_cbranch_scc0 L_nopc""")
        flag_add(g, 44)
        g.label("L_nopc")
    if g.prof:
        for val, sl in ((12, 1), (8, 2), (4, 3)):
            g(f"s_cmp_eq_u32 s{S_NEXT}, {val}")
            g(f"s_cbranch_scc0 L_ps{val}")
            g.stamp(sl)
            g.label(f"L_ps{val}")
    tile_body(g, [24, 24, 24, 24], True)
    g(f"""s_add_u32 s{S_OFF}, s{S_OFF}, {4*16384}
          s_sub_u32 s{S_NEXT}, s{S_NEXT}, 1
          s_cmp_gt_u32 s{S_NEXT}, 0
          s_cbranch_scc1 L_loop""")
    g.label("L_last")
    tile_body(g, [24, 16, 8, 0], False)
    g(f"""s_cmp_lt_u32 s{S_WAVE}, 4
          s_cbranch_scc1 L_tail0
          s_cmp_eq_u32 s{S_NEXT}, 257
          s_cbranch_scc1 L_wdma
          s_mov_b32 s{S_NEXT}, 257
          s_lshl_b32 s{S_A}, s{S_WAVE}, 2
          s_add_u32 s{S_A}, s{S_A}, {L_FLAG}
          v_mov_b32 v{V_T0}, s{S_A}""")
    g.label("L_wl")
    g(f"""ds_read_b32 v{V_T1}, v{V_T0}
          s_waitcnt lgkmcnt(0)
          v_cmp_eq_u32 vcc, 0, v{V_T1}""")
    poll_branch(g, "L_wl")
    g(f"""s_sub_u32 s{S_A}, s{S_WAVE}, 4
          s_lshl_b32 s{S_A}, s{S_A}, 15
          v_lshlrev_b32 v{V_T0}, 4, v{V_LANE}
          v_add_u32 v{V_T0}, s{S_A}, v{V_T0}""")
    for u in range(32):
        g(f"ds_read_b128 {vr(128+4*u)}, v{V_T0} offset:{u*1024}")
    g("s_waitcnt lgkmcnt(0)")
    flag_add(g, 32)
    g("s_branch L_last")
    g.label("L_wdma")
    wait_flag(g, "w", 32, 4)
    g("s_setprio 2")
    small_dma(g)
    if STAG:
        g(f"v_mov_b32 v{V_T0}, {L_FLAG}")
        g(f"v_mov_b32 v{V_T2}, s{S_B}")
        g.label("L_wst")
        g(f"""s_sleep 8
              ds_read_b32 v{V_T1}, v{V_T0} offset:44
              s_waitcnt lgkmcnt(0)
              v_cmp_gt_u32 vcc, v{V_T2}, v{V_T1}""")
        poll_branch(g, "L_wst")
    wo_dma(g)
    g(f"s_cmp_eq_u32 s{S_WAVE}, 7")
    g("s_cbranch_scc0 L_nocert")
    srd(g, S_T, P_DBG, 256)
    g(f"v_lshlrev_b32 v{V_T0}, 5, v{V_LANE}")
    g("s_mov_b64 exec, 0xff")
    g.label("L_cert")
    g(f"""buffer_load_dword v{V_T1}, v{V_T0}, {S4(S_T)}, 0 offen sc1
          s_waitcnt vmcnt(0)
          v_cmp_gt_u32 vcc, 32, v{V_T1}""")
    poll_branch(g, "L_cert")
    g("s_mov_b64 exec, -1")
    g.label("L_nocert")
    g("s_waitcnt vmcnt(0)")
    g("s_setprio 0")
    if WARM:
        g(f"""s_cmp_eq_u32 s{S_WAVE}, 6
              s_cbranch_scc0 L_tail0
              v_mov_b32 v{V_T0}, {L_FLAG}""")
        g.label("L_ww")
        g(f"""s_sleep 8
              ds_read_b32 v{V_T1}, v{V_T0} offset:44
              s_waitcnt lgkmcnt(0)
              v_cmp_gt_u32 vcc, {WARM}, v{V_T1}""")
        poll_branch(g, "L_ww")
        g(f"""s_getpc_b64 s[{S_Cx}:{S_Dx}]
              s_mov_b32 s{S_A}, 18""")
        g.label("L_wm")
        for i in range(4):
            g(f"s_load_dwordx16 s[64:79], s[{S_Cx}:{S_Dx}], {i*64}")
        g(f"""s_add_u32 s{S_Cx}, s{S_Cx}, 256
              s_addc_u32 s{S_Dx}, s{S_Dx}, 0
              s_waitcnt lgkmcnt(0)
              s_sub_u32 s{S_A}, s{S_A}, 1
              s_cmp_gt_u32 s{S_A}, 0
              s_cbranch_scc1 L_wm""")
    g.label("L_tail0")
    g.stamp(5)
    tail(g, debug)
    g.label("L_end")
    if g.prof:
        g(f"s_cmp_ge_u32 s{S_WG}, 256")
        g("s_cbranch_scc1 L_end2")
        g("s_waitcnt vmcnt(0)")
        g.stamp(15)
        g("s_mov_b64 exec, 1")
        g(f"s_lshl_b32 s{S_A}, s{S_WG}, 3")
        g(f"s_add_u32 s{S_A}, s{S_A}, s{S_WAVE}")
        g(f"s_lshl_b32 s{S_A}, s{S_A}, 7")
        g(f"s_add_u32 s{S_A}, s{S_A}, {WS_DBG+0x100000:#x}")
        g("v_mov_b32 v1, 0")
        for i, sl in enumerate(STAMP_SLOTS):
            g(f"v_mov_b32 v{16+i}, s{sl}")
            g(f"buffer_store_dword v{16+i}, v1, {S4(S_WS)}, s{S_A} offen offset:{i*4}")
        g.label("L_end2")
    g("s_endpgm")
    return g.L

def tail(g, debug):
    R = 128
    xreduce(g, V_L, V_T0, "v_add_f32", [16, 32])
    g(f"""v_lshlrev_b32 v{V_T0}, 5, v{V_N}
          v_lshl_add_u32 v{V_T0}, v{V_G}, 3, v{V_T0}
          s_lshl_b32 s{S_A}, s{S_WAVE}, 11
          s_add_u32 s{S_A}, s{S_A}, {L_CB}
          v_add_u32 v{V_T0}, s{S_A}, v{V_T0}
          v_add_u32 v{V_T1}, 1024, v{V_T0}""")
    for half in range(2):
        a = V_ACC + 4*half
        g(f"ds_write2_b32 v{V_T0}, v{a}, v{a+2} offset0:{half*128} offset1:{half*128+1}")
        g(f"ds_write2_b32 v{V_T1}, v{a+1}, v{a+3} offset0:{half*128} offset1:{half*128+1}")
    g(f"""s_lshl_b32 s{S_A}, s{S_WAVE}, 4
          s_add_u32 s{S_A}, s{S_A}, {L_STAT}
          v_lshlrev_b32 v{V_T2}, 3, v{V_LANE}
          v_add_u32 v{V_T2}, s{S_A}, v{V_T2}
          s_mov_b64 exec, 3
          ds_write_b64 v{V_T2}, v[{V_M}:{V_L}]
          s_mov_b64 exec, -1""")
    g(f"""v_lshlrev_b32 v{V_T0}, 2, v0
          v_add_u32 v{V_T0}, {L_CB}, v{V_T0}
          v_lshrrev_b32 v{V_T1}, 8, v0
          v_lshlrev_b32 v{V_T1}, 3, v{V_T1}
          v_add_u32 v{V_T1}, {L_STAT}, v{V_T1}
          v_bfe_u32 v{V_T2}, v{V_LANE}, 2, 2
          v_lshrrev_b32 v{V_T3}, 1, v{V_T2}
          v_and_b32 v{V_T4}, 1, v{V_G}
          v_lshlrev_b32 v{V_T4}, 1, v{V_T4}
          v_xor_b32 v{V_T3}, v{V_T3}, v{V_T4}
          s_and_b32 s{S_A}, s{S_WAVE}, 3
          v_xor_b32 v{V_T3}, s{S_A}, v{V_T3}
          v_mul_u32_u24 v{V_T4}, 7168, v{V_G}
          v_lshl_add_u32 v{V_T4}, v{V_T2}, 7, v{V_T4}
          v_and_b32 v{V_T2}, 3, v{V_LANE}
          v_lshl_add_u32 v{V_T4}, v{V_T2}, 3, v{V_T4}
          s_lshr_b32 s{S_A}, s{S_WAVE}, 2
          s_lshl_b32 s{S_A}, s{S_A}, 10
          v_add_u32 v{V_T4}, s{S_A}, v{V_T4}
          v_lshl_add_u32 v{V_A}, v{V_T3}, 5, v{V_T4}
          v_xor_b32 v{V_T3}, 2, v{V_T3}
          v_lshl_add_u32 v{V_A+1}, v{V_T3}, 5, v{V_T4}
          v_add_u32 v{V_A+1}, 512, v{V_A+1}
          v_add_u32 v{V_A+2}, 57344, v{V_A}
          v_add_u32 v{V_A+3}, 57344, v{V_A+1}
          s_waitcnt lgkmcnt(0)
          s_barrier""")
    g.stamp(6)
    for w in range(8):
        g(f"ds_read_b64 v[{16+2*w}:{17+2*w}], v{V_T1} offset:{w*16}")
    for w in range(8):
        g(f"ds_read_b32 v{32+w}, v{V_T0} offset:{w*2048}")
    g("s_waitcnt lgkmcnt(8)")
    g(f"""v_max3_f32 v{V_T0}, v16, v18, v20
          v_max3_f32 v{V_T1}, v22, v24, v26
          v_max3_f32 v{V_T0}, v{V_T0}, v28, v30
          v_max_f32 v{V_T0}, v{V_T0}, v{V_T1}""")
    for w in range(8): g(f"v_sub_f32 v{16+2*w}, v{16+2*w}, v{V_T0}")
    for w in range(8): g(f"v_mul_f32 v{16+2*w}, s{S_C}, v{16+2*w}")
    for w in range(8): g(f"v_exp_f32 v{16+2*w}, v{16+2*w}")
    g("s_waitcnt lgkmcnt(0)")
    g(f"""v_mul_f32 v{V_T1}, v16, v17
          v_mul_f32 v{V_T2}, v16, v32""")
    for w in range(1, 8):
        g(f"v_fma_f32 v{V_T1}, v{16+2*w}, v{17+2*w}, v{V_T1}")
        g(f"v_fma_f32 v{V_T2}, v{16+2*w}, v{32+w}, v{V_T2}")
    g(f"""v_rcp_f32 v{V_T3}, v{V_T1}
          v_log_f32 v{V_T4}, v{V_T1}
          s_mul_i32 s{S_A}, s{S_S}, 508
          s_sub_u32 s{S_A}, 2048, s{S_A}
          v_mul_f32 v40, v{V_T2}, v{V_T3}
          v_fma_f32 v42, v{V_T0}, s{S_C}, v{V_T4}""")
    canon(g, 40); canon(g, 42)
    g(f"""buffer_store_dword v40, v{V_IN1}, {S4(S_WS)}, 0 offen sc1
          v_and_b32 v{V_T1}, 127, v0
          v_cmp_eq_u32 vcc, 0, v{V_T1}
          s_and_saveexec_b64 s[{S_EX}:{S_EX+1}], vcc
          s_cbranch_execz L_t1s
          buffer_store_dword v42, v{V_IN1}, {S4(S_WS)}, s{S_A} offen sc1""")
    g.label("L_t1s")
    g(f"s_mov_b64 exec, s[{S_EX}:{S_EX+1}]")
    for q in range(4):
        for ks in range(4):
            a1, a2 = (V_A, V_A+1) if ks < 2 else (V_A+2, V_A+3)
            off = (ks & 1) * 28672 + q * 2048
            r = R + (q*4 + ks) * 4
            g(f"ds_read_b64_tr_b16 v[{r}:{r+1}], v{a1} offset:{off}")
            g(f"ds_read_b64_tr_b16 v[{r+2}:{r+3}], v{a2} offset:{off}")
    g.stamp(7)
    g(f"""s_lshl_b32 s{S_Cx}, s{S_WG}, 13
          s_add_u32 s{S_Cx}, s{S_Cx}, {WS_IN:#x}
          s_cmp_ge_u32 s{S_WAVE}, 2
          s_cbranch_scc1 L_t2b
          v_lshlrev_b32 v{V_T0}, 2, v0
          v_mov_b32 v{V_T1}, 2048""")
    g.label("L_p1")
    for s in range(4):
        g(f"buffer_load_dword v{16+s}, v{V_T0}, {S4(S_WS)}, s{S_Cx} offen offset:{s*512} sc1")
    g(f"""buffer_load_dwordx4 v[24:27], v{V_T1}, {S4(S_WS)}, s{S_Cx} offen sc1
          s_waitcnt vmcnt(0)
          v_max3_u32 v{V_T2}, v16, v17, v18
          v_max3_u32 v{V_T3}, v19, v24, v25
          v_max3_u32 v{V_T2}, v{V_T2}, v26, v27
          v_max_u32 v{V_T2}, v{V_T2}, v{V_T3}
          v_cmp_eq_u32 vcc, -1, v{V_T2}""")
    poll_branch(g, "L_p1")
    g(f"""v_max3_f32 v{V_T2}, v24, v25, v26
          v_max_f32 v{V_T2}, v{V_T2}, v27
          v_sub_f32 v24, v24, v{V_T2}
          v_sub_f32 v25, v25, v{V_T2}
          v_sub_f32 v26, v26, v{V_T2}
          v_sub_f32 v27, v27, v{V_T2}
          v_exp_f32 v24, v24
          v_exp_f32 v25, v25
          v_exp_f32 v26, v26
          v_exp_f32 v27, v27
          v_lshlrev_b32 v{V_T0}, 1, v0
          v_add_f32 v{V_T2}, v24, v25
          v_add_f32 v{V_T3}, v26, v27
          v_add_f32 v{V_T2}, v{V_T2}, v{V_T3}
          v_rcp_f32 v{V_T2}, v{V_T2}
          v_mul_f32 v{V_T3}, v24, v16
          v_fma_f32 v{V_T3}, v25, v17, v{V_T3}
          v_fma_f32 v{V_T3}, v26, v18, v{V_T3}
          v_fma_f32 v{V_T3}, v27, v19, v{V_T3}
          v_mul_f32 v{V_T3}, v{V_T3}, v{V_T2}
          v_cvt_pk_bf16_f32 v{V_T3}, v{V_T3}, v{V_T3}
          v_add_u32 v{V_T1}, {L_OF}, v{V_T0}
          ds_write_b16 v{V_T1}, v{V_T3}""")
    if debug & 1:
        g(f"""s_lshl_b32 s{S_A}, s{S_WG}, 8
              s_add_u32 s{S_A}, s{S_A}, {WS_DBG:#x}
              buffer_store_short v{V_T3}, v{V_T0}, {S4(S_WS)}, s{S_A} offen""")
    g.label("L_t2b")
    g(f"""v_lshlrev_b32 v{V_T0}, 4, v{V_G}
          v_add_u32 v{V_T0}, {L_OF}, v{V_T0}
          v_cmp_eq_u32 vcc, 1, v{V_G}
          v_cmp_eq_u32 s[{S_A}:{S_A+1}], 2, v{V_G}
          v_cmp_eq_u32 s[{S_EX}:{S_EX+1}], 3, v{V_G}
          s_waitcnt lgkmcnt(0)
          s_barrier""")
    g.stamp(8)
    for ks in range(4):
        g(f"ds_read_b128 {vr(16+4*ks)}, v{V_T0} offset:{ks*64}")
    g(f"v_lshlrev_b32 v{V_T0}, 2, v0")
    g(f"v_add_u32 v{V_T0}, 4096, v{V_T0}")
    for ks in range(4):
        g(f"s_waitcnt lgkmcnt({3-ks})")
        for q in range(4):
            c = "0" if ks == 0 else vr(32+4*q)
            g(f"v_mfma_f32_16x16x32_bf16 {vr(32+4*q)}, {vr(16+4*ks)}, {vr(R+(q*4+ks)*4)}, {c}")
    g.nop(8)
    g(f"""v_cndmask_b32 v48, v32, v36, vcc
          v_cndmask_b32 v48, v48, v40, s[{S_A}:{S_A+1}]
          v_cndmask_b32 v48, v48, v44, s[{S_EX}:{S_EX+1}]""")
    canon(g, 48)
    g(f"buffer_store_dword v48, v{V_IN2}, {S4(S_WS)}, 0 offen sc1")
    g.stamp(9)
    g(f"""v_cmp_gt_u32 s[{S_A}:{S_A+1}], 14, v{V_N}
          s_lshl_b32 s{S_Dx}, s{S_WAVE}, 6
          s_add_u32 s{S_Dx}, s{S_Dx}, {L_P2}
          v_lshl_add_u32 v{V_T1}, v{V_N}, 2, s{S_Dx}""")
    g.label("L_p2")
    g(f"""buffer_load_dword v16, v{V_T0}, {S4(S_WS)}, s{S_Cx} offen sc1
          s_waitcnt vmcnt(0)
          v_cmp_eq_u32 vcc, -1, v16
          s_and_b64 vcc, vcc, s[{S_A}:{S_A+1}]""")
    poll_branch(g, "L_p2", "scc0")
    xreduce(g, 16, 18, "v_add_f32", [16, 32])
    g(f"""s_mov_b64 exec, 0xffff
          ds_write_b32 v{V_T1}, v16
          s_mov_b64 exec, -1""")
    srd(g, S_T, P_X, 7168)
    g(f"""s_mul_i32 s{S_A}, s{S_B}, 896
          s_mul_i32 s{S_Bx}, s{S_I}, 28
          s_add_u32 s{S_A}, s{S_A}, s{S_Bx}
          v_lshlrev_b32 v{V_T5}, 1, v{V_N}
          v_lshlrev_b32 v{V_T0}, 4, v0
          v_and_b32 v{V_T1}, 1, v0
          v_cmp_eq_u32 s[{S_EX}:{S_EX+1}], 1, v{V_T1}
          v_lshrrev_b32 v{V_T2}, 6, v0
          v_mul_u32_u24 v{V_T2}, 896, v{V_T2}
          v_bfe_u32 v{V_T3}, v0, 1, 3
          v_lshlrev_b32 v{V_T3}, 2, v{V_T3}
          v_bfe_u32 v{V_T4}, v0, 4, 2
          v_add_u32 v{V_T3}, v{V_T3}, v{V_T4}
          v_mul_u32_u24 v{V_T3}, 28, v{V_T3}
          v_add_u32 v{V_T2}, v{V_T2}, v{V_T3}
          v_lshl_add_u32 v{V_T2}, v{V_T1}, 4, v{V_T2}
          v_add_u32 v{V_T2}, {L_HIMG}, v{V_T2}
          s_mov_b32 s{S_Cx}, {WS_H:#x}
          s_cmp_eq_u32 s{S_WAVE}, 0
          s_cbranch_scc0 L_t4b
          buffer_load_ushort v40, v{V_T5}, {S4(S_T)}, s{S_A} offen""")
    g.label("L_t4b")
    g(f"""s_waitcnt lgkmcnt(0)
          s_barrier
          s_cmp_eq_u32 s{S_WAVE}, 0
          s_cbranch_scc0 L_t5
          v_lshlrev_b32 v{V_T3}, 2, v{V_N}
          v_add_u32 v{V_T3}, {L_P2}, v{V_T3}""")
    for w in range(8):
        g(f"ds_read_b32 v{16+w}, v{V_T3} offset:{w*64}")
    g(f"""s_lshl_b32 s{S_A}, s{S_WG}, 5
          s_add_u32 s{S_A}, s{S_A}, {WS_H:#x}
          s_waitcnt lgkmcnt(0)
          v_add_f32 v16, v16, v17
          v_add_f32 v18, v18, v19
          v_add_f32 v20, v20, v21
          v_add_f32 v22, v22, v23
          v_add_f32 v16, v16, v18
          v_add_f32 v20, v20, v22
          v_add_f32 v16, v16, v20""")
    bf16_round(g, 16, 16)
    g(f"""s_waitcnt vmcnt(0)
          v_lshlrev_b32 v40, 16, v40
          v_add_f32 v16, v16, v40
          s_nop 1
          v_mov_b32_dpp v17, v16 quad_perm:[1,1,3,3] row_mask:0xf bank_mask:0xf
          v_cvt_pk_bf16_f32 v16, v16, v17""")
    canon(g, 16)
    g(f"""s_mov_b64 exec, 0x1555
          buffer_store_dword v16, v{V_T5}, {S4(S_WS)}, s{S_A} offen sc1
          s_mov_b64 exec, -1""")
    g.label("L_t5")
    g.stamp(10)
    g(f"""s_min_u32 s{S_A}, s{S_J}, s{S_CS}
          s_cmp_ge_u32 s{S_A}, 112
          s_cbranch_scc1 L_end""")
    g(f"""v_bfe_u32 v{V_T3}, v{V_LANE}, 2, 2
          v_and_b32 v{V_T4}, 3, v{V_LANE}
          s_cmp_ge_u32 s{S_J}, 112
          s_cbranch_scc1 L_plwd
          v_lshlrev_b32 v{V_T5}, 8, v{V_G}
          v_lshl_add_u32 v{V_T5}, v{V_T3}, 5, v{V_T5}
          v_lshl_add_u32 v{V_T5}, v{V_T4}, 3, v{V_T5}
          s_lshl_b32 s{S_A}, s{S_WAVE}, 11
          s_add_u32 s{S_A}, s{S_A}, {L_WD}
          v_add_u32 v{V_T5}, s{S_A}, v{V_T5}""")
    for m in range(2):
        for ks in range(2):
            r = R + m*8 + ks*4
            g(f"ds_read_b64_tr_b16 v[{r}:{r+1}], v{V_T5} offset:{m*14336+ks*1024}")
            g(f"ds_read_b64_tr_b16 v[{r+2}:{r+3}], v{V_T5} offset:{m*14336+ks*1024+128}")
    g("s_branch L_pldone")
    g.label("L_plwd")
    g(f"""v_lshlrev_b32 v{V_T5}, 7, v{V_G}
          v_lshl_add_u32 v{V_T5}, v{V_T3}, 4, v{V_T5}
          v_lshl_add_u32 v{V_T5}, v{V_T4}, 3, v{V_T5}
          s_mul_i32 s{S_A}, s{S_WAVE}, {7*512}
          s_add_u32 s{S_A}, s{S_A}, {L_WD}
          v_add_u32 v{V_T5}, s{S_A}, v{V_T5}""")
    for ks in range(7):
        g(f"ds_read_b64_tr_b16 v[{R+4*ks}:{R+4*ks+1}], v{V_T5} offset:{ks*512}")
        g(f"ds_read_b64_tr_b16 v[{R+4*ks+2}:{R+4*ks+3}], v{V_T5} offset:{ks*512+64}")
    g.label("L_pldone")
    g.label("L_p3")
    g(f"""buffer_load_dwordx4 v[16:19], v{V_T0}, {S4(S_WS)}, s{S_Cx} offen sc1
          s_waitcnt vmcnt(0)
          v_cndmask_b32 v20, v19, 0, s[{S_EX}:{S_EX+1}]
          v_max3_u32 v{V_T3}, v16, v17, v18
          v_max_u32 v{V_T3}, v{V_T3}, v20
          v_cmp_eq_u32 vcc, -1, v{V_T3}""")
    poll_branch(g, "L_p3")
    g(f"""ds_write2_b32 v{V_T2}, v16, v17 offset0:0 offset1:1
          ds_write_b32 v{V_T2}, v18 offset:8
          s_andn2_b64 exec, exec, s[{S_EX}:{S_EX+1}]
          ds_write_b32 v{V_T2}, v19 offset:12
          s_mov_b64 exec, -1
          s_mul_i32 s{S_A}, s{S_WAVE}, 896
          v_lshlrev_b32 v{V_M}, 4, v{V_LANE}
          v_add_u32 v{V_M}, s{S_A}, v{V_M}
          v_add_u32 v{V_L}, {L_HIMG}, v{V_M}
          v_mov_b32 v16, 0
          v_mov_b32 v17, 0
          v_mov_b32 v18, 0
          v_mov_b32 v19, 0
          s_mov_b32 s{S_EX}, -1
          s_mov_b32 s{S_EX+1}, 0x00ffffff
          s_waitcnt lgkmcnt(0)
          s_barrier""")
    g.stamp(11)
    g(f"s_cmp_ge_u32 s{S_J}, 112")
    g("s_cbranch_scc1 L_t8")
    g(f"""s_mov_b64 exec, s[{S_EX}:{S_EX+1}]
          ds_read_b128 v[16:19], v{V_L}
          s_mov_b64 exec, -1
          s_waitcnt lgkmcnt(0)""")
    for i in range(4):
        g(f"v_lshlrev_b32 v{24+2*i}, 16, v{16+i}")
        g(f"v_and_b32 v{25+2*i}, s{S_HIM}, v{16+i}")
    g(f"""v_pk_add_f32 v[{V_T0}:{V_T1}], v[24:25], v[26:27]
          v_pk_add_f32 v[{V_T2}:{V_T3}], v[28:29], v[30:31]
          v_pk_add_f32 v[{V_T0}:{V_T1}], v[{V_T0}:{V_T1}], v[{V_T2}:{V_T3}]
          v_add_f32 v{V_T0}, v{V_T0}, v{V_T1}""")
    xreduce(g, V_T0, V_T1, "v_add_f32", [1, 2, 4, 8, 16, 32])
    g(f"""v_mul_f32 v{V_T4}, {f32bits(1.0/448.0):#x}, v{V_T0}
          v_mul_f32 v{V_T5}, {f32bits(1.0/448.0):#x}, v{V_T0}""")
    for i in range(4):
        g(f"v_pk_add_f32 v[{24+2*i}:{25+2*i}], v[{24+2*i}:{25+2*i}], v[{V_T4}:{V_T5}] neg_lo:[0,1] neg_hi:[0,1]")
    g(f"""v_pk_mul_f32 v[{V_T0}:{V_T1}], v[24:25], v[24:25]
          v_pk_mul_f32 v[{V_T2}:{V_T3}], v[26:27], v[26:27]
          v_pk_fma_f32 v[{V_T0}:{V_T1}], v[28:29], v[28:29], v[{V_T0}:{V_T1}]
          v_pk_fma_f32 v[{V_T2}:{V_T3}], v[30:31], v[30:31], v[{V_T2}:{V_T3}]
          s_not_b64 exec, s[{S_EX}:{S_EX+1}]
          v_mov_b32 v{V_T0}, 0
          v_mov_b32 v{V_T1}, 0
          v_mov_b32 v{V_T2}, 0
          v_mov_b32 v{V_T3}, 0
          s_mov_b64 exec, -1""")
    ln_finish(g, [1, 2, 4, 8, 16, 32])
    ln_apply(g, 16, 4, 32)
    g(f"""v_add_u32 v{V_L}, {L_HN}, v{V_M}
          s_mov_b64 exec, s[{S_EX}:{S_EX+1}]
          ds_write_b128 v{V_L}, v[16:19]
          s_mov_b64 exec, -1
          v_and_b32 v{V_T0}, 7, v{V_LANE}
          v_mul_u32_u24 v{V_T0}, 896, v{V_T0}
          v_lshl_add_u32 v{V_T0}, v{V_G}, 4, v{V_T0}
          s_lshl_b32 s{S_A}, s{S_WAVE}, 7
          s_add_u32 s{S_A}, s{S_A}, {L_HN}
          v_add_u32 v{V_T0}, s{S_A}, v{V_T0}
          v_lshlrev_b32 v{V_T1}, 7, v{V_G}
          v_lshl_add_u32 v{V_T1}, v{V_N}, 4, v{V_T1}
          s_lshl_b32 s{S_A}, s{S_WAVE}, 10
          s_add_u32 s{S_A}, s{S_A}, {L_WO}
          v_add_u32 v{V_T5}, s{S_A}, v{V_T1}
          s_mov_b32 s{S_EX}, 0x00ff00ff
          s_mov_b32 s{S_EX+1}, 0x00ff00ff
          s_waitcnt lgkmcnt(0)
          s_barrier""")
    g.stamp(12)
    g(f"s_cmp_eq_u32 s{S_WAVE}, 7")
    g("s_cbranch_scc1 L_t7b")
    g(f"""ds_read_b128 v[16:19], v{V_T0}
          ds_read_b128 v[20:23], v{V_T0} offset:64
          s_waitcnt lgkmcnt(1)
          v_mfma_f32_16x16x32_bf16 v[24:27], {vr(R)}, v[16:19], 0
          v_mfma_f32_16x16x32_bf16 v[28:31], {vr(R+8)}, v[16:19], 0
          s_waitcnt lgkmcnt(0)
          v_mfma_f32_16x16x32_bf16 v[24:27], {vr(R+4)}, v[20:23], v[24:27]
          v_mfma_f32_16x16x32_bf16 v[28:31], {vr(R+12)}, v[20:23], v[28:31]
          s_mov_b64 exec, s[{S_EX}:{S_EX+1}]""")
    g.nop(8)
    g(f"""ds_write_b128 v{V_T5}, v[24:27]
          ds_write_b128 v{V_T5}, v[28:31] offset:512
          s_mov_b64 exec, -1""")
    g.label("L_t7b")
    g(f"""s_waitcnt lgkmcnt(0)
          s_barrier
          s_cmp_eq_u32 s{S_WAVE}, 7
          s_cbranch_scc0 L_end
          v_add_u32 v{V_T0}, {L_WO}, v{V_T1}""")
    for w in range(7):
        g(f"ds_read_b128 {vr(16+8*w)}, v{V_T0} offset:{w*1024}")
        g(f"ds_read_b128 {vr(20+8*w)}, v{V_T0} offset:{w*1024+512}")
    g(f"""s_lshl_b32 s{S_A}, s{S_J}, 8
          s_add_u32 s{S_A}, s{S_A}, {WS_HH:#x}
          v_lshlrev_b32 v{V_T0}, 5, v{V_N}
          v_lshl_add_u32 v{V_T0}, v{V_G}, 3, v{V_T0}
          s_waitcnt lgkmcnt(0)""")
    for w in range(1, 7):
        for q in range(4):
            g(f"v_pk_add_f32 v[{16+2*q}:{17+2*q}], v[{16+2*q}:{17+2*q}], v[{16+8*w+2*q}:{17+8*w+2*q}]")
    for r in range(8):
        bf16_round(g, 16+r, 16+r)
    g(f"""v_pk_mul_f32 v[16:17], v[16:17], v[20:21]
          v_pk_mul_f32 v[18:19], v[18:19], v[22:23]
          v_cvt_pk_bf16_f32 v16, v16, v17
          v_cvt_pk_bf16_f32 v17, v18, v19""")
    canon(g, 16); canon(g, 17)
    g(f"""s_mov_b64 exec, s[{S_EX}:{S_EX+1}]
          buffer_store_dwordx2 v[16:17], v{V_T0}, {S4(S_WS)}, s{S_A} offen sc1
          s_mov_b64 exec, -1""")
    g.stamp(13)
    g("s_branch L_end")
    g.label("L_t8")
    g(f"""v_and_b32 v{V_T0}, 7, v{V_LANE}
          v_lshlrev_b32 v{V_T0}, 5, v{V_T0}
          v_lshrrev_b32 v{V_T1}, 1, v{V_G}
          v_lshl_add_u32 v{V_T0}, v{V_T1}, 8, v{V_T0}
          v_and_b32 v{V_T1}, 1, v{V_G}
          v_lshl_add_u32 v{V_T0}, v{V_T1}, 4, v{V_T0}
          s_mul_i32 s{S_A}, s{S_WAVE}, {7*512}
          s_add_u32 s{S_A}, s{S_A}, {WS_HH:#x}
          v_lshlrev_b32 v{V_T1}, 4, v{V_LANE}
          s_lshl_b32 s{S_Bx}, s{S_WAVE}, 9
          s_add_u32 s{S_Bx}, s{S_Bx}, {L_WO}
          v_add_u32 v{V_T1}, s{S_Bx}, v{V_T1}""")
    g.label("L_p4")
    for ks in range(7):
        g(f"buffer_load_dwordx4 {vr(16+4*ks)}, v{V_T0}, {S4(S_WS)}, s{S_A} offen offset:{ks*512} sc1")
    g("s_waitcnt vmcnt(0)")
    g(f"v_max3_u32 v{V_T2}, v16, v17, v18")
    for i in range(19, 44, 2):
        if i + 1 <= 43:
            g(f"v_max3_u32 v{V_T2}, v{V_T2}, v{i}, v{i+1}")
        else:
            g(f"v_max_u32 v{V_T2}, v{V_T2}, v{i}")
    g(f"v_cmp_eq_u32 vcc, -1, v{V_T2}")
    poll_branch(g, "L_p4")
    g.stamp(14)
    for ks in range(7):
        c = "0" if ks == 0 else "v[48:51]"
        g(f"v_mfma_f32_16x16x32_bf16 v[48:51], {vr(16+4*ks)}, {vr(R+4*ks)}, {c}")
    g("s_mov_b32 exec_hi, 0")
    g.nop(8)
    g(f"""ds_write_b128 v{V_T1}, v[48:51]
          s_mov_b64 exec, -1
          v_lshlrev_b32 v{V_T0}, 4, v{V_LANE}
          v_mul_u32_u24 v{V_T1}, {4*896}, v{V_G}
          v_lshl_add_u32 v{V_T1}, v{V_N}, 1, v{V_T1}
          s_lshl_b32 s{S_A}, s{S_CS}, 4
          v_add_u32 v{V_T1}, s{S_A}, v{V_T1}
          v_add_u32 v{V_T2}, {L_HIMG}, v{V_T1}
          s_waitcnt lgkmcnt(0)
          s_barrier
          s_cmp_eq_u32 s{S_WAVE}, 0
          s_cbranch_scc0 L_end""")
    for w in range(8):
        g(f"ds_read_b128 {vr(16+4*w)}, v{V_T0} offset:{L_WO+w*512}")
    g("s_mov_b64 exec, 0x00ff00ff")
    for r in range(4):
        g(f"ds_read_u16 v{48+r}, v{V_T2} offset:{r*896}")
    srd(g, S_T, P_OUT, 7168)
    g("s_waitcnt lgkmcnt(0)")
    for w in range(1, 8):
        g(f"v_pk_add_f32 v[16:17], v[16:17], v[{16+4*w}:{17+4*w}]")
        g(f"v_pk_add_f32 v[18:19], v[18:19], v[{18+4*w}:{19+4*w}]")
    for r in range(4):
        bf16_round(g, 16+r, 16+r)
        g(f"v_lshlrev_b32 v{48+r}, 16, v{48+r}")
        g(f"v_add_f32 v{16+r}, v{16+r}, v{48+r}")
        g(f"v_cvt_pk_bf16_f32 v{16+r}, v{16+r}, v{16+r}")
        g(f"buffer_store_short v{16+r}, v{V_T1}, {S4(S_T)}, 0 offen offset:{r*896}")

def emit(path, kname, debug=0):
    hdr = open("cdna_kernels/" + NAME + ".s.ref").read().split("\n")
    out = []
    for line in hdr:
        if line.startswith("; @launch"):
            out.append(f"; @launch grid=(256,1,1) block=(512,1,1) lds={LDS_BYTES}")
            break
        out.append(line)
    out.append('.amdgcn_target "amdgcn-amd-amdhsa--gfx950"')
    out.append(".text")
    out.append(f".globl {kname}")
    out.append(".p2align 8")
    out.append(f".type {kname},@function")
    out.append(f"{kname}:")
    out += gen(debug)
    out.append('.section .rodata,"a"')
    out.append(".p2align 6")
    out.append(f".amdhsa_kernel {kname}")
    out.append("""  .amdhsa_next_free_vgpr 256
  .amdhsa_next_free_sgpr 102
  .amdhsa_accum_offset 256
  .amdhsa_group_segment_fixed_size 0
  .amdhsa_kernarg_size 96
  .amdhsa_user_sgpr_count 2
  .amdhsa_user_sgpr_kernarg_segment_ptr 1
  .amdhsa_system_sgpr_workgroup_id_x 1
  .amdhsa_float_denorm_mode_32 3
.end_amdhsa_kernel""")
    open(path, "w").write("\n".join(out) + "\n")

if __name__ == "__main__":
    debug = int(sys.argv[1]) if len(sys.argv) > 1 else 0
    path = sys.argv[2] if len(sys.argv) > 2 else "cdna_kernels/" + NAME + ".s"
    emit(path, NAME + "_kernel", debug)
```

```python
import sys, struct, os
STATIC = int(os.environ.get('STATIC', '1'))
NOW = int(os.environ.get('NOW', '0'))

NAME = "sequential_preLN__gqa_block_cached__glu_gated_bilinear__decode"
def f32bits(x): return struct.unpack("<I", struct.pack("<f", x))[0]

WS_Q   = 0x000000
WS_IN  = 0x100000
WS_H   = 0x400000
WS_HH  = 0x410000
WS_TC  = 0x420000
WS_DBG = 0x1000000
WS_BYTES = 0x2000000
L_WO  = 0
L_WD  = 114688
L_SCR = 143360
L_CB  = L_SCR
L_HIMG = L_SCR
L_HN  = L_SCR + 7168
L_QP  = L_SCR + 16384
L_PART = L_SCR + 14336
L_STAT = L_SCR + 16384
L_OF  = L_SCR + 16512
L_P2  = L_SCR + 16768
L_QIMG = L_SCR + 18432
L_FLAG = L_SCR + 19456
L_HHL = L_SCR + 19520
LDS_BYTES = 163840
C_SC = 1.4426950408889634 / 16.0

STAMP_SLOTS = [4,5,6,7,63,89,92,93,94,95,96,97,98,99,100,101]
class G:
    def __init__(self):
        self.L = []; self.prof = 0
    def __call__(self, s):
        for line in s.strip().split("\n"):
            line = line.strip()
            if line: self.L.append("  " + line)
    def label(self, l): self.L.append(l + ":")
    def nop(self, n=1):
        while n > 0:
            k = min(n, 16); self.L.append(f"  s_nop {k-1}"); n -= k
    def stamp(self, i):
        if self.prof:
            self.L.append("  s_memrealtime s[90:91]")
            self.L.append("  s_waitcnt lgkmcnt(0)")
            self.L.append(f"  s_mov_b32 s{STAMP_SLOTS[i]}, s90")

def vr(a, n=4): return f"v[{a}:{a+n-1}]"
def S4(s): return f"s[{s}:{s+3}]"

V_LANE, V_N, V_G = 1, 2, 3
V_K0, V_K1, V_V0, V_V1 = 4, 5, 6, 7
V_IN1, V_IN2 = 8, 9
V_T0, V_T1, V_T2, V_T3, V_T4, V_T5 = 10, 11, 12, 13, 14, 15
V_Q = 16; V_ACC = 48; V_S = 56; V_P = 64; V_GU = 68
V_M, V_L, V_AL, V_NMC = 76, 77, 78, 79
V_A = 80; V_B = 112
R_K0, R_K1, R_V0, R_V1 = 128, 160, 192, 224
S_WG, S_WAVE = 2, 3
S_K, S_V, S_WS, S_T, S_T2 = 8, 12, 16, 20, 24
S_OFF, S_BASE = 28, 29
S_HKV, S_B, S_S, S_R = 30, 31, 32, 33
S_C, S_SELLO, S_SELHI = 34, 35, 60
P_X, P_K, P_V, P_WQ, P_WO, P_BX, P_WG, P_WU, P_WD, P_OUT, P_DBG, P_WS = [36 + 2*i for i in range(12)]
S_MASK = 64
S_A, S_Bx, S_Cx, S_Dx = 80, 81, 82, 83
S_EX = 84
S_HIM, S_I, S_POLL = 86, 87, 88
S_J, S_CS = 61, 62
S_TC = P_K
S_NEXT, S_NEXT2 = P_V, P_V + 1

def srd(g, s, p, nbytes):
    g(f"""s_mov_b32 s{s}, s{p}
          s_and_b32 s{s+1}, s{p+1}, 0xffff
          s_mov_b32 s{s+2}, {nbytes}
          s_mov_b32 s{s+3}, 0x20000""")

def bf16_round(g, d, s):
    g(f"v_cvt_pk_bf16_f32 v{d}, v{s}, v{s}")
    g(f"v_lshlrev_b32 v{d}, 16, v{d}")

def xreduce(g, v, t, op, steps):
    for st in steps:
        if st in (1, 2, 4, 8):
            mod = {1: "quad_perm:[1,0,3,2]", 2: "quad_perm:[2,3,0,1]", 4: "row_ror:4", 8: "row_ror:8"}[st]
            g.nop(2); g(f"{op}_dpp v{v}, v{v}, v{v} {mod} row_mask:0xf bank_mask:0xf")
        else:
            g(f"v_mov_b32 v{t}, v{v}"); g.nop(2)
            g(f"v_permlane{st}_swap_b32 v{v}, v{t}"); g.nop(1)
            g(f"{op} v{v}, v{v}, v{t}")

def poll_branch(g, lab, cond="vccz"):
    g(f"""s_cbranch_{cond} {lab}_ok
          s_sub_u32 s{S_POLL}, s{S_POLL}, 1
          s_cmp_eq_u32 s{S_POLL}, 0
          s_cbranch_scc1 L_end
          s_branch {lab}""")
    g.label(lab + "_ok")

def canon(g, v, t=None):
    g(f"v_min_u32 v{v}, 0xfffffffe, v{v}")

def k_loads(g, which):
    vo, r = (V_K0, R_K0) if which == 0 else (V_K1, R_K1)
    for j in range(8):
        g(f"buffer_load_dwordx4 {vr(r+4*j)}, v{vo}, {S4(S_K)}, s{S_OFF} offen offset:{j*64} nt")

def v_loads(g, half):
    r = R_V0 if half == 0 else R_V1
    for j in range(8):
        vo = V_V0 if j < 4 else V_V1
        g(f"buffer_load_dwordx4 {vr(r+4*j)}, v{vo}, {S4(S_V)}, s{S_OFF} offen offset:{(j&3)*512+half*256} nt")

def tile_body(g, nwait, loads):
    for t, r in ((0, R_K0), (1, R_K1)):
        g(f"s_waitcnt vmcnt({nwait[t]})")
        s = V_S + 4*t
        for j in range(8):
            c = "0" if j == 0 else vr(s)
            g(f"v_mfma_f32_16x16x32_bf16 {vr(s)}, {vr(r+4*j)}, {vr(V_Q+4*j)}, {c}")
        if loads: k_loads(g, t)
        elif t == 1: g.nop(8)
    S = [V_S + i for i in range(8)]
    for i in range(4):
        g(f"v_cvt_pk_bf16_f32 v{V_P+i}, v{S[2*i]}, v{S[2*i+1]}")
    for i in range(4):
        g(f"v_lshlrev_b32 v{S[2*i]}, 16, v{V_P+i}")
        g(f"v_and_b32 v{S[2*i+1]}, s{S_HIM}, v{V_P+i}")
    g(f"""v_max3_f32 v{V_T0}, v{S[0]}, v{S[1]}, v{S[2]}
          v_max3_f32 v{V_T1}, v{S[3]}, v{S[4]}, v{S[5]}
          v_max3_f32 v{V_T0}, v{V_T0}, v{S[6]}, v{S[7]}
          v_max_f32 v{V_T0}, v{V_T0}, v{V_T1}""")
    xreduce(g, V_T0, V_T1, "v_max_f32", [16, 32])
    g(f"""v_max_f32 v{V_T0}, v{V_T0}, v{V_M}
          v_sub_f32 v{V_AL}, v{V_M}, v{V_T0}
          v_mul_f32 v{V_AL}, s{S_C}, v{V_AL}
          v_exp_f32 v{V_AL}, v{V_AL}
          v_mov_b32 v{V_M}, v{V_T0}
          v_mul_f32 v{V_NMC}, s{S_C}, v{V_T0}""")
    for i in range(8):
        g(f"v_fma_f32 v{S[i]}, v{S[i]}, s{S_C}, -v{V_NMC}")
    for i in range(8):
        g(f"v_exp_f32 v{S[i]}, v{S[i]}")
    for r in range(8):
        qp = "[0,0,2,2]" if (r & 1) == 0 else "[1,1,3,3]"
        g(f"v_mul_f32_dpp v{V_ACC+r}, v{V_AL}, v{V_ACC+r} quad_perm:{qp} row_mask:0xf bank_mask:0xf")
    for i in range(4):
        g(f"v_cvt_pk_bf16_f32 v{V_P+i}, v{S[2*i]}, v{S[2*i+1]}")
    g(f"""v_add_f32 v{V_T0}, v{S[0]}, v{S[1]}
          v_add_f32 v{V_T1}, v{S[2]}, v{S[3]}
          v_add_f32 v{V_T2}, v{S[4]}, v{S[5]}
          v_add_f32 v{V_T3}, v{S[6]}, v{S[7]}
          v_add_f32 v{V_T0}, v{V_T0}, v{V_T1}
          v_add_f32 v{V_T2}, v{V_T2}, v{V_T3}
          v_add_f32 v{V_T0}, v{V_T0}, v{V_T2}
          v_fma_f32 v{V_L}, v{V_L}, v{V_AL}, v{V_T0}""")
    for e in range(8):
        for i in range(4):
            g(f"v_cndmask_b32 v{V_A+4*e+i}, 0, v{V_P+i}, s[{S_MASK+2*e}:{S_MASK+2*e+1}]")
    for half, r in ((0, R_V0), (1, R_V1)):
        g(f"s_waitcnt vmcnt({nwait[2+half]})")
        acc = V_ACC + 4*half
        def perms(e):
            b = V_B + 4*(e & 3); q = e >> 1
            sel = S_SELLO if (e & 1) == 0 else S_SELHI
            for p in range(4):
                g(f"v_perm_b32 v{b+p}, v{r+4*(2*p+1)+q}, v{r+4*(2*p)+q}, s{sel}")
        perms(0); perms(1)
        for e in range(8):
            if e + 2 < 8: perms(e + 2)
            else: g.nop(1)
            g(f"v_mfma_f32_16x16x32_bf16 {vr(acc)}, {vr(V_A+4*e)}, {vr(V_B+4*(e&3))}, {vr(acc)}")
        if loads: v_loads(g, half)
    if not loads: g.nop(8)

def ln_finish(g, steps):
    g(f"""v_pk_add_f32 v[{V_T0}:{V_T1}], v[{V_T0}:{V_T1}], v[{V_T2}:{V_T3}]
          v_add_f32 v{V_T0}, v{V_T0}, v{V_T1}""")
    xreduce(g, V_T0, V_T1, "v_add_f32", steps)
    g(f"v_mul_f32 v{V_T0}, {f32bits(1.0/448.0):#x}, v{V_T0}")
    bf16_round(g, V_T0, V_T0)
    g(f"v_add_f32 v{V_T0}, {f32bits(1e-5):#x}, v{V_T0}")
    bf16_round(g, V_T0, V_T0)
    g(f"v_sqrt_f32 v{V_T0}, v{V_T0}")
    bf16_round(g, V_T4, V_T4)
    bf16_round(g, V_T0, V_T0)
    g(f"""v_rcp_f32 v{V_T2}, v{V_T0}
          v_mov_b32 v{V_T5}, v{V_T4}
          v_mov_b32 v{V_T1}, v{V_T0}
          v_mov_b32 v{V_T3}, v{V_T2}""")

def ln_stats(g, XR, ndw, steps, T):
    def unp(i, t):
        g(f"v_lshlrev_b32 v{t}, 16, v{XR+i}")
        g(f"v_and_b32 v{t+1}, s{S_HIM}, v{XR+i}")
    unp(0, V_T0); unp(1, V_T2)
    for i in range(2, ndw):
        t = T + 2*(i & 1); a = V_T0 + 2*(i & 1)
        unp(i, t)
        g(f"v_pk_add_f32 v[{a}:{a+1}], v[{a}:{a+1}], v[{t}:{t+1}]")
    g(f"""v_pk_add_f32 v[{V_T0}:{V_T1}], v[{V_T0}:{V_T1}], v[{V_T2}:{V_T3}]
          v_add_f32 v{V_T0}, v{V_T0}, v{V_T1}""")
    xreduce(g, V_T0, V_T1, "v_add_f32", steps)
    g(f"""v_mul_f32 v{V_T4}, {f32bits(1.0/448.0):#x}, v{V_T0}
          v_mul_f32 v{V_T5}, {f32bits(1.0/448.0):#x}, v{V_T0}
          v_mov_b32 v{V_T0}, 0
          v_mov_b32 v{V_T1}, 0
          v_mov_b32 v{V_T2}, 0
          v_mov_b32 v{V_T3}, 0""")
    for i in range(ndw):
        t = T + 2*(i & 1); a = V_T0 + 2*(i & 1)
        unp(i, t)
        g(f"v_pk_add_f32 v[{t}:{t+1}], v[{t}:{t+1}], v[{V_T4}:{V_T5}] neg_lo:[0,1] neg_hi:[0,1]")
        g(f"v_pk_fma_f32 v[{a}:{a+1}], v[{t}:{t+1}], v[{t}:{t+1}], v[{a}:{a+1}]")
    ln_finish(g, steps)

def ln_apply(g, X, ndw, T):
    for i in range(ndw):
        a, c, e = T, T+2, T+4
        g(f"""v_lshlrev_b32 v{a}, 16, v{X+i}
              v_and_b32 v{a+1}, s{S_HIM}, v{X+i}
              v_pk_add_f32 v[{a}:{a+1}], v[{a}:{a+1}], v[{V_T4}:{V_T5}] neg_lo:[0,1] neg_hi:[0,1]
              v_cvt_pk_bf16_f32 v{a+1}, v{a}, v{a+1}
              v_lshlrev_b32 v{a}, 16, v{a+1}
              v_and_b32 v{a+1}, s{S_HIM}, v{a+1}
              v_pk_mul_f32 v[{c}:{c+1}], v[{a}:{a+1}], v[{V_T2}:{V_T3}]
              v_pk_fma_f32 v[{e}:{e+1}], v[{c}:{c+1}], v[{V_T0}:{V_T1}], v[{a}:{a+1}] neg_lo:[1,0,0] neg_hi:[1,0,0]
              v_pk_fma_f32 v[{c}:{c+1}], v[{e}:{e+1}], v[{V_T2}:{V_T3}], v[{c}:{c+1}]
              v_cvt_pk_bf16_f32 v{X+i}, v{c}, v{c+1}""")

def dma(g, voff, srdreg, soff, m0reg, fl=""):
    g(f"""s_mov_b32 m0, s{m0reg}
          s_add_u32 s{m0reg}, s{m0reg}, 1024
          buffer_load_dwordx4 v{voff}, {S4(srdreg)}, s{soff} offen {fl} lds""")


def small_dma(g):
    g(f"s_sub_u32 s{S_Cx}, s{S_WAVE}, 4")
    g(f"s_cmp_ge_u32 s{S_CS}, 56")
    g(f"s_cbranch_scc1 L_nowd")
    srd(g, S_T, P_WD, 1792*448*2)
    g(f"""v_mul_u32_u24 v{V_T0}, 896, v{V_LANE}
          s_mul_i32 s{S_A}, s{S_Cx}, {7*64*896}
          s_lshl_b32 s{S_Bx}, s{S_CS}, 4
          s_add_u32 s{S_A}, s{S_A}, s{S_Bx}
          s_mul_i32 s{S_Bx}, s{S_Cx}, 7168
          s_add_u32 s{S_Bx}, s{S_Bx}, {L_WD}""")
    for i in range(7):
        dma(g, V_T0, S_T, S_A, S_Bx)
        g(f"s_add_u32 s{S_A}, s{S_A}, {64*896}")
    g.label(f"L_nowd")
    g(f"""s_cmp_ge_u32 s{S_J}, 112
          s_cbranch_scc1 L_nogu
          s_cmp_ge_u32 s{S_Cx}, 2
          s_cselect_b32 s{S_T}, s{P_WU}, s{P_WG}
          s_cselect_b32 s{S_T+1}, s{P_WU+1}, s{P_WG+1}
          s_and_b32 s{S_T+1}, s{S_T+1}, 0xffff
          s_mov_b32 s{S_T+2}, {448*1792*2}
          s_mov_b32 s{S_T+3}, 0x20000
          v_lshrrev_b32 v{V_T0}, 1, v{V_LANE}
          v_mul_u32_u24 v{V_T0}, 3584, v{V_T0}
          v_and_b32 v{V_T1}, 1, v{V_LANE}
          v_lshl_add_u32 v{V_T0}, v{V_T1}, 4, v{V_T0}
          s_and_b32 s{S_A}, s{S_Cx}, 1
          s_mul_i32 s{S_A}, s{S_A}, {224*3584}
          s_lshl_b32 s{S_Bx}, s{S_J}, 5
          s_add_u32 s{S_A}, s{S_A}, s{S_Bx}
          s_mul_i32 s{S_Bx}, s{S_Cx}, 7168
          s_add_u32 s{S_Bx}, s{S_Bx}, {L_WD}""")
    for i in range(7):
        dma(g, V_T0, S_T, S_A, S_Bx)
        g(f"s_add_u32 s{S_A}, s{S_A}, {32*3584}")
    g.label(f"L_nogu")

def wo_dma(g):
    g(f"s_sub_u32 s{S_Cx}, s{S_WAVE}, 4")
    srd(g, S_T, P_WO, 4096*448*2)
    g(f"""v_lshrrev_b32 v{V_T0}, 3, v{V_LANE}
          v_bfe_u32 v{V_T1}, v{V_LANE}, 1, 2
          v_lshrrev_b32 v{V_T2}, 4, v{V_LANE}
          v_xor_b32 v{V_T1}, v{V_T1}, v{V_T2}
          v_mul_u32_u24 v{V_T0}, 896, v{V_T0}
          v_and_b32 v{V_T2}, 1, v{V_LANE}
          v_lshl_add_u32 v{V_T0}, v{V_T2}, 4, v{V_T0}
          v_lshl_add_u32 v{V_T2}, v{V_T1}, 5, v{V_T0}
          v_xor_b32 v{V_T1}, 2, v{V_T1}
          v_lshl_add_u32 v{V_T3}, v{V_T1}, 5, v{V_T0}
          s_lshl_b32 s{S_A}, s{S_I}, 7
          s_lshl_b32 s{S_Bx}, s{S_Cx}, 5
          s_add_u32 s{S_A}, s{S_A}, s{S_Bx}
          s_mul_i32 s{S_A}, s{S_A}, 896
          s_mul_i32 s{S_Bx}, s{S_Cx}, {28*1024}""")
    for kg in range(4):
        for cb7 in range(7):
            dma(g, V_T2 + (kg & 1), S_T, S_A, S_Bx)
            g(f"s_add_u32 s{S_A}, s{S_A}, {128 if cb7 < 6 else 8*896-6*128}")

STAG = int(os.environ.get("STAG", "0"))
BAL = int(os.environ.get("BAL", "1"))
WARM = int(os.environ.get("WARM", "10"))
WARM0 = int(os.environ.get("WARM0", "0"))
NB1 = 16
def wait_flag(g, tag, off, val):
    g(f"v_mov_b32 v{V_T0}, {L_FLAG}")
    g.label(f"L_wf{tag}")
    g(f"""ds_read_b32 v{V_T1}, v{V_T0} offset:{off}
          s_waitcnt lgkmcnt(0)
          v_cmp_gt_u32 vcc, {val}, v{V_T1}""")
    poll_branch(g, f"L_wf{tag}")

def flag_add(g, off):
    g(f"""v_mov_b32 v{V_T0}, {L_FLAG}
          v_mov_b32 v{V_T1}, 1
          s_mov_b64 exec, 1
          ds_add_u32 v{V_T0}, v{V_T1} offset:{off}
          s_mov_b64 exec, -1""")

def prefetch(g):
    k_loads(g, 0); k_loads(g, 1); v_loads(g, 0); v_loads(g, 1)

def lds_prefetch(g):
    g(f"""s_add_u32 s{S_A}, s{S_OFF}, {8*16384}
          s_lshl_b32 s{S_Bx}, s{S_WAVE}, 15""")
    for which in range(2):
        vo = V_K0 if which == 0 else V_K1
        for j in range(8):
            g(f"""s_mov_b32 m0, s{S_Bx}
                  s_add_u32 s{S_Bx}, s{S_Bx}, {1024-64 if j < 7 else 1024+7*64}
                  buffer_load_dwordx4 v{vo}, {S4(S_K)}, s{S_A} offen offset:{j*64} nt lds""")
    for half in range(2):
        for j in range(8):
            vo = V_V0 if j < 4 else V_V1
            off = (j & 3)*512 + half*256
            idx = half*8 + j + 1
            noff = ((idx & 3)*512 + (idx >> 3)*256) if idx < 16 else 0
            g(f"""s_mov_b32 m0, s{S_Bx}
                  s_add_u32 s{S_Bx}, s{S_Bx}, {(1024 + off - noff) & 0xffffffff:#x}
                  buffer_load_dwordx4 v{vo}, {S4(S_V)}, s{S_A} offen offset:{off} nt lds""")

def q_gather(g):
    g(f"""s_lshl_b32 s{S_A}, s{S_WG}, 13
          s_add_u32 s{S_A}, s{S_A}, {WS_IN+6144:#x}
          s_add_u32 s{S_Cx}, s{P_WS}, s{S_A}
          s_addc_u32 s{S_Dx}, s{P_WS+1}, 0
          s_lshl_b32 s{S_A}, s{S_B}, 13
          s_lshl_b32 s{S_Bx}, s{S_HKV}, 10
          s_add_u32 s{S_A}, s{S_A}, s{S_Bx}
          s_lshl_b32 s{S_Bx}, s{S_S}, 16
          s_add_u32 s{S_A}, s{S_A}, s{S_Bx}
          s_sub_u32 s{S_Bx}, s{S_WAVE}, 4
          s_lshl_b32 s{S_Bx}, s{S_Bx}, 8
          s_add_u32 s{S_A}, s{S_A}, s{S_Bx}
          s_add_u32 s{S_EX}, s{P_WS}, s{S_A}
          s_addc_u32 s{S_EX+1}, s{P_WS+1}, 0
          s_add_u32 s{S_Bx}, s{S_Bx}, {L_QIMG}
          v_mov_b32 v{V_T2}, s{S_Bx}""")
    g.label(f"L_pq")
    g(f"""s_load_dword s64, s[{S_Cx}:{S_Dx}], 0 glc
          s_waitcnt lgkmcnt(0)
          s_cmp_lg_u32 s64, -1""")
    poll_branch(g, f"L_pq", "scc1")
    g.stamp(3)
    for rnd in range(2):
        g(f"s_load_dwordx16 s[64:79], s[{S_EX}:{S_EX+1}], {rnd*128} glc")
        g(f"s_load_dwordx16 s[36:51], s[{S_EX}:{S_EX+1}], {rnd*128+64} glc")
        g("s_waitcnt lgkmcnt(0)")
        for i in range(16):
            g(f"v_mov_b32 v{16+rnd*32+i}, s{64+i}")
        for i in range(16):
            g(f"v_mov_b32 v{32+rnd*32+i}, s{36+i}")
    g(f"s_load_dwordx16 s[36:51], s[0:1], 0")
    g("s_mov_b64 exec, 1")
    for u in range(16):
        g(f"ds_write_b128 v{V_T2}, {vr(16+4*u)} offset:{u*16}")
    g("s_mov_b64 exec, -1")
    g("s_waitcnt lgkmcnt(0)")
    flag_add(g, 12)

def gen(debug=0):
    g = G(); g.prof = debug & 2
    g(f"s_cmp_ge_u32 s{S_WG}, 256")
    g("s_cbranch_scc1 L_end")
    g(f"s_load_dwordx16 s[36:51], s[0:1], 0")
    g(f"s_load_dwordx8 s[52:59], s[0:1], 64")
    if WARM0:
        g(f"""s_getpc_b64 s[{S_Cx}:{S_Dx}]
              v_lshlrev_b32 v{V_T0}, 4, v0
              global_load_dwordx4 v[128:131], v{V_T0}, s[{S_Cx}:{S_Dx}]
              v_add_u32 v{V_T0}, 0x2000, v{V_T0}
              global_load_dwordx4 v[132:135], v{V_T0}, s[{S_Cx}:{S_Dx}]""")
    g(f"""v_lshrrev_b32 v{V_T0}, 6, v0
          v_and_b32 v{V_LANE}, 63, v0
          v_and_b32 v{V_N}, 15, v0
          v_bfe_u32 v{V_G}, v0, 4, 2
          v_readfirstlane_b32 s{S_WAVE}, v{V_T0}
          s_and_b32 s{S_HKV}, s{S_WG}, 7
          s_lshr_b32 s{S_R}, s{S_WG}, 3
          s_lshr_b32 s{S_B}, s{S_WG}, 5
          s_and_b32 s{S_S}, s{S_R}, 3
          s_lshl_b32 s{S_I}, s{S_HKV}, 2
          s_add_u32 s{S_I}, s{S_I}, s{S_S}
          s_mov_b32 s{S_C}, {f32bits(C_SC):#x}
          s_mov_b32 s{S_SELLO}, 0x05040100
          s_mov_b32 s{S_SELHI}, 0x07060302
          s_mov_b32 s{S_HIM}, 0xffff0000
          s_mov_b32 s{S_POLL}, 0x100000
          s_mul_i32 s{S_J}, s{S_HKV}, 14
          s_lshl_b32 s{S_A}, s{S_B}, 1
          s_add_u32 s{S_J}, s{S_J}, s{S_A}
          s_add_u32 s{S_J}, s{S_J}, s{S_S}
          s_sub_u32 s{S_J}, s{S_J}, 1
          s_cmp_eq_u32 s{S_B}, 7
          s_cselect_b32 s{S_J}, 0xffff, s{S_J}
          s_cmp_eq_u32 s{S_S}, 0
          s_cselect_b32 s{S_J}, 0xffff, s{S_J}
          s_cmp_eq_u32 s{S_S}, 3
          s_cselect_b32 s{S_J}, 0xffff, s{S_J}
          s_mul_i32 s{S_CS}, s{S_HKV}, 7
          s_add_u32 s{S_CS}, s{S_CS}, s{S_B}
          s_cmp_eq_u32 s{S_B}, 7
          s_cselect_b32 s{S_CS}, 0xffff, s{S_CS}
          s_cmp_lg_u32 s{S_S}, 0
          s_cselect_b32 s{S_CS}, 0xffff, s{S_CS}""")
    g(f"""v_lshlrev_b32 v{V_K0}, 9, v{V_N}
          v_lshl_add_u32 v{V_K0}, v{V_G}, 4, v{V_K0}
          v_add_u32 v{V_K1}, 0x2000, v{V_K0}
          v_lshlrev_b32 v{V_V0}, 11, v{V_G}
          v_lshl_add_u32 v{V_V0}, v{V_N}, 4, v{V_V0}
          v_add_u32 v{V_V1}, 0x2000, v{V_V0}""")
    g(f"""s_lshl_b32 s{S_A}, s{S_B}, 3
          s_add_u32 s{S_A}, s{S_A}, s{S_HKV}
          s_lshl_b32 s{S_BASE}, s{S_A}, 22
          s_lshl_b32 s{S_Bx}, s{S_S}, 20
          s_add_u32 s{S_BASE}, s{S_BASE}, s{S_Bx}
          s_lshl_b32 s{S_Bx}, s{S_WAVE}, 14
          s_add_u32 s{S_OFF}, s{S_BASE}, s{S_Bx}
          s_lshl_b32 s{S_Dx}, s{S_A}, 8
          s_add_u32 s{S_Dx}, s{S_Dx}, {WS_TC:#x}""")
    g(f"""v_mov_b32 v{V_T0}, {L_FLAG}
          v_mov_b32 v16, 0
          v_mov_b32 v17, 0
          v_mov_b32 v18, 0
          v_mov_b32 v19, 0
          s_cmp_eq_u32 s{S_WAVE}, 4
          s_cbranch_scc0 L_nz
          ds_write_b128 v{V_T0}, v[16:19]
          ds_write_b128 v{V_T0}, v[16:19] offset:16
          ds_write_b128 v{V_T0}, v[16:19] offset:32""")
    g.label("L_nz")
    g("s_waitcnt lgkmcnt(0)")
    if g.prof:
        for sl in STAMP_SLOTS: g(f"s_mov_b32 s{sl}, 0")
    g.stamp(0)
    g(f"s_cmp_lt_u32 s{S_WAVE}, 4")
    g("s_cbranch_scc1 L_qphase")
    srd(g, S_K, P_K, 0x10000000)
    srd(g, S_V, P_V, 0x10000000)
    srd(g, S_WS, P_WS, WS_BYTES)
    g("s_setprio 2")
    g("s_barrier")
    prefetch(g)
    g("s_setprio 0")
    g.stamp(2)
    q_gather(g)
    g(f"s_mov_b32 s{S_NEXT}, 256")
    g("s_branch L_qwait")
    g.label("L_qphase")
    srd(g, S_T2, P_WQ, 448*4096*2)
    XR = 16; XA = 44; WB = 64
    g(f"""v_lshrrev_b32 v{V_T3}, 1, v{V_LANE}
          v_lshlrev_b32 v{V_T3}, 13, v{V_T3}
          v_and_b32 v{V_T4}, 1, v{V_LANE}
          v_lshl_add_u32 v{V_T3}, v{V_T4}, 4, v{V_T3}
          s_lshl_b32 s{S_A}, s{S_WAVE}, 20
          s_lshl_b32 s{S_Bx}, s{S_HKV}, 10
          s_add_u32 s{S_A}, s{S_A}, s{S_Bx}
          s_lshl_b32 s{S_Bx}, s{S_R}, 5
          s_add_u32 s{S_A}, s{S_A}, s{S_Bx}
          s_mul_i32 s{S_Bx}, s{S_WAVE}, 28672""")
    for i in range(4):
        dma(g, V_T3, S_T2, S_A, S_Bx)
        g(f"s_add_u32 s{S_A}, s{S_A}, 0x40000")
    srd(g, S_T, P_X, 7168)
    g(f"""v_and_b32 v{V_T0}, 7, v{V_LANE}
          v_mul_u32_u24 v{V_T0}, 896, v{V_T0}
          v_lshrrev_b32 v{V_T1}, 3, v{V_LANE}
          v_lshl_add_u32 v{V_T1}, v{V_T1}, 4, v{V_T0}
          v_lshl_add_u32 v{V_T2}, v{V_G}, 4, v{V_T0}
          s_lshl_b32 s{S_A}, s{S_WAVE}, 8""")
    for t in range(7):
        g(f"buffer_load_dwordx4 {vr(XR+4*t)}, v{V_T1}, {S4(S_T)}, 0 offen offset:{t*128}")
    for ks in range(4):
        g(f"buffer_load_dwordx4 {vr(XA+4*ks)}, v{V_T2}, {S4(S_T)}, s{S_A} offen offset:{ks*64}")
    srd(g, S_WS, P_WS, WS_BYTES)
    CLR = 124
    g(f"""v_mov_b32 v{CLR}, -1
          v_mov_b32 v{CLR+1}, -1
          v_mov_b32 v{CLR+2}, -1
          v_mov_b32 v{CLR+3}, -1
          v_lshlrev_b32 v{V_T0}, 4, v0
          s_lshl_b32 s{S_A}, s{S_WG}, 13
          s_add_u32 s{S_A}, s{S_A}, {WS_IN:#x}
          s_add_u32 s{S_Bx}, s{S_A}, 4096
          buffer_store_dwordx4 {vr(CLR)}, v{V_T0}, {S4(S_WS)}, s{S_A} offen sc1
          buffer_store_dwordx4 {vr(CLR)}, v{V_T0}, {S4(S_WS)}, s{S_Bx} offen sc1
          s_cmp_eq_u32 s{S_WAVE}, 3
          s_cbranch_scc0 L_noclr
          s_lshl_b32 s{S_A}, s{S_WG}, 5
          s_add_u32 s{S_A}, s{S_A}, {WS_H:#x}
          s_lshl_b32 s{S_Bx}, s{S_WG}, 7
          s_add_u32 s{S_Bx}, s{S_Bx}, {WS_HH:#x}
          v_lshlrev_b32 v{V_T0}, 4, v{V_LANE}
          v_mov_b32 v{V_T1}, 32
          s_mov_b64 exec, 3
          buffer_store_dwordx4 {vr(CLR)}, v{V_T0}, {S4(S_WS)}, s{S_A} offen sc1
          s_mov_b64 exec, 0xff
          buffer_store_dwordx4 {vr(CLR)}, v{V_T0}, {S4(S_WS)}, s{S_Bx} offen sc1
          s_mov_b64 exec, 1
          s_cmp_eq_u32 s{S_S}, 0
          s_cbranch_scc0 L_notc
          buffer_store_dword v{V_T1}, v{V_T0}, {S4(S_WS)}, s{S_Dx} offen sc1""")
    g.label("L_notc")
    g("s_mov_b64 exec, -1")
    g.label("L_noclr")
    g("s_barrier")
    srd(g, S_K, P_K, 0x10000000)
    srd(g, S_V, P_V, 0x10000000)
    g(f"""s_add_u32 s{S_TC}, s{P_WS}, s{S_Dx}
          s_addc_u32 s{S_TC+1}, s{P_WS+1}, 0
          v_lshlrev_b32 v104, 8, v{V_G}
          v_lshl_add_u32 v104, v{V_N}, 3, v104
          s_mul_i32 s{S_Bx}, s{S_WAVE}, 28672
          v_add_u32 v104, s{S_Bx}, v104""")
    g("s_waitcnt vmcnt(6)")
    for ks in range(4):
        g(f"ds_read_b64_tr_b16 v[{WB+4*ks}:{WB+4*ks+1}], v104 offset:{ks*1024}")
        g(f"ds_read_b64_tr_b16 v[{WB+4*ks+2}:{WB+4*ks+3}], v104 offset:{ks*1024+128}")
    ln_stats(g, XR, 28, [8, 16, 32], 96)
    g("s_waitcnt vmcnt(2)")
    ln_apply(g, XA, 16, 96)
    g("s_waitcnt lgkmcnt(0)")
    for ks in range(4):
        c = "0" if ks == 0 else vr(120)
        g(f"v_mfma_f32_16x16x32_bf16 {vr(120)}, {vr(WB+4*ks)}, {vr(XA+4*ks)}, {c}")
    g(f"""v_lshlrev_b32 v{V_T4}, 7, v{V_G}
          v_lshl_add_u32 v{V_T4}, v{V_N}, 4, v{V_T4}
          s_mov_b32 s{S_EX}, 0x00ff00ff
          s_mov_b32 s{S_EX+1}, 0x00ff00ff
          s_cmp_eq_u32 s{S_WAVE}, 0
          s_cbranch_scc1 L_w0
          s_lshl_b32 s{S_A}, s{S_WAVE}, 9
          s_add_u32 s{S_A}, s{S_A}, {L_QP-512}
          v_add_u32 v{V_T4}, s{S_A}, v{V_T4}
          s_mov_b64 exec, s[{S_EX}:{S_EX+1}]
          s_nop 1
          ds_write_b128 v{V_T4}, {vr(120)}
          s_mov_b64 exec, -1
          s_waitcnt lgkmcnt(0)""")
    flag_add(g, 0)
    g.stamp(1)
    g("s_waitcnt vmcnt(0)")
    flag_add(g, 4)
    g("s_branch L_pf")
    g.label("L_w0")
    g("s_setprio 3")
    g(f"v_add_u32 v{V_T4}, {L_QP}, v{V_T4}")
    wait_flag(g, "c", 0, 3)
    for w in range(3):
        g(f"ds_read_b128 {vr(16+4*w)}, v{V_T4} offset:{w*512}")
    g(f"""v_lshlrev_b32 v{V_T4}, 5, v{V_N}
          v_lshl_add_u32 v{V_T4}, v{V_G}, 3, v{V_T4}
          v_add_u32 v{V_T4}, {L_QP+1536}, v{V_T4}
          v_and_b32 v{V_T2}, 15, v{V_LANE}
          v_lshlrev_b32 v{V_T2}, 4, v{V_T2}
          v_add_u32 v{V_T2}, {L_QP+1536}, v{V_T2}
          v_bfe_u32 v{V_T3}, v{V_LANE}, 1, 3
          v_lshlrev_b32 v{V_T3}, 13, v{V_T3}
          v_lshl_add_u32 v{V_T3}, v{V_G}, 16, v{V_T3}
          v_and_b32 v{V_T5}, 1, v{V_LANE}
          v_lshl_add_u32 v{V_T3}, v{V_T5}, 4, v{V_T3}
          s_lshl_b32 s{S_A}, s{S_HKV}, 10
          s_lshl_b32 s{S_Bx}, s{S_R}, 5
          s_add_u32 s{S_A}, s{S_A}, s{S_Bx}
          s_waitcnt lgkmcnt(0)""")
    for w in range(3):
        g(f"v_pk_add_f32 v[120:121], v[120:121], v[{16+4*w}:{17+4*w}]")
        g(f"v_pk_add_f32 v[122:123], v[122:123], v[{18+4*w}:{19+4*w}]")
    g(f"""v_cvt_pk_bf16_f32 v16, v120, v121
          v_cvt_pk_bf16_f32 v17, v122, v123
          s_mov_b64 exec, s[{S_EX}:{S_EX+1}]
          ds_write_b64 v{V_T4}, v[16:17]
          s_mov_b64 exec, -1
          s_waitcnt lgkmcnt(0)
          ds_read_b128 v[20:23], v{V_T2}
          s_waitcnt lgkmcnt(0)
          buffer_store_dwordx4 v[20:23], v{V_T3}, {S4(S_WS)}, s{S_A} offen sc1""")
    g("s_setprio 0")
    g.stamp(1)
    wait_flag(g, "d", 4, 3)
    g(f"""s_lshl_b32 s{S_A}, s{S_HKV}, 5
          s_add_u32 s{S_Cx}, s{P_DBG}, s{S_A}
          s_addc_u32 s{S_Dx}, s{P_DBG+1}, 0
          s_mov_b32 s{S_A}, 1
          s_waitcnt vmcnt(0)
          s_atomic_add s{S_A}, s[{S_Cx}:{S_Dx}], 0 glc
          s_lshl_b32 s{S_Bx}, s{S_HKV}, 13
          s_add_u32 s{S_Bx}, s{S_Bx}, {WS_IN+6144:#x}
          s_add_u32 s{S_Cx}, s{P_WS}, s{S_Bx}
          s_addc_u32 s{S_Dx}, s{P_WS+1}, 0
          s_waitcnt lgkmcnt(0)""")
    g.stamp(2)
    g(f"""s_and_b32 s{S_A}, s{S_A}, 31
          s_cmp_eq_u32 s{S_A}, 31
          s_cbranch_scc0 L_pf
          s_mov_b32 s{S_A}, 1""")
    for half in range(2):
        for r in range(16):
            g(f"s_atomic_add s{S_A}, s[{S_Cx}:{S_Dx}], {r*65536:#x}")
        if half == 0:
            g(f"""s_add_u32 s{S_Cx}, s{S_Cx}, 0x100000
                  s_addc_u32 s{S_Dx}, s{S_Dx}, 0""")
    g.label("L_pf")
    prefetch(g)
    lds_prefetch(g)
    g.label("L_qwait")
    for e in range(8):
        m16 = 3 << (2*e); m32 = m16 | (m16 << 16)
        g(f"s_mov_b32 s{S_MASK+2*e}, {m32:#x}")
        g(f"s_mov_b32 s{S_MASK+2*e+1}, {m32:#x}")
    g(f"""v_lshrrev_b32 v{V_T2}, 7, v0
          s_lshl_b32 s{S_A}, s{S_B}, 5
          s_add_u32 s{S_A}, s{S_A}, s{S_HKV}
          v_lshlrev_b32 v{V_T2}, 3, v{V_T2}
          v_add_u32 v{V_T2}, s{S_A}, v{V_T2}
          v_lshlrev_b32 v{V_IN1}, 13, v{V_T2}
          v_and_b32 v{V_T3}, 127, v0
          v_lshl_add_u32 v{V_IN1}, v{V_T3}, 2, v{V_IN1}
          s_lshl_b32 s{S_A}, s{S_S}, 9
          s_add_u32 s{S_A}, s{S_A}, {WS_IN:#x}
          v_add_u32 v{V_IN1}, s{S_A}, v{V_IN1}""")
    g(f"""v_lshlrev_b32 v{V_T2}, 3, v{V_G}
          v_add_u32 v{V_T2}, s{S_WAVE}, v{V_T2}
          v_lshl_add_u32 v{V_T2}, v{V_T2}, 4, v{V_N}
          v_mul_u32_u24 v{V_T3}, 4682, v{V_T2}
          v_lshrrev_b32 v{V_T3}, 16, v{V_T3}
          v_mul_u32_u24 v{V_T4}, 14, v{V_T3}
          v_sub_u32 v{V_T4}, v{V_T2}, v{V_T4}
          v_and_b32 v{V_T5}, 3, v{V_T3}
          v_lshlrev_b32 v{V_T5}, 3, v{V_T5}
          v_lshrrev_b32 v{V_T3}, 2, v{V_T3}
          v_add_u32 v{V_T5}, v{V_T5}, v{V_T3}
          s_lshl_b32 s{S_A}, s{S_B}, 5
          v_add_u32 v{V_T5}, s{S_A}, v{V_T5}
          v_lshlrev_b32 v{V_IN2}, 13, v{V_T5}
          v_lshl_add_u32 v{V_IN2}, v{V_T4}, 2, v{V_IN2}
          s_lshl_b32 s{S_A}, s{S_I}, 6
          s_add_u32 s{S_A}, s{S_A}, {WS_IN+4096:#x}
          v_add_u32 v{V_IN2}, s{S_A}, v{V_IN2}
          v_cmp_lt_u32 vcc, 447, v{V_T2}
          v_mov_b32 v{V_T3}, 0x7ffffff0
          s_nop 0
          v_cndmask_b32 v{V_IN2}, v{V_IN2}, v{V_T3}, vcc""")
    for r in range(8):
        g(f"v_mov_b32 v{V_ACC+r}, 0")
    g(f"""v_mov_b32 v{V_M}, 0xf149f2ca
          v_mov_b32 v{V_L}, 0
          v_and_b32 v{V_T4}, 1, v{V_N}
          v_lshlrev_b32 v{V_T4}, 9, v{V_T4}
          v_lshl_add_u32 v{V_T4}, v{V_G}, 4, v{V_T4}
          v_add_u32 v{V_T4}, {L_QIMG}, v{V_T4}
          s_nop 0""")
    wait_flag(g, "q", 12, 4)
    for j in range(8):
        g(f"ds_read_b128 {vr(V_Q+4*j)}, v{V_T4} offset:{j*64}")
    g("s_waitcnt lgkmcnt(0)")
    g.stamp(4)
    g(f"""s_cmp_ge_u32 s{S_WAVE}, 4
          s_cbranch_scc1 L_last
          s_add_u32 s{S_OFF}, s{S_OFF}, {12*16384}""")
    tile_body(g, [56, 56, 56, 56], True)
    g(f"""s_add_u32 s{S_OFF}, s{S_OFF}, {4*16384}
          s_mov_b32 s{S_NEXT}, 12
          s_mov_b32 s{S_NEXT2}, 0
          s_lshl_b32 s{S_A}, s{S_WAVE}, 2
          s_add_u32 s{S_A}, s{S_A}, {L_FLAG+16}
          v_mov_b32 v{V_T0}, s{S_A}
          v_mov_b32 v{V_T1}, 1
          s_waitcnt vmcnt(32)
          s_mov_b64 exec, 1
          ds_write_b32 v{V_T0}, v{V_T1}
          s_mov_b64 exec, -1""")
    if BAL:
        g(f"""s_cmp_eq_u32 s{S_B}, 7
              s_cbranch_scc1 L_nobal
              s_lshl_b32 s{S_A}, s{S_S}, 2
              s_add_u32 s{S_A}, s{S_A}, s{S_WAVE}
              s_cmp_eq_u32 s{S_A}, 3
              s_cselect_b32 s{S_NEXT}, 11, s{S_NEXT}
              s_cmp_eq_u32 s{S_A}, 12
              s_cselect_b32 s{S_NEXT}, 13, s{S_NEXT}
              s_cselect_b32 s{S_NEXT2}, 1, 0""")
        g.label("L_nobal")
    g.label("L_loop")
    if BAL:
        g(f"""s_cmp_eq_u32 s{S_NEXT}, s{S_NEXT2}
              s_cbranch_scc0 L_nosp
              s_sub_u32 s{S_OFF}, s{S_BASE}, {(3*64-63)*16384}""")
        g.label("L_nosp")
    if STAG or WARM:
        g(f"""s_cmp_eq_u32 s{S_WAVE}, 0
              s_cbranch_scc0 L_nopc""")
        flag_add(g, 44)
        g.label("L_nopc")
    if g.prof:
        for val, sl in ((12, 1), (8, 2), (4, 3)):
            g(f"s_cmp_eq_u32 s{S_NEXT}, {val}")
            g(f"s_cbranch_scc0 L_ps{val}")
            g.stamp(sl)
            g.label(f"L_ps{val}")
    tile_body(g, [24, 24, 24, 24], True)
    g(f"""s_add_u32 s{S_OFF}, s{S_OFF}, {4*16384}
          s_sub_u32 s{S_NEXT}, s{S_NEXT}, 1
          s_cmp_gt_u32 s{S_NEXT}, 0
          s_cbranch_scc1 L_loop""")
    g.label("L_last")
    tile_body(g, [24, 16, 8, 0], False)
    g(f"""s_cmp_lt_u32 s{S_WAVE}, 4
          s_cbranch_scc1 L_tail0
          s_cmp_eq_u32 s{S_NEXT}, 257
          s_cbranch_scc1 L_wdma
          s_mov_b32 s{S_NEXT}, 257
          s_lshl_b32 s{S_A}, s{S_WAVE}, 2
          s_add_u32 s{S_A}, s{S_A}, {L_FLAG}
          v_mov_b32 v{V_T0}, s{S_A}""")
    g.label("L_wl")
    g(f"""ds_read_b32 v{V_T1}, v{V_T0}
          s_waitcnt lgkmcnt(0)
          v_cmp_eq_u32 vcc, 0, v{V_T1}""")
    poll_branch(g, "L_wl")
    g(f"""s_sub_u32 s{S_A}, s{S_WAVE}, 4
          s_lshl_b32 s{S_A}, s{S_A}, 15
          v_lshlrev_b32 v{V_T0}, 4, v{V_LANE}
          v_add_u32 v{V_T0}, s{S_A}, v{V_T0}""")
    for u in range(32):
        g(f"ds_read_b128 {vr(128+4*u)}, v{V_T0} offset:{u*1024}")
    g("s_waitcnt lgkmcnt(0)")
    flag_add(g, 32)
    g("s_branch L_last")
    g.label("L_wdma")
    wait_flag(g, "w", 32, 4)
    g("s_setprio 2")
    small_dma(g)
    if STAG:
        g(f"v_mov_b32 v{V_T0}, {L_FLAG}")
        g(f"v_mov_b32 v{V_T2}, s{S_B}")
        g.label("L_wst")
        g(f"""s_sleep 8
              ds_read_b32 v{V_T1}, v{V_T0} offset:44
              s_waitcnt lgkmcnt(0)
              v_cmp_gt_u32 vcc, v{V_T2}, v{V_T1}""")
        poll_branch(g, "L_wst")
    wo_dma(g)
    g(f"s_cmp_eq_u32 s{S_WAVE}, 7")
    g("s_cbranch_scc0 L_nocert")
    srd(g, S_T, P_DBG, 256)
    g(f"v_lshlrev_b32 v{V_T0}, 5, v{V_LANE}")
    g("s_mov_b64 exec, 0xff")
    g.label("L_cert")
    g(f"""buffer_load_dword v{V_T1}, v{V_T0}, {S4(S_T)}, 0 offen sc1
          s_waitcnt vmcnt(0)
          v_cmp_gt_u32 vcc, 32, v{V_T1}""")
    poll_branch(g, "L_cert")
    g("s_mov_b64 exec, -1")
    g.label("L_nocert")
    g("s_waitcnt vmcnt(0)")
    g("s_setprio 0")
    if WARM:
        g(f"""s_cmp_eq_u32 s{S_WAVE}, 6
              s_cbranch_scc0 L_tail0
              v_mov_b32 v{V_T0}, {L_FLAG}""")
        g.label("L_ww")
        g(f"""s_sleep 8
              ds_read_b32 v{V_T1}, v{V_T0} offset:44
              s_waitcnt lgkmcnt(0)
              v_cmp_gt_u32 vcc, {WARM}, v{V_T1}""")
        poll_branch(g, "L_ww")
        g(f"""s_getpc_b64 s[{S_Cx}:{S_Dx}]
              s_mov_b32 s{S_A}, 18""")
        g.label("L_wm")
        for i in range(4):
            g(f"s_load_dwordx16 s[64:79], s[{S_Cx}:{S_Dx}], {i*64}")
        g(f"""s_add_u32 s{S_Cx}, s{S_Cx}, 256
              s_addc_u32 s{S_Dx}, s{S_Dx}, 0
              s_waitcnt lgkmcnt(0)
              s_sub_u32 s{S_A}, s{S_A}, 1
              s_cmp_gt_u32 s{S_A}, 0
              s_cbranch_scc1 L_wm""")
    g.label("L_tail0")
    g.stamp(5)
    tail(g, debug)
    g.label("L_end")
    if g.prof:
        g(f"s_cmp_ge_u32 s{S_WG}, 256")
        g("s_cbranch_scc1 L_end2")
        g("s_waitcnt vmcnt(0)")
        g.stamp(15)
        g("s_mov_b64 exec, 1")
        g(f"s_lshl_b32 s{S_A}, s{S_WG}, 3")
        g(f"s_add_u32 s{S_A}, s{S_A}, s{S_WAVE}")
        g(f"s_lshl_b32 s{S_A}, s{S_A}, 7")
        g(f"s_add_u32 s{S_A}, s{S_A}, {WS_DBG+0x100000:#x}")
        g("v_mov_b32 v1, 0")
        for i, sl in enumerate(STAMP_SLOTS):
            g(f"v_mov_b32 v{16+i}, s{sl}")
            g(f"buffer_store_dword v{16+i}, v1, {S4(S_WS)}, s{S_A} offen offset:{i*4}")
        g.label("L_end2")
    g("s_endpgm")
    return g.L

def tail(g, debug):
    R = 128
    xreduce(g, V_L, V_T0, "v_add_f32", [16, 32])
    g(f"""v_lshlrev_b32 v{V_T0}, 5, v{V_N}
          v_lshl_add_u32 v{V_T0}, v{V_G}, 3, v{V_T0}
          s_lshl_b32 s{S_A}, s{S_WAVE}, 11
          s_add_u32 s{S_A}, s{S_A}, {L_CB}
          v_add_u32 v{V_T0}, s{S_A}, v{V_T0}
          v_add_u32 v{V_T1}, 1024, v{V_T0}""")
    for half in range(2):
        a = V_ACC + 4*half
        g(f"ds_write2_b32 v{V_T0}, v{a}, v{a+2} offset0:{half*128} offset1:{half*128+1}")
        g(f"ds_write2_b32 v{V_T1}, v{a+1}, v{a+3} offset0:{half*128} offset1:{half*128+1}")
    g(f"""s_lshl_b32 s{S_A}, s{S_WAVE}, 4
          s_add_u32 s{S_A}, s{S_A}, {L_STAT}
          v_lshlrev_b32 v{V_T2}, 3, v{V_LANE}
          v_add_u32 v{V_T2}, s{S_A}, v{V_T2}
          s_mov_b64 exec, 3
          ds_write_b64 v{V_T2}, v[{V_M}:{V_L}]
          s_mov_b64 exec, -1""")
    g(f"""v_lshlrev_b32 v{V_T0}, 2, v0
          v_add_u32 v{V_T0}, {L_CB}, v{V_T0}
          v_lshrrev_b32 v{V_T1}, 8, v0
          v_lshlrev_b32 v{V_T1}, 3, v{V_T1}
          v_add_u32 v{V_T1}, {L_STAT}, v{V_T1}
          v_bfe_u32 v{V_T2}, v{V_LANE}, 2, 2
          v_lshrrev_b32 v{V_T3}, 1, v{V_T2}
          v_and_b32 v{V_T4}, 1, v{V_G}
          v_lshlrev_b32 v{V_T4}, 1, v{V_T4}
          v_xor_b32 v{V_T3}, v{V_T3}, v{V_T4}
          s_and_b32 s{S_A}, s{S_WAVE}, 3
          v_xor_b32 v{V_T3}, s{S_A}, v{V_T3}
          v_mul_u32_u24 v{V_T4}, 7168, v{V_G}
          v_lshl_add_u32 v{V_T4}, v{V_T2}, 7, v{V_T4}
          v_and_b32 v{V_T2}, 3, v{V_LANE}
          v_lshl_add_u32 v{V_T4}, v{V_T2}, 3, v{V_T4}
          s_lshr_b32 s{S_A}, s{S_WAVE}, 2
          s_lshl_b32 s{S_A}, s{S_A}, 10
          v_add_u32 v{V_T4}, s{S_A}, v{V_T4}
          v_lshl_add_u32 v{V_A}, v{V_T3}, 5, v{V_T4}
          v_xor_b32 v{V_T3}, 2, v{V_T3}
          v_lshl_add_u32 v{V_A+1}, v{V_T3}, 5, v{V_T4}
          v_add_u32 v{V_A+1}, 512, v{V_A+1}
          v_add_u32 v{V_A+2}, 57344, v{V_A}
          v_add_u32 v{V_A+3}, 57344, v{V_A+1}
          s_waitcnt lgkmcnt(0)
          s_barrier""")
    g.stamp(6)
    for w in range(8):
        g(f"ds_read_b64 v[{16+2*w}:{17+2*w}], v{V_T1} offset:{w*16}")
    for w in range(8):
        g(f"ds_read_b32 v{32+w}, v{V_T0} offset:{w*2048}")
    g("s_waitcnt lgkmcnt(8)")
    g(f"""v_max3_f32 v{V_T0}, v16, v18, v20
          v_max3_f32 v{V_T1}, v22, v24, v26
          v_max3_f32 v{V_T0}, v{V_T0}, v28, v30
          v_max_f32 v{V_T0}, v{V_T0}, v{V_T1}""")
    for w in range(8): g(f"v_sub_f32 v{16+2*w}, v{16+2*w}, v{V_T0}")
    for w in range(8): g(f"v_mul_f32 v{16+2*w}, s{S_C}, v{16+2*w}")
    for w in range(8): g(f"v_exp_f32 v{16+2*w}, v{16+2*w}")
    g("s_waitcnt lgkmcnt(0)")
    g(f"""v_mul_f32 v{V_T1}, v16, v17
          v_mul_f32 v{V_T2}, v16, v32""")
    for w in range(1, 8):
        g(f"v_fma_f32 v{V_T1}, v{16+2*w}, v{17+2*w}, v{V_T1}")
        g(f"v_fma_f32 v{V_T2}, v{16+2*w}, v{32+w}, v{V_T2}")
    g(f"""v_rcp_f32 v{V_T3}, v{V_T1}
          v_log_f32 v{V_T4}, v{V_T1}
          s_mul_i32 s{S_A}, s{S_S}, 508
          s_sub_u32 s{S_A}, 2048, s{S_A}
          v_mul_f32 v40, v{V_T2}, v{V_T3}
          v_fma_f32 v42, v{V_T0}, s{S_C}, v{V_T4}""")
    canon(g, 40); canon(g, 42)
    g(f"""buffer_store_dword v40, v{V_IN1}, {S4(S_WS)}, 0 offen sc1
          v_and_b32 v{V_T1}, 127, v0
          v_cmp_eq_u32 vcc, 0, v{V_T1}
          s_and_saveexec_b64 s[{S_EX}:{S_EX+1}], vcc
          s_cbranch_execz L_t1s
          buffer_store_dword v42, v{V_IN1}, {S4(S_WS)}, s{S_A} offen sc1""")
    g.label("L_t1s")
    g(f"s_mov_b64 exec, s[{S_EX}:{S_EX+1}]")
    for q in range(4):
        for ks in range(4):
            a1, a2 = (V_A, V_A+1) if ks < 2 else (V_A+2, V_A+3)
            off = (ks & 1) * 28672 + q * 2048
            r = R + (q*4 + ks) * 4
            g(f"ds_read_b64_tr_b16 v[{r}:{r+1}], v{a1} offset:{off}")
            g(f"ds_read_b64_tr_b16 v[{r+2}:{r+3}], v{a2} offset:{off}")
    g.stamp(7)
    g(f"""s_lshl_b32 s{S_Cx}, s{S_WG}, 13
          s_add_u32 s{S_Cx}, s{S_Cx}, {WS_IN:#x}
          s_cmp_ge_u32 s{S_WAVE}, 2
          s_cbranch_scc1 L_t2b
          v_lshlrev_b32 v{V_T0}, 2, v0
          v_mov_b32 v{V_T1}, 2048""")
    g.label("L_p1")
    for s in range(4):
        g(f"buffer_load_dword v{16+s}, v{V_T0}, {S4(S_WS)}, s{S_Cx} offen offset:{s*512} sc1")
    g(f"""buffer_load_dwordx4 v[24:27], v{V_T1}, {S4(S_WS)}, s{S_Cx} offen sc1
          s_waitcnt vmcnt(0)
          v_max3_u32 v{V_T2}, v16, v17, v18
          v_max3_u32 v{V_T3}, v19, v24, v25
          v_max3_u32 v{V_T2}, v{V_T2}, v26, v27
          v_max_u32 v{V_T2}, v{V_T2}, v{V_T3}
          v_cmp_eq_u32 vcc, -1, v{V_T2}""")
    poll_branch(g, "L_p1")
    g(f"""v_max3_f32 v{V_T2}, v24, v25, v26
          v_max_f32 v{V_T2}, v{V_T2}, v27
          v_sub_f32 v24, v24, v{V_T2}
          v_sub_f32 v25, v25, v{V_T2}
          v_sub_f32 v26, v26, v{V_T2}
          v_sub_f32 v27, v27, v{V_T2}
          v_exp_f32 v24, v24
          v_exp_f32 v25, v25
          v_exp_f32 v26, v26
          v_exp_f32 v27, v27
          v_lshlrev_b32 v{V_T0}, 1, v0
          v_add_f32 v{V_T2}, v24, v25
          v_add_f32 v{V_T3}, v26, v27
          v_add_f32 v{V_T2}, v{V_T2}, v{V_T3}
          v_rcp_f32 v{V_T2}, v{V_T2}
          v_mul_f32 v{V_T3}, v24, v16
          v_fma_f32 v{V_T3}, v25, v17, v{V_T3}
          v_fma_f32 v{V_T3}, v26, v18, v{V_T3}
          v_fma_f32 v{V_T3}, v27, v19, v{V_T3}
          v_mul_f32 v{V_T3}, v{V_T3}, v{V_T2}
          v_cvt_pk_bf16_f32 v{V_T3}, v{V_T3}, v{V_T3}
          v_add_u32 v{V_T1}, {L_OF}, v{V_T0}
          ds_write_b16 v{V_T1}, v{V_T3}""")
    if debug & 1:
        g(f"""s_lshl_b32 s{S_A}, s{S_WG}, 8
              s_add_u32 s{S_A}, s{S_A}, {WS_DBG:#x}
              buffer_store_short v{V_T3}, v{V_T0}, {S4(S_WS)}, s{S_A} offen""")
    g.label("L_t2b")
    g(f"""v_lshlrev_b32 v{V_T0}, 4, v{V_G}
          v_add_u32 v{V_T0}, {L_OF}, v{V_T0}
          v_cmp_eq_u32 vcc, 1, v{V_G}
          v_cmp_eq_u32 s[{S_A}:{S_A+1}], 2, v{V_G}
          v_cmp_eq_u32 s[{S_EX}:{S_EX+1}], 3, v{V_G}
          s_waitcnt lgkmcnt(0)
          s_barrier""")
    g.stamp(8)
    for ks in range(4):
        g(f"ds_read_b128 {vr(16+4*ks)}, v{V_T0} offset:{ks*64}")
    g(f"v_lshlrev_b32 v{V_T0}, 2, v0")
    g(f"v_add_u32 v{V_T0}, 4096, v{V_T0}")
    for ks in range(4):
        g(f"s_waitcnt lgkmcnt({3-ks})")
        for q in range(4):
            c = "0" if ks == 0 else vr(32+4*q)
            g(f"v_mfma_f32_16x16x32_bf16 {vr(32+4*q)}, {vr(16+4*ks)}, {vr(R+(q*4+ks)*4)}, {c}")
    g.nop(8)
    g(f"""v_cndmask_b32 v48, v32, v36, vcc
          v_cndmask_b32 v48, v48, v40, s[{S_A}:{S_A+1}]
          v_cndmask_b32 v48, v48, v44, s[{S_EX}:{S_EX+1}]""")
    canon(g, 48)
    g(f"buffer_store_dword v48, v{V_IN2}, {S4(S_WS)}, 0 offen sc1")
    g.stamp(9)
    g(f"""v_cmp_gt_u32 s[{S_A}:{S_A+1}], 14, v{V_N}
          s_lshl_b32 s{S_Dx}, s{S_WAVE}, 6
          s_add_u32 s{S_Dx}, s{S_Dx}, {L_P2}
          v_lshl_add_u32 v{V_T1}, v{V_N}, 2, s{S_Dx}""")
    g.label("L_p2")
    g(f"""buffer_load_dword v16, v{V_T0}, {S4(S_WS)}, s{S_Cx} offen sc1
          s_waitcnt vmcnt(0)
          v_cmp_eq_u32 vcc, -1, v16
          s_and_b64 vcc, vcc, s[{S_A}:{S_A+1}]""")
    poll_branch(g, "L_p2", "scc0")
    xreduce(g, 16, 18, "v_add_f32", [16, 32])
    g(f"""s_mov_b64 exec, 0xffff
          ds_write_b32 v{V_T1}, v16
          s_mov_b64 exec, -1""")
    srd(g, S_T, P_X, 7168)
    g(f"""s_mul_i32 s{S_A}, s{S_B}, 896
          s_mul_i32 s{S_Bx}, s{S_I}, 28
          s_add_u32 s{S_A}, s{S_A}, s{S_Bx}
          v_lshlrev_b32 v{V_T5}, 1, v{V_N}
          v_lshlrev_b32 v{V_T0}, 4, v0
          v_and_b32 v{V_T1}, 1, v0
          v_cmp_eq_u32 s[{S_EX}:{S_EX+1}], 1, v{V_T1}
          v_lshrrev_b32 v{V_T2}, 6, v0
          v_mul_u32_u24 v{V_T2}, 896, v{V_T2}
          v_bfe_u32 v{V_T3}, v0, 1, 3
          v_lshlrev_b32 v{V_T3}, 2, v{V_T3}
          v_bfe_u32 v{V_T4}, v0, 4, 2
          v_add_u32 v{V_T3}, v{V_T3}, v{V_T4}
          v_mul_u32_u24 v{V_T3}, 28, v{V_T3}
          v_add_u32 v{V_T2}, v{V_T2}, v{V_T3}
          v_lshl_add_u32 v{V_T2}, v{V_T1}, 4, v{V_T2}
          v_add_u32 v{V_T2}, {L_HIMG}, v{V_T2}
          s_mov_b32 s{S_Cx}, {WS_H:#x}
          s_cmp_eq_u32 s{S_WAVE}, 0
          s_cbranch_scc0 L_t4b
          buffer_load_ushort v40, v{V_T5}, {S4(S_T)}, s{S_A} offen""")
    g.label("L_t4b")
    g(f"""s_waitcnt lgkmcnt(0)
          s_barrier
          s_cmp_eq_u32 s{S_WAVE}, 0
          s_cbranch_scc0 L_t5
          v_lshlrev_b32 v{V_T3}, 2, v{V_N}
          v_add_u32 v{V_T3}, {L_P2}, v{V_T3}""")
    for w in range(8):
        g(f"ds_read_b32 v{16+w}, v{V_T3} offset:{w*64}")
    g(f"""s_lshl_b32 s{S_A}, s{S_WG}, 5
          s_add_u32 s{S_A}, s{S_A}, {WS_H:#x}
          s_waitcnt lgkmcnt(0)
          v_add_f32 v16, v16, v17
          v_add_f32 v18, v18, v19
          v_add_f32 v20, v20, v21
          v_add_f32 v22, v22, v23
          v_add_f32 v16, v16, v18
          v_add_f32 v20, v20, v22
          v_add_f32 v16, v16, v20""")
    bf16_round(g, 16, 16)
    g(f"""s_waitcnt vmcnt(0)
          v_lshlrev_b32 v40, 16, v40
          v_add_f32 v16, v16, v40
          s_nop 1
          v_mov_b32_dpp v17, v16 quad_perm:[1,1,3,3] row_mask:0xf bank_mask:0xf
          v_cvt_pk_bf16_f32 v16, v16, v17""")
    canon(g, 16)
    g(f"""s_mov_b64 exec, 0x1555
          buffer_store_dword v16, v{V_T5}, {S4(S_WS)}, s{S_A} offen sc1
          s_mov_b64 exec, -1""")
    g.label("L_t5")
    g.stamp(10)
    g(f"""s_min_u32 s{S_A}, s{S_J}, s{S_CS}
          s_cmp_ge_u32 s{S_A}, 112
          s_cbranch_scc1 L_end""")
    g(f"""v_bfe_u32 v{V_T3}, v{V_LANE}, 2, 2
          v_and_b32 v{V_T4}, 3, v{V_LANE}
          s_cmp_ge_u32 s{S_J}, 112
          s_cbranch_scc1 L_plwd
          v_lshlrev_b32 v{V_T5}, 8, v{V_G}
          v_lshl_add_u32 v{V_T5}, v{V_T3}, 5, v{V_T5}
          v_lshl_add_u32 v{V_T5}, v{V_T4}, 3, v{V_T5}
          s_lshl_b32 s{S_A}, s{S_WAVE}, 11
          s_add_u32 s{S_A}, s{S_A}, {L_WD}
          v_add_u32 v{V_T5}, s{S_A}, v{V_T5}""")
    for m in range(2):
        for ks in range(2):
            r = R + m*8 + ks*4
            g(f"ds_read_b64_tr_b16 v[{r}:{r+1}], v{V_T5} offset:{m*14336+ks*1024}")
            g(f"ds_read_b64_tr_b16 v[{r+2}:{r+3}], v{V_T5} offset:{m*14336+ks*1024+128}")
    g("s_branch L_pldone")
    g.label("L_plwd")
    g(f"""v_lshlrev_b32 v{V_T5}, 7, v{V_G}
          v_lshl_add_u32 v{V_T5}, v{V_T3}, 4, v{V_T5}
          v_lshl_add_u32 v{V_T5}, v{V_T4}, 3, v{V_T5}
          s_mul_i32 s{S_A}, s{S_WAVE}, {7*512}
          s_add_u32 s{S_A}, s{S_A}, {L_WD}
          v_add_u32 v{V_T5}, s{S_A}, v{V_T5}""")
    for ks in range(7):
        g(f"ds_read_b64_tr_b16 v[{R+4*ks}:{R+4*ks+1}], v{V_T5} offset:{ks*512}")
        g(f"ds_read_b64_tr_b16 v[{R+4*ks+2}:{R+4*ks+3}], v{V_T5} offset:{ks*512+64}")
    g.label("L_pldone")
    g.label("L_p3")
    g(f"""buffer_load_dwordx4 v[16:19], v{V_T0}, {S4(S_WS)}, s{S_Cx} offen sc1
          s_waitcnt vmcnt(0)
          v_cndmask_b32 v20, v19, 0, s[{S_EX}:{S_EX+1}]
          v_max3_u32 v{V_T3}, v16, v17, v18
          v_max_u32 v{V_T3}, v{V_T3}, v20
          v_cmp_eq_u32 vcc, -1, v{V_T3}""")
    poll_branch(g, "L_p3")
    g(f"""ds_write2_b32 v{V_T2}, v16, v17 offset0:0 offset1:1
          ds_write_b32 v{V_T2}, v18 offset:8
          s_andn2_b64 exec, exec, s[{S_EX}:{S_EX+1}]
          ds_write_b32 v{V_T2}, v19 offset:12
          s_mov_b64 exec, -1
          s_mul_i32 s{S_A}, s{S_WAVE}, 896
          v_lshlrev_b32 v{V_M}, 4, v{V_LANE}
          v_add_u32 v{V_M}, s{S_A}, v{V_M}
          v_add_u32 v{V_L}, {L_HIMG}, v{V_M}
          v_mov_b32 v16, 0
          v_mov_b32 v17, 0
          v_mov_b32 v18, 0
          v_mov_b32 v19, 0
          s_mov_b32 s{S_EX}, -1
          s_mov_b32 s{S_EX+1}, 0x00ffffff
          s_waitcnt lgkmcnt(0)
          s_barrier""")
    g.stamp(11)
    g(f"s_cmp_ge_u32 s{S_J}, 112")
    g("s_cbranch_scc1 L_t8")
    g(f"""s_mov_b64 exec, s[{S_EX}:{S_EX+1}]
          ds_read_b128 v[16:19], v{V_L}
          s_mov_b64 exec, -1
          s_waitcnt lgkmcnt(0)""")
    for i in range(4):
        g(f"v_lshlrev_b32 v{24+2*i}, 16, v{16+i}")
        g(f"v_and_b32 v{25+2*i}, s{S_HIM}, v{16+i}")
    g(f"""v_pk_add_f32 v[{V_T0}:{V_T1}], v[24:25], v[26:27]
          v_pk_add_f32 v[{V_T2}:{V_T3}], v[28:29], v[30:31]
          v_pk_add_f32 v[{V_T0}:{V_T1}], v[{V_T0}:{V_T1}], v[{V_T2}:{V_T3}]
          v_add_f32 v{V_T0}, v{V_T0}, v{V_T1}""")
    xreduce(g, V_T0, V_T1, "v_add_f32", [1, 2, 4, 8, 16, 32])
    g(f"""v_mul_f32 v{V_T4}, {f32bits(1.0/448.0):#x}, v{V_T0}
          v_mul_f32 v{V_T5}, {f32bits(1.0/448.0):#x}, v{V_T0}""")
    for i in range(4):
        g(f"v_pk_add_f32 v[{24+2*i}:{25+2*i}], v[{24+2*i}:{25+2*i}], v[{V_T4}:{V_T5}] neg_lo:[0,1] neg_hi:[0,1]")
    g(f"""v_pk_mul_f32 v[{V_T0}:{V_T1}], v[24:25], v[24:25]
          v_pk_mul_f32 v[{V_T2}:{V_T3}], v[26:27], v[26:27]
          v_pk_fma_f32 v[{V_T0}:{V_T1}], v[28:29], v[28:29], v[{V_T0}:{V_T1}]
          v_pk_fma_f32 v[{V_T2}:{V_T3}], v[30:31], v[30:31], v[{V_T2}:{V_T3}]
          s_not_b64 exec, s[{S_EX}:{S_EX+1}]
          v_mov_b32 v{V_T0}, 0
          v_mov_b32 v{V_T1}, 0
          v_mov_b32 v{V_T2}, 0
          v_mov_b32 v{V_T3}, 0
          s_mov_b64 exec, -1""")
    ln_finish(g, [1, 2, 4, 8, 16, 32])
    ln_apply(g, 16, 4, 32)
    g(f"""v_add_u32 v{V_L}, {L_HN}, v{V_M}
          s_mov_b64 exec, s[{S_EX}:{S_EX+1}]
          ds_write_b128 v{V_L}, v[16:19]
          s_mov_b64 exec, -1
          v_and_b32 v{V_T0}, 7, v{V_LANE}
          v_mul_u32_u24 v{V_T0}, 896, v{V_T0}
          v_lshl_add_u32 v{V_T0}, v{V_G}, 4, v{V_T0}
          s_lshl_b32 s{S_A}, s{S_WAVE}, 7
          s_add_u32 s{S_A}, s{S_A}, {L_HN}
          v_add_u32 v{V_T0}, s{S_A}, v{V_T0}
          v_lshlrev_b32 v{V_T1}, 7, v{V_G}
          v_lshl_add_u32 v{V_T1}, v{V_N}, 4, v{V_T1}
          s_lshl_b32 s{S_A}, s{S_WAVE}, 10
          s_add_u32 s{S_A}, s{S_A}, {L_WO}
          v_add_u32 v{V_T5}, s{S_A}, v{V_T1}
          s_mov_b32 s{S_EX}, 0x00ff00ff
          s_mov_b32 s{S_EX+1}, 0x00ff00ff
          s_waitcnt lgkmcnt(0)
          s_barrier""")
    g.stamp(12)
    g(f"s_cmp_eq_u32 s{S_WAVE}, 7")
    g("s_cbranch_scc1 L_t7b")
    g(f"""ds_read_b128 v[16:19], v{V_T0}
          ds_read_b128 v[20:23], v{V_T0} offset:64
          s_waitcnt lgkmcnt(1)
          v_mfma_f32_16x16x32_bf16 v[24:27], {vr(R)}, v[16:19], 0
          v_mfma_f32_16x16x32_bf16 v[28:31], {vr(R+8)}, v[16:19], 0
          s_waitcnt lgkmcnt(0)
          v_mfma_f32_16x16x32_bf16 v[24:27], {vr(R+4)}, v[20:23], v[24:27]
          v_mfma_f32_16x16x32_bf16 v[28:31], {vr(R+12)}, v[20:23], v[28:31]
          s_mov_b64 exec, s[{S_EX}:{S_EX+1}]""")
    g.nop(8)
    g(f"""ds_write_b128 v{V_T5}, v[24:27]
          ds_write_b128 v{V_T5}, v[28:31] offset:512
          s_mov_b64 exec, -1""")
    g.label("L_t7b")
    g(f"""s_waitcnt lgkmcnt(0)
          s_barrier
          s_cmp_eq_u32 s{S_WAVE}, 7
          s_cbranch_scc0 L_end
          v_add_u32 v{V_T0}, {L_WO}, v{V_T1}""")
    for w in range(7):
        g(f"ds_read_b128 {vr(16+8*w)}, v{V_T0} offset:{w*1024}")
        g(f"ds_read_b128 {vr(20+8*w)}, v{V_T0} offset:{w*1024+512}")
    g(f"""s_lshl_b32 s{S_A}, s{S_J}, 8
          s_add_u32 s{S_A}, s{S_A}, {WS_HH:#x}
          v_lshlrev_b32 v{V_T0}, 5, v{V_N}
          v_lshl_add_u32 v{V_T0}, v{V_G}, 3, v{V_T0}
          s_waitcnt lgkmcnt(0)""")
    for w in range(1, 7):
        for q in range(4):
            g(f"v_pk_add_f32 v[{16+2*q}:{17+2*q}], v[{16+2*q}:{17+2*q}], v[{16+8*w+2*q}:{17+8*w+2*q}]")
    for r in range(8):
        bf16_round(g, 16+r, 16+r)
    g(f"""v_pk_mul_f32 v[16:17], v[16:17], v[20:21]
          v_pk_mul_f32 v[18:19], v[18:19], v[22:23]
          v_cvt_pk_bf16_f32 v16, v16, v17
          v_cvt_pk_bf16_f32 v17, v18, v19""")
    canon(g, 16); canon(g, 17)
    g(f"""s_mov_b64 exec, s[{S_EX}:{S_EX+1}]
          buffer_store_dwordx2 v[16:17], v{V_T0}, {S4(S_WS)}, s{S_A} offen sc1
          s_mov_b64 exec, -1""")
    g.stamp(13)
    g("s_branch L_end")
    g.label("L_t8")
    g(f"""v_and_b32 v{V_T0}, 7, v{V_LANE}
          v_lshlrev_b32 v{V_T0}, 5, v{V_T0}
          v_lshrrev_b32 v{V_T1}, 1, v{V_G}
          v_lshl_add_u32 v{V_T0}, v{V_T1}, 8, v{V_T0}
          v_and_b32 v{V_T1}, 1, v{V_G}
          v_lshl_add_u32 v{V_T0}, v{V_T1}, 4, v{V_T0}
          s_mul_i32 s{S_A}, s{S_WAVE}, {7*512}
          s_add_u32 s{S_A}, s{S_A}, {WS_HH:#x}
          v_lshlrev_b32 v{V_T1}, 4, v{V_LANE}
          s_lshl_b32 s{S_Bx}, s{S_WAVE}, 9
          s_add_u32 s{S_Bx}, s{S_Bx}, {L_WO}
          v_add_u32 v{V_T1}, s{S_Bx}, v{V_T1}""")
    g.label("L_p4")
    for ks in range(7):
        g(f"buffer_load_dwordx4 {vr(16+4*ks)}, v{V_T0}, {S4(S_WS)}, s{S_A} offen offset:{ks*512} sc1")
    g("s_waitcnt vmcnt(0)")
    g(f"v_max3_u32 v{V_T2}, v16, v17, v18")
    for i in range(19, 44, 2):
        if i + 1 <= 43:
            g(f"v_max3_u32 v{V_T2}, v{V_T2}, v{i}, v{i+1}")
        else:
            g(f"v_max_u32 v{V_T2}, v{V_T2}, v{i}")
    g(f"v_cmp_eq_u32 vcc, -1, v{V_T2}")
    poll_branch(g, "L_p4")
    g.stamp(14)
    for ks in range(7):
        c = "0" if ks == 0 else "v[48:51]"
        g(f"v_mfma_f32_16x16x32_bf16 v[48:51], {vr(16+4*ks)}, {vr(R+4*ks)}, {c}")
    g("s_mov_b32 exec_hi, 0")
    g.nop(8)
    g(f"""ds_write_b128 v{V_T1}, v[48:51]
          s_mov_b64 exec, -1
          v_lshlrev_b32 v{V_T0}, 4, v{V_LANE}
          v_mul_u32_u24 v{V_T1}, {4*896}, v{V_G}
          v_lshl_add_u32 v{V_T1}, v{V_N}, 1, v{V_T1}
          s_lshl_b32 s{S_A}, s{S_CS}, 4
          v_add_u32 v{V_T1}, s{S_A}, v{V_T1}
          v_add_u32 v{V_T2}, {L_HIMG}, v{V_T1}
          s_waitcnt lgkmcnt(0)
          s_barrier
          s_cmp_eq_u32 s{S_WAVE}, 0
          s_cbranch_scc0 L_end""")
    for w in range(8):
        g(f"ds_read_b128 {vr(16+4*w)}, v{V_T0} offset:{L_WO+w*512}")
    g("s_mov_b64 exec, 0x00ff00ff")
    for r in range(4):
        g(f"ds_read_u16 v{48+r}, v{V_T2} offset:{r*896}")
    srd(g, S_T, P_OUT, 7168)
    g("s_waitcnt lgkmcnt(0)")
    for w in range(1, 8):
        g(f"v_pk_add_f32 v[16:17], v[16:17], v[{16+4*w}:{17+4*w}]")
        g(f"v_pk_add_f32 v[18:19], v[18:19], v[{18+4*w}:{19+4*w}]")
    for r in range(4):
        bf16_round(g, 16+r, 16+r)
        g(f"v_lshlrev_b32 v{48+r}, 16, v{48+r}")
        g(f"v_add_f32 v{16+r}, v{16+r}, v{48+r}")
        g(f"v_cvt_pk_bf16_f32 v{16+r}, v{16+r}, v{16+r}")
        g(f"buffer_store_short v{16+r}, v{V_T1}, {S4(S_T)}, 0 offen offset:{r*896}")

def emit(path, kname, debug=0):
    hdr = open("cdna_kernels/" + NAME + ".s.ref").read().split("\n")
    out = []
    for line in hdr:
        if line.startswith("; @launch"):
            out.append(f"; @launch grid=(256,1,1) block=(512,1,1) lds={LDS_BYTES}")
            break
        out.append(line)
    out.append('.amdgcn_target "amdgcn-amd-amdhsa--gfx950"')
    out.append(".text")
    out.append(f".globl {kname}")
    out.append(".p2align 8")
    out.append(f".type {kname},@function")
    out.append(f"{kname}:")
    out += gen(debug)
    out.append('.section .rodata,"a"')
    out.append(".p2align 6")
    out.append(f".amdhsa_kernel {kname}")
    out.append("""  .amdhsa_next_free_vgpr 256
  .amdhsa_next_free_sgpr 102
  .amdhsa_accum_offset 256
  .amdhsa_group_segment_fixed_size 0
  .amdhsa_kernarg_size 96
  .amdhsa_user_sgpr_count 2
  .amdhsa_user_sgpr_kernarg_segment_ptr 1
  .amdhsa_system_sgpr_workgroup_id_x 1
  .amdhsa_float_denorm_mode_32 3
.end_amdhsa_kernel""")
    open(path, "w").write("\n".join(out) + "\n")

if __name__ == "__main__":
    debug = int(sys.argv[1]) if len(sys.argv) > 1 else 0
    path = sys.argv[2] if len(sys.argv) > 2 else "cdna_kernels/" + NAME + ".s"
    emit(path, NAME + "_kernel", debug)
```

```python
import sys, struct, os
STATIC = int(os.environ.get('STATIC', '1'))
NOW = int(os.environ.get('NOW', '0'))

NAME = "sequential_preLN__gqa_block_cached__glu_gated_bilinear__decode"
def f32bits(x): return struct.unpack("<I", struct.pack("<f", x))[0]

WS_Q   = 0x000000
WS_IN  = 0x100000
O_GO, O_IN2 = 2176, 2304
WS_H   = 0x400000
WS_HH  = 0x410000
WS_TC  = 0x420000
WS_DBG = 0x1000000
WS_BYTES = 0x2000000
L_WO  = 0
L_WD  = 114688
L_SCR = 143360
L_CB  = L_SCR
L_HIMG = L_SCR
L_HN  = L_SCR + 7168
L_QP  = L_SCR + 16384
L_PART = L_SCR + 14336
L_STAT = L_SCR + 16384
L_OF  = L_SCR + 16512
L_P2  = L_SCR + 16768
L_QIMG = L_SCR + 18432
L_FLAG = L_SCR + 19456
L_HHL = L_SCR + 19520
LDS_BYTES = 163840
C_SC = 1.4426950408889634 / 16.0

STAMP_SLOTS = [4,5,6,7,63,89,92,93,94,95,96,97,98,99,100,101]
class G:
    def __init__(self):
        self.L = []; self.prof = 0
    def __call__(self, s):
        for line in s.strip().split("\n"):
            line = line.strip()
            if line: self.L.append("  " + line)
    def label(self, l): self.L.append(l + ":")
    def nop(self, n=1):
        while n > 0:
            k = min(n, 16); self.L.append(f"  s_nop {k-1}"); n -= k
    def stamp(self, i):
        if self.prof:
            self.L.append("  s_memrealtime s[90:91]")
            self.L.append("  s_waitcnt lgkmcnt(0)")
            self.L.append(f"  s_mov_b32 s{STAMP_SLOTS[i]}, s90")

def vr(a, n=4): return f"v[{a}:{a+n-1}]"
def S4(s): return f"s[{s}:{s+3}]"

V_LANE, V_N, V_G = 1, 2, 3
V_K0, V_K1, V_V0, V_V1 = 4, 5, 6, 7
V_IN1, V_IN2 = 8, 9
V_T0, V_T1, V_T2, V_T3, V_T4, V_T5 = 10, 11, 12, 13, 14, 15
V_Q = 16; V_ACC = 48; V_S = 56; V_P = 64; V_GU = 68
V_M, V_L, V_AL, V_NMC = 76, 77, 78, 79
V_A = 80; V_B = 112
R_K0, R_K1, R_V0, R_V1 = 128, 160, 192, 224
S_WG, S_WAVE = 2, 3
S_K, S_V, S_WS, S_T, S_T2 = 8, 12, 16, 20, 24
S_OFF, S_BASE = 28, 29
S_HKV, S_B, S_S, S_R = 30, 31, 32, 33
S_C, S_SELLO, S_SELHI = 34, 35, 60
P_X, P_K, P_V, P_WQ, P_WO, P_BX, P_WG, P_WU, P_WD, P_OUT, P_DBG, P_WS = [36 + 2*i for i in range(12)]
S_MASK = 64
S_A, S_Bx, S_Cx, S_Dx = 80, 81, 82, 83
S_EX = 84
S_HIM, S_I, S_POLL = 86, 87, 88
S_J, S_CS = 61, 62
S_QP = 29 + 0
S_TC = P_K
S_NEXT, S_NEXT2 = P_V, P_V + 1

def srd(g, s, p, nbytes):
    g(f"""s_mov_b32 s{s}, s{p}
          s_and_b32 s{s+1}, s{p+1}, 0xffff
          s_mov_b32 s{s+2}, {nbytes}
          s_mov_b32 s{s+3}, 0x20000""")

def bf16_round(g, d, s):
    g(f"v_cvt_pk_bf16_f32 v{d}, v{s}, v{s}")
    g(f"v_lshlrev_b32 v{d}, 16, v{d}")

def xreduce(g, v, t, op, steps):
    for st in steps:
        if st in (1, 2, 4, 8):
            mod = {1: "quad_perm:[1,0,3,2]", 2: "quad_perm:[2,3,0,1]", 4: "row_ror:4", 8: "row_ror:8"}[st]
            g.nop(2); g(f"{op}_dpp v{v}, v{v}, v{v} {mod} row_mask:0xf bank_mask:0xf")
        else:
            g(f"v_mov_b32 v{t}, v{v}"); g.nop(2)
            g(f"v_permlane{st}_swap_b32 v{v}, v{t}"); g.nop(1)
            g(f"{op} v{v}, v{v}, v{t}")

def poll_branch(g, lab, cond="vccz"):
    g(f"""s_cbranch_{cond} {lab}_ok
          s_sub_u32 s{S_POLL}, s{S_POLL}, 1
          s_cmp_eq_u32 s{S_POLL}, 0
          s_cbranch_scc1 L_end
          s_branch {lab}""")
    g.label(lab + "_ok")

def canon(g, v, t=None):
    g(f"v_min_u32 v{v}, 0xfffffffe, v{v}")

def k_loads(g, which):
    vo, r = (V_K0, R_K0) if which == 0 else (V_K1, R_K1)
    for j in range(8):
        g(f"buffer_load_dwordx4 {vr(r+4*j)}, v{vo}, {S4(S_K)}, s{S_OFF} offen offset:{j*64} nt")

def v_loads(g, half):
    r = R_V0 if half == 0 else R_V1
    for j in range(8):
        vo = V_V0 if j < 4 else V_V1
        g(f"buffer_load_dwordx4 {vr(r+4*j)}, v{vo}, {S4(S_V)}, s{S_OFF} offen offset:{(j&3)*512+half*256} nt")

def tile_body(g, nwait, loads):
    for t, r in ((0, R_K0), (1, R_K1)):
        g(f"s_waitcnt vmcnt({nwait[t]})")
        s = V_S + 4*t
        for j in range(8):
            c = "0" if j == 0 else vr(s)
            g(f"v_mfma_f32_16x16x32_bf16 {vr(s)}, {vr(r+4*j)}, {vr(V_Q+4*j)}, {c}")
        if loads: k_loads(g, t)
        elif t == 1: g.nop(8)
    S = [V_S + i for i in range(8)]
    for i in range(4):
        g(f"v_cvt_pk_bf16_f32 v{V_P+i}, v{S[2*i]}, v{S[2*i+1]}")
    for i in range(4):
        g(f"v_lshlrev_b32 v{S[2*i]}, 16, v{V_P+i}")
        g(f"v_and_b32 v{S[2*i+1]}, s{S_HIM}, v{V_P+i}")
    g(f"""v_max3_f32 v{V_T0}, v{S[0]}, v{S[1]}, v{S[2]}
          v_max3_f32 v{V_T1}, v{S[3]}, v{S[4]}, v{S[5]}
          v_max3_f32 v{V_T0}, v{V_T0}, v{S[6]}, v{S[7]}
          v_max_f32 v{V_T0}, v{V_T0}, v{V_T1}""")
    xreduce(g, V_T0, V_T1, "v_max_f32", [16, 32])
    g(f"""v_max_f32 v{V_T0}, v{V_T0}, v{V_M}
          v_sub_f32 v{V_AL}, v{V_M}, v{V_T0}
          v_mul_f32 v{V_AL}, s{S_C}, v{V_AL}
          v_exp_f32 v{V_AL}, v{V_AL}
          v_mov_b32 v{V_M}, v{V_T0}
          v_mul_f32 v{V_NMC}, s{S_C}, v{V_T0}""")
    for i in range(8):
        g(f"v_fma_f32 v{S[i]}, v{S[i]}, s{S_C}, -v{V_NMC}")
    for i in range(8):
        g(f"v_exp_f32 v{S[i]}, v{S[i]}")
    for r in range(8):
        qp = "[0,0,2,2]" if (r & 1) == 0 else "[1,1,3,3]"
        g(f"v_mul_f32_dpp v{V_ACC+r}, v{V_AL}, v{V_ACC+r} quad_perm:{qp} row_mask:0xf bank_mask:0xf")
    for i in range(4):
        g(f"v_cvt_pk_bf16_f32 v{V_P+i}, v{S[2*i]}, v{S[2*i+1]}")
    g(f"""v_add_f32 v{V_T0}, v{S[0]}, v{S[1]}
          v_add_f32 v{V_T1}, v{S[2]}, v{S[3]}
          v_add_f32 v{V_T2}, v{S[4]}, v{S[5]}
          v_add_f32 v{V_T3}, v{S[6]}, v{S[7]}
          v_add_f32 v{V_T0}, v{V_T0}, v{V_T1}
          v_add_f32 v{V_T2}, v{V_T2}, v{V_T3}
          v_add_f32 v{V_T0}, v{V_T0}, v{V_T2}
          v_fma_f32 v{V_L}, v{V_L}, v{V_AL}, v{V_T0}""")
    for e in range(8):
        for i in range(4):
            g(f"v_cndmask_b32 v{V_A+4*e+i}, 0, v{V_P+i}, s[{S_MASK+2*e}:{S_MASK+2*e+1}]")
    for half, r in ((0, R_V0), (1, R_V1)):
        g(f"s_waitcnt vmcnt({nwait[2+half]})")
        acc = V_ACC + 4*half
        def perms(e):
            b = V_B + 4*(e & 3); q = e >> 1
            sel = S_SELLO if (e & 1) == 0 else S_SELHI
            for p in range(4):
                g(f"v_perm_b32 v{b+p}, v{r+4*(2*p+1)+q}, v{r+4*(2*p)+q}, s{sel}")
        perms(0); perms(1)
        for e in range(8):
            if e + 2 < 8: perms(e + 2)
            else: g.nop(1)
            g(f"v_mfma_f32_16x16x32_bf16 {vr(acc)}, {vr(V_A+4*e)}, {vr(V_B+4*(e&3))}, {vr(acc)}")
        if loads: v_loads(g, half)
    if not loads: g.nop(8)

def ln_finish(g, steps):
    g(f"""v_pk_add_f32 v[{V_T0}:{V_T1}], v[{V_T0}:{V_T1}], v[{V_T2}:{V_T3}]
          v_add_f32 v{V_T0}, v{V_T0}, v{V_T1}""")
    xreduce(g, V_T0, V_T1, "v_add_f32", steps)
    g(f"v_mul_f32 v{V_T0}, {f32bits(1.0/448.0):#x}, v{V_T0}")
    bf16_round(g, V_T0, V_T0)
    g(f"v_add_f32 v{V_T0}, {f32bits(1e-5):#x}, v{V_T0}")
    bf16_round(g, V_T0, V_T0)
    g(f"v_sqrt_f32 v{V_T0}, v{V_T0}")
    bf16_round(g, V_T4, V_T4)
    bf16_round(g, V_T0, V_T0)
    g(f"""v_rcp_f32 v{V_T2}, v{V_T0}
          v_mov_b32 v{V_T5}, v{V_T4}
          v_mov_b32 v{V_T1}, v{V_T0}
          v_mov_b32 v{V_T3}, v{V_T2}""")

def ln_stats(g, XR, ndw, steps, T):
    def unp(i, t):
        g(f"v_lshlrev_b32 v{t}, 16, v{XR+i}")
        g(f"v_and_b32 v{t+1}, s{S_HIM}, v{XR+i}")
    unp(0, V_T0); unp(1, V_T2)
    for i in range(2, ndw):
        t = T + 2*(i & 1); a = V_T0 + 2*(i & 1)
        unp(i, t)
        g(f"v_pk_add_f32 v[{a}:{a+1}], v[{a}:{a+1}], v[{t}:{t+1}]")
    g(f"""v_pk_add_f32 v[{V_T0}:{V_T1}], v[{V_T0}:{V_T1}], v[{V_T2}:{V_T3}]
          v_add_f32 v{V_T0}, v{V_T0}, v{V_T1}""")
    xreduce(g, V_T0, V_T1, "v_add_f32", steps)
    g(f"""v_mul_f32 v{V_T4}, {f32bits(1.0/448.0):#x}, v{V_T0}
          v_mul_f32 v{V_T5}, {f32bits(1.0/448.0):#x}, v{V_T0}
          v_mov_b32 v{V_T0}, 0
          v_mov_b32 v{V_T1}, 0
          v_mov_b32 v{V_T2}, 0
          v_mov_b32 v{V_T3}, 0""")
    for i in range(ndw):
        t = T + 2*(i & 1); a = V_T0 + 2*(i & 1)
        unp(i, t)
        g(f"v_pk_add_f32 v[{t}:{t+1}], v[{t}:{t+1}], v[{V_T4}:{V_T5}] neg_lo:[0,1] neg_hi:[0,1]")
        g(f"v_pk_fma_f32 v[{a}:{a+1}], v[{t}:{t+1}], v[{t}:{t+1}], v[{a}:{a+1}]")
    ln_finish(g, steps)

def ln_apply(g, X, ndw, T):
    for i in range(ndw):
        a, c, e = T, T+2, T+4
        g(f"""v_lshlrev_b32 v{a}, 16, v{X+i}
              v_and_b32 v{a+1}, s{S_HIM}, v{X+i}
              v_pk_add_f32 v[{a}:{a+1}], v[{a}:{a+1}], v[{V_T4}:{V_T5}] neg_lo:[0,1] neg_hi:[0,1]
              v_cvt_pk_bf16_f32 v{a+1}, v{a}, v{a+1}
              v_lshlrev_b32 v{a}, 16, v{a+1}
              v_and_b32 v{a+1}, s{S_HIM}, v{a+1}
              v_pk_mul_f32 v[{c}:{c+1}], v[{a}:{a+1}], v[{V_T2}:{V_T3}]
              v_pk_fma_f32 v[{e}:{e+1}], v[{c}:{c+1}], v[{V_T0}:{V_T1}], v[{a}:{a+1}] neg_lo:[1,0,0] neg_hi:[1,0,0]
              v_pk_fma_f32 v[{c}:{c+1}], v[{e}:{e+1}], v[{V_T2}:{V_T3}], v[{c}:{c+1}]
              v_cvt_pk_bf16_f32 v{X+i}, v{c}, v{c+1}""")

def dma(g, voff, srdreg, soff, m0reg, fl=""):
    g(f"""s_mov_b32 m0, s{m0reg}
          s_add_u32 s{m0reg}, s{m0reg}, 1024
          buffer_load_dwordx4 v{voff}, {S4(srdreg)}, s{soff} offen {fl} lds""")


def small_dma(g):
    g(f"s_sub_u32 s{S_Cx}, s{S_WAVE}, 4")
    g(f"s_cmp_ge_u32 s{S_CS}, 56")
    g(f"s_cbranch_scc1 L_nowd")
    srd(g, S_T, P_WD, 1792*448*2)
    g(f"""v_mul_u32_u24 v{V_T0}, 896, v{V_LANE}
          s_mul_i32 s{S_A}, s{S_Cx}, {7*64*896}
          s_lshl_b32 s{S_Bx}, s{S_CS}, 4
          s_add_u32 s{S_A}, s{S_A}, s{S_Bx}
          s_mul_i32 s{S_Bx}, s{S_Cx}, 7168
          s_add_u32 s{S_Bx}, s{S_Bx}, {L_WD}""")
    for i in range(7):
        dma(g, V_T0, S_T, S_A, S_Bx)
        g(f"s_add_u32 s{S_A}, s{S_A}, {64*896}")
    g.label(f"L_nowd")
    g(f"""s_cmp_ge_u32 s{S_J}, 112
          s_cbranch_scc1 L_nogu
          s_cmp_ge_u32 s{S_Cx}, 2
          s_cselect_b32 s{S_T}, s{P_WU}, s{P_WG}
          s_cselect_b32 s{S_T+1}, s{P_WU+1}, s{P_WG+1}
          s_and_b32 s{S_T+1}, s{S_T+1}, 0xffff
          s_mov_b32 s{S_T+2}, {448*1792*2}
          s_mov_b32 s{S_T+3}, 0x20000
          v_lshrrev_b32 v{V_T0}, 1, v{V_LANE}
          v_mul_u32_u24 v{V_T0}, 3584, v{V_T0}
          v_and_b32 v{V_T1}, 1, v{V_LANE}
          v_lshl_add_u32 v{V_T0}, v{V_T1}, 4, v{V_T0}
          s_and_b32 s{S_A}, s{S_Cx}, 1
          s_mul_i32 s{S_A}, s{S_A}, {224*3584}
          s_lshl_b32 s{S_Bx}, s{S_J}, 5
          s_add_u32 s{S_A}, s{S_A}, s{S_Bx}
          s_mul_i32 s{S_Bx}, s{S_Cx}, 7168
          s_add_u32 s{S_Bx}, s{S_Bx}, {L_WD}""")
    for i in range(7):
        dma(g, V_T0, S_T, S_A, S_Bx)
        g(f"s_add_u32 s{S_A}, s{S_A}, {32*3584}")
    g.label(f"L_nogu")

def wo_dma(g):
    g(f"s_sub_u32 s{S_Cx}, s{S_WAVE}, 4")
    srd(g, S_T, P_WO, 4096*448*2)
    g(f"""v_lshrrev_b32 v{V_T0}, 3, v{V_LANE}
          v_bfe_u32 v{V_T1}, v{V_LANE}, 1, 2
          v_lshrrev_b32 v{V_T2}, 4, v{V_LANE}
          v_xor_b32 v{V_T1}, v{V_T1}, v{V_T2}
          v_mul_u32_u24 v{V_T0}, 896, v{V_T0}
          v_and_b32 v{V_T2}, 1, v{V_LANE}
          v_lshl_add_u32 v{V_T0}, v{V_T2}, 4, v{V_T0}
          v_lshl_add_u32 v{V_T2}, v{V_T1}, 5, v{V_T0}
          v_xor_b32 v{V_T1}, 2, v{V_T1}
          v_lshl_add_u32 v{V_T3}, v{V_T1}, 5, v{V_T0}
          s_lshl_b32 s{S_A}, s{S_I}, 7
          s_lshl_b32 s{S_Bx}, s{S_Cx}, 5
          s_add_u32 s{S_A}, s{S_A}, s{S_Bx}
          s_mul_i32 s{S_A}, s{S_A}, 896
          s_mul_i32 s{S_Bx}, s{S_Cx}, {28*1024}""")
    for kg in range(4):
        for cb7 in range(7):
            dma(g, V_T2 + (kg & 1), S_T, S_A, S_Bx)
            g(f"s_add_u32 s{S_A}, s{S_A}, {128 if cb7 < 6 else 8*896-6*128}")

STAG = int(os.environ.get("STAG", "0"))
BAL = int(os.environ.get("BAL", "1"))
BALS = int(os.environ.get("BALS", "3"))
WARM = int(os.environ.get("WARM", "0"))
WARM0 = int(os.environ.get("WARM0", "0"))
NB1 = 16
def wait_flag(g, tag, off, val):
    g(f"v_mov_b32 v{V_T0}, {L_FLAG}")
    g.label(f"L_wf{tag}")
    g(f"""ds_read_b32 v{V_T1}, v{V_T0} offset:{off}
          s_waitcnt lgkmcnt(0)
          v_cmp_gt_u32 vcc, {val}, v{V_T1}""")
    poll_branch(g, f"L_wf{tag}")

def flag_add(g, off):
    g(f"""v_mov_b32 v{V_T0}, {L_FLAG}
          v_mov_b32 v{V_T1}, 1
          s_mov_b64 exec, 1
          ds_add_u32 v{V_T0}, v{V_T1} offset:{off}
          s_mov_b64 exec, -1""")

def prefetch(g):
    k_loads(g, 0); k_loads(g, 1); v_loads(g, 0); v_loads(g, 1)

def lds_prefetch(g):
    g(f"""s_add_u32 s{S_A}, s{S_OFF}, {8*16384}
          s_lshl_b32 s{S_Bx}, s{S_WAVE}, 15""")
    for which in range(2):
        vo = V_K0 if which == 0 else V_K1
        for j in range(8):
            g(f"""s_mov_b32 m0, s{S_Bx}
                  s_add_u32 s{S_Bx}, s{S_Bx}, {1024-64 if j < 7 else 1024+7*64}
                  buffer_load_dwordx4 v{vo}, {S4(S_K)}, s{S_A} offen offset:{j*64} nt lds""")
    for half in range(2):
        for j in range(8):
            vo = V_V0 if j < 4 else V_V1
            off = (j & 3)*512 + half*256
            idx = half*8 + j + 1
            noff = ((idx & 3)*512 + (idx >> 3)*256) if idx < 16 else 0
            g(f"""s_mov_b32 m0, s{S_Bx}
                  s_add_u32 s{S_Bx}, s{S_Bx}, {(1024 + off - noff) & 0xffffffff:#x}
                  buffer_load_dwordx4 v{vo}, {S4(S_V)}, s{S_A} offen offset:{off} nt lds""")

def q_gather(g):
    g(f"""s_lshl_b32 s{S_A}, s{S_WG}, 13
          s_add_u32 s{S_A}, s{S_A}, {WS_IN+O_GO:#x}
          s_add_u32 s{S_Cx}, s{P_WS}, s{S_A}
          s_addc_u32 s{S_Dx}, s{P_WS+1}, 0
          s_lshl_b32 s{S_A}, s{S_B}, 13
          s_lshl_b32 s{S_Bx}, s{S_HKV}, 10
          s_add_u32 s{S_A}, s{S_A}, s{S_Bx}
          s_lshl_b32 s{S_Bx}, s{S_S}, 16
          s_add_u32 s{S_A}, s{S_A}, s{S_Bx}
          s_sub_u32 s{S_Bx}, s{S_WAVE}, 4
          s_lshl_b32 s{S_Bx}, s{S_Bx}, 8
          s_add_u32 s{S_A}, s{S_A}, s{S_Bx}
          s_add_u32 s{S_EX}, s{P_WS}, s{S_A}
          s_addc_u32 s{S_EX+1}, s{P_WS+1}, 0
          s_add_u32 s{S_Bx}, s{S_Bx}, {L_QIMG}
          v_mov_b32 v{V_T2}, s{S_Bx}""")
    g.label(f"L_pq")
    g(f"""s_load_dword s64, s[{S_Cx}:{S_Dx}], 0 glc
          s_waitcnt lgkmcnt(0)
          s_cmp_lg_u32 s64, -1""")
    poll_branch(g, f"L_pq", "scc1")
    g.stamp(3)
    for rnd in range(2):
        g(f"s_load_dwordx16 s[64:79], s[{S_EX}:{S_EX+1}], {rnd*128} glc")
        g(f"s_load_dwordx16 s[36:51], s[{S_EX}:{S_EX+1}], {rnd*128+64} glc")
        g("s_waitcnt lgkmcnt(0)")
        for i in range(16):
            g(f"v_mov_b32 v{16+rnd*32+i}, s{64+i}")
        for i in range(16):
            g(f"v_mov_b32 v{32+rnd*32+i}, s{36+i}")
    g(f"s_load_dwordx16 s[36:51], s[0:1], 0")
    g("s_mov_b64 exec, 1")
    for u in range(16):
        g(f"ds_write_b128 v{V_T2}, {vr(16+4*u)} offset:{u*16}")
    g("s_mov_b64 exec, -1")
    g("s_waitcnt lgkmcnt(0)")
    flag_add(g, 12)

def gen(debug=0):
    g = G(); g.prof = debug & 2
    g(f"s_cmp_ge_u32 s{S_WG}, 256")
    g("s_cbranch_scc1 L_end")
    g(f"s_load_dwordx16 s[36:51], s[0:1], 0")
    g(f"s_load_dwordx8 s[52:59], s[0:1], 64")
    if WARM0:
        g(f"""s_getpc_b64 s[{S_Cx}:{S_Dx}]
              v_lshlrev_b32 v{V_T0}, 4, v0
              global_load_dwordx4 v[128:131], v{V_T0}, s[{S_Cx}:{S_Dx}]
              v_add_u32 v{V_T0}, 0x2000, v{V_T0}
              global_load_dwordx4 v[132:135], v{V_T0}, s[{S_Cx}:{S_Dx}]""")
    g(f"""v_lshrrev_b32 v{V_T0}, 6, v0
          v_and_b32 v{V_LANE}, 63, v0
          v_and_b32 v{V_N}, 15, v0
          v_bfe_u32 v{V_G}, v0, 4, 2
          v_readfirstlane_b32 s{S_WAVE}, v{V_T0}
          s_and_b32 s{S_HKV}, s{S_WG}, 7
          s_lshr_b32 s{S_R}, s{S_WG}, 3
          s_lshr_b32 s{S_B}, s{S_WG}, 5
          s_and_b32 s{S_S}, s{S_R}, 3
          s_lshl_b32 s{S_I}, s{S_HKV}, 2
          s_add_u32 s{S_I}, s{S_I}, s{S_S}
          s_mov_b32 s{S_C}, {f32bits(C_SC):#x}
          s_mov_b32 s{S_SELLO}, 0x05040100
          s_mov_b32 s{S_SELHI}, 0x07060302
          s_mov_b32 s{S_HIM}, 0xffff0000
          s_mov_b32 s{S_POLL}, 0x100000
          s_mul_i32 s{S_J}, s{S_HKV}, 14
          s_lshl_b32 s{S_A}, s{S_B}, 1
          s_add_u32 s{S_J}, s{S_J}, s{S_A}
          s_add_u32 s{S_J}, s{S_J}, s{S_S}
          s_sub_u32 s{S_J}, s{S_J}, 1
          s_cmp_eq_u32 s{S_B}, 7
          s_cselect_b32 s{S_J}, 0xffff, s{S_J}
          s_cmp_eq_u32 s{S_S}, 0
          s_cselect_b32 s{S_J}, 0xffff, s{S_J}
          s_cmp_eq_u32 s{S_S}, 3
          s_cselect_b32 s{S_J}, 0xffff, s{S_J}
          s_mul_i32 s{S_CS}, s{S_HKV}, 7
          s_add_u32 s{S_CS}, s{S_CS}, s{S_B}
          s_cmp_eq_u32 s{S_B}, 7
          s_cselect_b32 s{S_CS}, 0xffff, s{S_CS}
          s_cmp_lg_u32 s{S_S}, 0
          s_cselect_b32 s{S_CS}, 0xffff, s{S_CS}""")
    g(f"""v_lshlrev_b32 v{V_K0}, 9, v{V_N}
          v_lshl_add_u32 v{V_K0}, v{V_G}, 4, v{V_K0}
          v_add_u32 v{V_K1}, 0x2000, v{V_K0}
          v_lshlrev_b32 v{V_V0}, 11, v{V_G}
          v_lshl_add_u32 v{V_V0}, v{V_N}, 4, v{V_V0}
          v_add_u32 v{V_V1}, 0x2000, v{V_V0}""")
    g(f"""s_lshl_b32 s{S_A}, s{S_B}, 3
          s_add_u32 s{S_A}, s{S_A}, s{S_HKV}
          s_lshl_b32 s{S_BASE}, s{S_A}, 22
          s_lshl_b32 s{S_Bx}, s{S_S}, 20
          s_add_u32 s{S_BASE}, s{S_BASE}, s{S_Bx}
          s_lshl_b32 s{S_Bx}, s{S_WAVE}, 14
          s_add_u32 s{S_OFF}, s{S_BASE}, s{S_Bx}
          s_lshl_b32 s{S_Dx}, s{S_A}, 8
          s_add_u32 s{S_Dx}, s{S_Dx}, {WS_TC:#x}""")
    g(f"""v_mov_b32 v{V_T0}, {L_FLAG}
          v_mov_b32 v16, 0
          v_mov_b32 v17, 0
          v_mov_b32 v18, 0
          v_mov_b32 v19, 0
          s_cmp_eq_u32 s{S_WAVE}, 4
          s_cbranch_scc0 L_nz
          ds_write_b128 v{V_T0}, v[16:19]
          ds_write_b128 v{V_T0}, v[16:19] offset:16
          ds_write_b128 v{V_T0}, v[16:19] offset:32""")
    g.label("L_nz")
    g("s_waitcnt lgkmcnt(0)")
    if g.prof:
        for sl in STAMP_SLOTS: g(f"s_mov_b32 s{sl}, 0")
    g.stamp(0)
    g(f"s_cmp_lt_u32 s{S_WAVE}, 4")
    g("s_cbranch_scc1 L_qphase")
    srd(g, S_K, P_K, 0x10000000)
    srd(g, S_V, P_V, 0x10000000)
    srd(g, S_WS, P_WS, WS_BYTES)
    g("s_setprio 2")
    g("s_barrier")
    prefetch(g)
    g("s_setprio 0")
    g.stamp(2)
    q_gather(g)
    g(f"s_mov_b32 s{S_NEXT}, 256")
    g("s_branch L_qwait")
    g.label("L_qphase")
    S_P = S_NEXT2
    srd(g, S_K, P_K, 0x10000000)
    srd(g, S_V, P_V, 0x10000000)
    srd(g, S_T, P_X, 7168)
    srd(g, S_WS, P_WS, WS_BYTES)
    g(f"""s_add_u32 s{S_P}, s{S_B}, 4
          s_cmp_eq_u32 s{S_S}, 3
          s_cselect_b32 s{S_P}, s{S_P}, 99
          s_cmp_eq_u32 s{S_B}, 7
          s_cselect_b32 s{S_P}, s{S_S}, s{S_P}
          s_cmp_ge_u32 s{S_P}, 8
          s_cbranch_scc1 L_noq""")
    srd(g, S_T2, P_WQ, 448*4096*2)
    XR = 16; XA = 44; WB = 128
    g(f"""v_lshrrev_b32 v{V_T3}, 3, v{V_LANE}
          v_lshlrev_b32 v{V_T3}, 13, v{V_T3}
          v_and_b32 v{V_T4}, 7, v{V_LANE}
          v_lshl_add_u32 v{V_T3}, v{V_T4}, 4, v{V_T3}
          s_lshl_b32 s{S_A}, s{S_WAVE}, 20
          s_lshl_b32 s{S_Bx}, s{S_HKV}, 10
          s_add_u32 s{S_A}, s{S_A}, s{S_Bx}
          s_lshl_b32 s{S_Bx}, s{S_P}, 7
          s_add_u32 s{S_A}, s{S_A}, s{S_Bx}
          s_lshl_b32 s{S_Bx}, s{S_WAVE}, 15""")
    for i in range(16):
        dma(g, V_T3, S_T2, S_A, S_Bx)
        g(f"s_add_u32 s{S_A}, s{S_A}, 0x10000")
    g(f"""v_and_b32 v{V_T0}, 7, v{V_LANE}
          v_mul_u32_u24 v{V_T0}, 896, v{V_T0}
          v_lshrrev_b32 v{V_T1}, 3, v{V_LANE}
          v_lshl_add_u32 v{V_T1}, v{V_T1}, 4, v{V_T0}
          v_lshl_add_u32 v{V_T2}, v{V_G}, 4, v{V_T0}
          s_lshl_b32 s{S_A}, s{S_WAVE}, 8""")
    for t in range(7):
        g(f"buffer_load_dwordx4 {vr(XR+4*t)}, v{V_T1}, {S4(S_T)}, 0 offen offset:{t*128}")
    for ks in range(4):
        g(f"buffer_load_dwordx4 {vr(XA+4*ks)}, v{V_T2}, {S4(S_T)}, s{S_A} offen offset:{ks*64}")
    g.label("L_noq")
    CLR = 124
    g(f"""s_mul_i32 s{S_A}, s{S_B}, 896
          s_mul_i32 s{S_Bx}, s{S_I}, 28
          s_add_u32 s{S_A}, s{S_A}, s{S_Bx}
          v_lshlrev_b32 v{V_T5}, 1, v{V_N}
          buffer_load_ushort v{V_GU}, v{V_T5}, {S4(S_T)}, s{S_A} offen
          v_mov_b32 v{CLR}, -1
          v_mov_b32 v{CLR+1}, -1
          v_mov_b32 v{CLR+2}, -1
          v_mov_b32 v{CLR+3}, -1
          v_lshlrev_b32 v{V_T0}, 4, v0
          s_lshl_b32 s{S_A}, s{S_WG}, 13
          s_add_u32 s{S_A}, s{S_A}, {WS_IN:#x}
          buffer_store_dwordx4 {vr(CLR)}, v{V_T0}, {S4(S_WS)}, s{S_A} offen sc1
          s_cmp_eq_u32 s{S_WAVE}, 3
          s_cbranch_scc0 L_noclr""")
    g(f"""s_add_u32 s{S_A}, s{S_A}, 4096
          s_lshl_b32 s{S_Bx}, s{S_WG}, 7
          s_add_u32 s{S_Bx}, s{S_Bx}, {WS_HH-256:#x}
          s_lshl_b32 s{S_Cx}, s{S_WG}, 5
          s_add_u32 s{S_Cx}, s{S_Cx}, {WS_H-384:#x}
          v_mov_b32 v{V_T1}, s{S_A}
          v_mov_b32 v{V_T2}, s{S_Bx}
          v_cmp_lt_u32 vcc, 15, v{V_LANE}
          v_mov_b32 v{V_T3}, s{S_Cx}
          s_nop 0
          v_cndmask_b32 v{V_T1}, v{V_T1}, v{V_T2}, vcc
          v_cmp_lt_u32 vcc, 23, v{V_LANE}
          v_lshlrev_b32 v{V_T0}, 4, v{V_LANE}
          s_nop 0
          v_cndmask_b32 v{V_T1}, v{V_T1}, v{V_T3}, vcc
          v_add_u32 v{V_T1}, v{V_T1}, v{V_T0}
          s_mov_b64 exec, 0x3ffffff
          buffer_store_dwordx4 {vr(CLR)}, v{V_T1}, {S4(S_WS)}, 0 offen sc1
          s_mov_b64 exec, -1""")
    g.label("L_noclr")
    g("s_barrier")
    g(f"""s_cmp_ge_u32 s{S_P}, 8
          s_cbranch_scc0 L_prod""")
    k_loads(g, 0)
    g("s_waitcnt vmcnt(8)")
    flag_add(g, 4)
    g(f"""s_cmp_eq_u32 s{S_WAVE}, 0
          s_cbranch_scc0 L_pf2
          s_mov_b32 s{S_NEXT}, 1
          s_branch L_arrive""")
    g.label("L_prod")
    g(f"""v_lshlrev_b32 v104, 10, v{V_G}
          v_bfe_u32 v{V_T0}, v{V_LANE}, 2, 2
          v_lshl_add_u32 v104, v{V_T0}, 7, v104
          v_and_b32 v{V_T0}, 3, v{V_LANE}
          v_lshl_add_u32 v104, v{V_T0}, 3, v104
          s_lshl_b32 s{S_Bx}, s{S_WAVE}, 15
          v_add_u32 v104, s{S_Bx}, v104
          s_setprio 3""")
    g("s_waitcnt vmcnt(6)")
    for ks in range(4):
        for nt in range(4):
            r = WB + (ks*4 + nt)*4
            g(f"ds_read_b64_tr_b16 v[{r}:{r+1}], v104 offset:{ks*4096+nt*32}")
            g(f"ds_read_b64_tr_b16 v[{r+2}:{r+3}], v104 offset:{ks*4096+nt*32+512}")
    ln_stats(g, XR, 28, [8, 16, 32], 96)
    g("s_waitcnt vmcnt(1)")
    ln_apply(g, XA, 16, 96)
    g("s_waitcnt lgkmcnt(0)")
    for ks in range(4):
        for nt in range(4):
            c = "0" if ks == 0 else vr(104+4*nt)
            g(f"v_mfma_f32_16x16x32_bf16 {vr(104+4*nt)}, {vr(WB+(ks*4+nt)*4)}, {vr(XA+4*ks)}, {c}")
    g(f"""v_lshlrev_b32 v{V_T4}, 7, v{V_G}
          v_lshl_add_u32 v{V_T4}, v{V_N}, 4, v{V_T4}
          s_mov_b32 s{S_EX}, 0x00ff00ff
          s_mov_b32 s{S_EX+1}, 0x00ff00ff
          s_lshl_b32 s{S_A}, s{S_WAVE}, 11
          s_add_u32 s{S_A}, s{S_A}, {L_CB}
          v_add_u32 v{V_T5}, s{S_A}, v{V_T4}
          s_lshl_b32 s{S_A}, s{S_WAVE}, 9
          s_add_u32 s{S_A}, s{S_A}, {L_CB}
          v_add_u32 v{V_T4}, s{S_A}, v{V_T4}
          s_mov_b64 exec, s[{S_EX}:{S_EX+1}]""")
    for nt in range(4):
        g(f"ds_write_b128 v{V_T5}, {vr(104+4*nt)} offset:{nt*512}")
    g(f"""s_mov_b64 exec, -1
          s_waitcnt lgkmcnt(0)""")
    flag_add(g, 0)
    g(f"""s_lshl_b32 s{S_A}, s{S_WAVE}, 8
          s_add_u32 s{S_A}, s{S_A}, {L_QP}
          v_lshlrev_b32 v40, 5, v{V_N}
          v_lshl_add_u32 v40, v{V_G}, 3, v40
          v_add_u32 v40, s{S_A}, v40
          v_lshlrev_b32 v{V_T2}, 4, v{V_N}
          v_add_u32 v{V_T2}, s{S_A}, v{V_T2}
          v_bfe_u32 v{V_T3}, v{V_LANE}, 1, 3
          v_lshlrev_b32 v{V_T3}, 13, v{V_T3}
          v_lshl_add_u32 v{V_T3}, v{V_G}, 16, v{V_T3}
          v_and_b32 v{V_T5}, 1, v{V_LANE}
          v_lshl_add_u32 v{V_T3}, v{V_T5}, 4, v{V_T3}
          s_lshl_b32 s{S_A}, s{S_HKV}, 10
          s_lshl_b32 s{S_Bx}, s{S_P}, 7
          s_add_u32 s{S_A}, s{S_A}, s{S_Bx}
          s_lshl_b32 s{S_Bx}, s{S_WAVE}, 5
          s_add_u32 s{S_A}, s{S_A}, s{S_Bx}""")
    wait_flag(g, "c", 0, 4)
    for w in range(4):
        g(f"ds_read_b128 {vr(16+4*w)}, v{V_T4} offset:{w*2048}")
    g(f"""s_waitcnt lgkmcnt(0)
          v_pk_add_f32 v[16:17], v[16:17], v[20:21]
          v_pk_add_f32 v[18:19], v[18:19], v[22:23]
          v_pk_add_f32 v[24:25], v[24:25], v[28:29]
          v_pk_add_f32 v[26:27], v[26:27], v[30:31]
          v_pk_add_f32 v[16:17], v[16:17], v[24:25]
          v_pk_add_f32 v[18:19], v[18:19], v[26:27]
          v_cvt_pk_bf16_f32 v16, v16, v17
          v_cvt_pk_bf16_f32 v17, v18, v19
          s_mov_b64 exec, s[{S_EX}:{S_EX+1}]
          ds_write_b64 v40, v[16:17]
          s_mov_b64 exec, -1
          s_waitcnt lgkmcnt(0)
          ds_read_b128 v[20:23], v{V_T2}
          s_waitcnt lgkmcnt(0)
          buffer_store_dwordx4 v[20:23], v{V_T3}, {S4(S_WS)}, s{S_A} offen sc1
          s_setprio 0""")
    g.stamp(1)
    g("s_waitcnt vmcnt(0)")
    flag_add(g, 4)
    g(f"""s_cmp_eq_u32 s{S_WAVE}, 0
          s_cbranch_scc0 L_pf
          s_mov_b32 s{S_NEXT}, 0""")
    g.label("L_arrive")
    wait_flag(g, "d", 4, 4)
    g(f"""s_lshl_b32 s{S_A}, s{S_HKV}, 5
          s_add_u32 s{S_Cx}, s{P_DBG}, s{S_A}
          s_addc_u32 s{S_Dx}, s{P_DBG+1}, 0
          s_mov_b32 s{S_A}, 1
          s_atomic_add s{S_A}, s[{S_Cx}:{S_Dx}], 0 glc
          s_lshl_b32 s{S_Bx}, s{S_HKV}, 13
          s_add_u32 s{S_Bx}, s{S_Bx}, {WS_IN+O_GO:#x}
          s_add_u32 s{S_Cx}, s{P_WS}, s{S_Bx}
          s_addc_u32 s{S_Dx}, s{P_WS+1}, 0
          s_waitcnt lgkmcnt(0)""")
    g.stamp(2)
    g(f"""s_and_b32 s{S_A}, s{S_A}, 31
          s_cmp_eq_u32 s{S_A}, 31
          s_cbranch_scc0 L_nonot
          s_mov_b32 s{S_A}, 1""")
    for half in range(2):
        for r in range(16):
            g(f"s_atomic_add s{S_A}, s[{S_Cx}:{S_Dx}], {r*65536:#x}")
        if half == 0:
            g(f"""s_add_u32 s{S_Cx}, s{S_Cx}, 0x100000
                  s_addc_u32 s{S_Dx}, s{S_Dx}, 0""")
    g.label("L_nonot")
    g(f"""s_cmp_eq_u32 s{S_NEXT}, 1
          s_cbranch_scc1 L_pf2""")
    g.label("L_pf")
    k_loads(g, 0)
    g.label("L_pf2")
    k_loads(g, 1); v_loads(g, 0); v_loads(g, 1)
    lds_prefetch(g)
    g.label("L_qwait")
    for e in range(8):
        m16 = 3 << (2*e); m32 = m16 | (m16 << 16)
        g(f"s_mov_b32 s{S_MASK+2*e}, {m32:#x}")
        g(f"s_mov_b32 s{S_MASK+2*e+1}, {m32:#x}")
    g(f"""v_lshrrev_b32 v{V_T2}, 7, v0
          s_lshl_b32 s{S_A}, s{S_B}, 5
          s_add_u32 s{S_A}, s{S_A}, s{S_HKV}
          v_lshlrev_b32 v{V_T2}, 3, v{V_T2}
          v_add_u32 v{V_T2}, s{S_A}, v{V_T2}
          v_lshlrev_b32 v{V_IN1}, 13, v{V_T2}
          v_and_b32 v{V_T3}, 127, v0
          v_lshl_add_u32 v{V_IN1}, v{V_T3}, 2, v{V_IN1}
          s_lshl_b32 s{S_A}, s{S_S}, 9
          s_add_u32 s{S_A}, s{S_A}, {WS_IN:#x}
          v_add_u32 v{V_IN1}, s{S_A}, v{V_IN1}""")
    g(f"""v_lshlrev_b32 v{V_T2}, 3, v{V_G}
          v_add_u32 v{V_T2}, s{S_WAVE}, v{V_T2}
          v_lshl_add_u32 v{V_T2}, v{V_T2}, 4, v{V_N}
          v_mul_u32_u24 v{V_T3}, 4682, v{V_T2}
          v_lshrrev_b32 v{V_T3}, 16, v{V_T3}
          v_mul_u32_u24 v{V_T4}, 14, v{V_T3}
          v_sub_u32 v{V_T4}, v{V_T2}, v{V_T4}
          v_and_b32 v{V_T5}, 3, v{V_T3}
          v_lshlrev_b32 v{V_T5}, 3, v{V_T5}
          v_lshrrev_b32 v{V_T3}, 2, v{V_T3}
          v_add_u32 v{V_T5}, v{V_T5}, v{V_T3}
          s_lshl_b32 s{S_A}, s{S_B}, 5
          v_add_u32 v{V_T5}, s{S_A}, v{V_T5}
          v_lshlrev_b32 v{V_IN2}, 13, v{V_T5}
          v_lshl_add_u32 v{V_IN2}, v{V_T4}, 2, v{V_IN2}
          s_lshl_b32 s{S_A}, s{S_I}, 6
          s_add_u32 s{S_A}, s{S_A}, {WS_IN+O_IN2:#x}
          v_add_u32 v{V_IN2}, s{S_A}, v{V_IN2}
          v_cmp_lt_u32 vcc, 447, v{V_T2}
          v_mov_b32 v{V_T3}, 0x7ffffff0
          s_nop 0
          v_cndmask_b32 v{V_IN2}, v{V_IN2}, v{V_T3}, vcc""")
    for r in range(8):
        g(f"v_mov_b32 v{V_ACC+r}, 0")
    g(f"""v_mov_b32 v{V_M}, 0xf149f2ca
          v_mov_b32 v{V_L}, 0
          v_and_b32 v{V_T4}, 1, v{V_N}
          v_lshlrev_b32 v{V_T4}, 9, v{V_T4}
          v_lshl_add_u32 v{V_T4}, v{V_G}, 4, v{V_T4}
          v_add_u32 v{V_T4}, {L_QIMG}, v{V_T4}
          s_nop 0""")
    wait_flag(g, "q", 12, 4)
    for j in range(8):
        g(f"ds_read_b128 {vr(V_Q+4*j)}, v{V_T4} offset:{j*64}")
    g("s_waitcnt lgkmcnt(0)")
    g.stamp(4)
    g(f"""s_cmp_ge_u32 s{S_WAVE}, 4
          s_cbranch_scc1 L_last
          s_add_u32 s{S_OFF}, s{S_OFF}, {12*16384}""")
    tile_body(g, [56, 56, 56, 56], True)
    g(f"""s_add_u32 s{S_OFF}, s{S_OFF}, {4*16384}
          s_mov_b32 s{S_NEXT}, 12
          s_mov_b32 s{S_NEXT2}, 0
          s_lshl_b32 s{S_A}, s{S_WAVE}, 2
          s_add_u32 s{S_A}, s{S_A}, {L_FLAG+16}
          v_mov_b32 v{V_T0}, s{S_A}
          v_mov_b32 v{V_T1}, 1
          s_waitcnt vmcnt(32)
          s_mov_b64 exec, 1
          ds_write_b32 v{V_T0}, v{V_T1}
          s_mov_b64 exec, -1""")
    if BAL:
        g(f"""s_cmp_eq_u32 s{S_B}, 7
              s_cbranch_scc1 L_nobal
              s_cmp_lt_u32 s{S_B}, 4
              s_cselect_b32 s{S_Bx}, {4*BALS}, 12
              s_cselect_b32 s{S_Cx}, {1 if BALS == 0 else 0}, 0
              s_cmp_eq_u32 s{S_Cx}, 1
              s_cbranch_scc1 L_nobal
              s_lshl_b32 s{S_A}, s{S_S}, 2
              s_add_u32 s{S_A}, s{S_A}, s{S_WAVE}
              s_cmp_eq_u32 s{S_A}, 3
              s_cselect_b32 s{S_NEXT}, 11, s{S_NEXT}
              s_cmp_eq_u32 s{S_A}, s{S_Bx}
              s_cselect_b32 s{S_NEXT}, 13, s{S_NEXT}
              s_cselect_b32 s{S_NEXT2}, 1, 0""")
        g.label("L_nobal")
    g.label("L_loop")
    if BAL:
        g(f"""s_cmp_eq_u32 s{S_NEXT}, s{S_NEXT2}
              s_cbranch_scc0 L_nosp
              s_lshl_b32 s{S_A}, s{S_S}, 20
              s_sub_u32 s{S_OFF}, s{S_BASE}, s{S_A}
              s_add_u32 s{S_OFF}, s{S_OFF}, {63*16384}""")
        g.label("L_nosp")
    if STAG or WARM:
        g(f"""s_cmp_eq_u32 s{S_WAVE}, 0
              s_cbranch_scc0 L_nopc""")
        flag_add(g, 44)
        g.label("L_nopc")
    if g.prof:
        for val, sl in ((12, 1), (8, 2), (4, 3)):
            g(f"s_cmp_eq_u32 s{S_NEXT}, {val}")
            g(f"s_cbranch_scc0 L_ps{val}")
            g.stamp(sl)
            g.label(f"L_ps{val}")
    tile_body(g, [24, 24, 24, 24], True)
    g(f"""s_add_u32 s{S_OFF}, s{S_OFF}, {4*16384}
          s_sub_u32 s{S_NEXT}, s{S_NEXT}, 1
          s_cmp_gt_u32 s{S_NEXT}, 0
          s_cbranch_scc1 L_loop""")
    g.label("L_last")
    tile_body(g, [24, 16, 8, 0], False)
    g(f"""s_cmp_lt_u32 s{S_WAVE}, 4
          s_cbranch_scc1 L_tail0
          s_cmp_eq_u32 s{S_NEXT}, 257
          s_cbranch_scc1 L_wdma
          s_mov_b32 s{S_NEXT}, 257
          s_lshl_b32 s{S_A}, s{S_WAVE}, 2
          s_add_u32 s{S_A}, s{S_A}, {L_FLAG}
          v_mov_b32 v{V_T0}, s{S_A}""")
    g.label("L_wl")
    g(f"""ds_read_b32 v{V_T1}, v{V_T0}
          s_waitcnt lgkmcnt(0)
          v_cmp_eq_u32 vcc, 0, v{V_T1}""")
    poll_branch(g, "L_wl")
    g(f"""s_sub_u32 s{S_A}, s{S_WAVE}, 4
          s_lshl_b32 s{S_A}, s{S_A}, 15
          v_lshlrev_b32 v{V_T0}, 4, v{V_LANE}
          v_add_u32 v{V_T0}, s{S_A}, v{V_T0}""")
    for u in range(32):
        g(f"ds_read_b128 {vr(128+4*u)}, v{V_T0} offset:{u*1024}")
    g("s_waitcnt lgkmcnt(0)")
    flag_add(g, 32)
    g("s_branch L_last")
    g.label("L_wdma")
    wait_flag(g, "w", 32, 4)
    g("s_setprio 2")
    small_dma(g)
    if STAG:
        g(f"v_mov_b32 v{V_T0}, {L_FLAG}")
        g(f"v_mov_b32 v{V_T2}, s{S_B}")
        g.label("L_wst")
        g(f"""s_sleep 8
              ds_read_b32 v{V_T1}, v{V_T0} offset:44
              s_waitcnt lgkmcnt(0)
              v_cmp_gt_u32 vcc, v{V_T2}, v{V_T1}""")
        poll_branch(g, "L_wst")
    wo_dma(g)
    g(f"s_cmp_eq_u32 s{S_WAVE}, 7")
    g("s_cbranch_scc0 L_nocert")
    srd(g, S_T, P_DBG, 256)
    g(f"v_lshlrev_b32 v{V_T0}, 5, v{V_LANE}")
    g("s_mov_b64 exec, 0xff")
    g.label("L_cert")
    g(f"""buffer_load_dword v{V_T1}, v{V_T0}, {S4(S_T)}, 0 offen sc1
          s_waitcnt vmcnt(0)
          v_cmp_gt_u32 vcc, 32, v{V_T1}""")
    poll_branch(g, "L_cert")
    g("s_mov_b64 exec, -1")
    g.label("L_nocert")
    g("s_waitcnt vmcnt(0)")
    g("s_setprio 0")
    if WARM:
        g(f"""s_cmp_eq_u32 s{S_WAVE}, 6
              s_cbranch_scc0 L_tail0
              v_mov_b32 v{V_T0}, {L_FLAG}""")
        g.label("L_ww")
        g(f"""s_sleep 8
              ds_read_b32 v{V_T1}, v{V_T0} offset:44
              s_waitcnt lgkmcnt(0)
              v_cmp_gt_u32 vcc, {WARM}, v{V_T1}""")
        poll_branch(g, "L_ww")
        g(f"""s_getpc_b64 s[{S_Cx}:{S_Dx}]
              s_mov_b32 s{S_A}, 18""")
        g.label("L_wm")
        for i in range(4):
            g(f"s_load_dwordx16 s[64:79], s[{S_Cx}:{S_Dx}], {i*64}")
        g(f"""s_add_u32 s{S_Cx}, s{S_Cx}, 256
              s_addc_u32 s{S_Dx}, s{S_Dx}, 0
              s_waitcnt lgkmcnt(0)
              s_sub_u32 s{S_A}, s{S_A}, 1
              s_cmp_gt_u32 s{S_A}, 0
              s_cbranch_scc1 L_wm""")
    g.label("L_tail0")
    g.stamp(5)
    tail(g, debug)
    g.label("L_end")
    if g.prof:
        g(f"s_cmp_ge_u32 s{S_WG}, 256")
        g("s_cbranch_scc1 L_end2")
        g("s_waitcnt vmcnt(0)")
        g.stamp(15)
        g("s_mov_b64 exec, 1")
        g(f"s_lshl_b32 s{S_A}, s{S_WG}, 3")
        g(f"s_add_u32 s{S_A}, s{S_A}, s{S_WAVE}")
        g(f"s_lshl_b32 s{S_A}, s{S_A}, 7")
        g(f"s_add_u32 s{S_A}, s{S_A}, {WS_DBG+0x100000:#x}")
        g("v_mov_b32 v1, 0")
        for i, sl in enumerate(STAMP_SLOTS):
            g(f"v_mov_b32 v{16+i}, s{sl}")
            g(f"buffer_store_dword v{16+i}, v1, {S4(S_WS)}, s{S_A} offen offset:{i*4}")
        g.label("L_end2")
    g("s_endpgm")
    return g.L

def tail(g, debug):
    R = 128
    xreduce(g, V_L, V_T0, "v_add_f32", [16, 32])
    g(f"""v_lshlrev_b32 v{V_T0}, 5, v{V_N}
          v_lshl_add_u32 v{V_T0}, v{V_G}, 3, v{V_T0}
          s_lshl_b32 s{S_A}, s{S_WAVE}, 11
          s_add_u32 s{S_A}, s{S_A}, {L_CB}
          v_add_u32 v{V_T0}, s{S_A}, v{V_T0}
          v_add_u32 v{V_T1}, 1024, v{V_T0}""")
    for half in range(2):
        a = V_ACC + 4*half
        g(f"ds_write2_b32 v{V_T0}, v{a}, v{a+2} offset0:{half*128} offset1:{half*128+1}")
        g(f"ds_write2_b32 v{V_T1}, v{a+1}, v{a+3} offset0:{half*128} offset1:{half*128+1}")
    g(f"""s_lshl_b32 s{S_A}, s{S_WAVE}, 4
          s_add_u32 s{S_A}, s{S_A}, {L_STAT}
          v_lshlrev_b32 v{V_T2}, 3, v{V_LANE}
          v_add_u32 v{V_T2}, s{S_A}, v{V_T2}
          s_mov_b64 exec, 3
          ds_write_b64 v{V_T2}, v[{V_M}:{V_L}]
          s_mov_b64 exec, -1""")
    g(f"""v_lshlrev_b32 v{V_T0}, 2, v0
          v_add_u32 v{V_T0}, {L_CB}, v{V_T0}
          v_lshrrev_b32 v{V_T1}, 8, v0
          v_lshlrev_b32 v{V_T1}, 3, v{V_T1}
          v_add_u32 v{V_T1}, {L_STAT}, v{V_T1}
          v_bfe_u32 v{V_T2}, v{V_LANE}, 2, 2
          v_lshrrev_b32 v{V_T3}, 1, v{V_T2}
          v_and_b32 v{V_T4}, 1, v{V_G}
          v_lshlrev_b32 v{V_T4}, 1, v{V_T4}
          v_xor_b32 v{V_T3}, v{V_T3}, v{V_T4}
          s_and_b32 s{S_A}, s{S_WAVE}, 3
          v_xor_b32 v{V_T3}, s{S_A}, v{V_T3}
          v_mul_u32_u24 v{V_T4}, 7168, v{V_G}
          v_lshl_add_u32 v{V_T4}, v{V_T2}, 7, v{V_T4}
          v_and_b32 v{V_T2}, 3, v{V_LANE}
          v_lshl_add_u32 v{V_T4}, v{V_T2}, 3, v{V_T4}
          s_lshr_b32 s{S_A}, s{S_WAVE}, 2
          s_lshl_b32 s{S_A}, s{S_A}, 10
          v_add_u32 v{V_T4}, s{S_A}, v{V_T4}
          v_lshl_add_u32 v{V_A}, v{V_T3}, 5, v{V_T4}
          v_xor_b32 v{V_T3}, 2, v{V_T3}
          v_lshl_add_u32 v{V_A+1}, v{V_T3}, 5, v{V_T4}
          v_add_u32 v{V_A+1}, 512, v{V_A+1}
          v_add_u32 v{V_A+2}, 57344, v{V_A}
          v_add_u32 v{V_A+3}, 57344, v{V_A+1}
          s_waitcnt lgkmcnt(0)
          s_barrier""")
    g.stamp(6)
    for w in range(8):
        g(f"ds_read_b64 v[{16+2*w}:{17+2*w}], v{V_T1} offset:{w*16}")
    for w in range(8):
        g(f"ds_read_b32 v{32+w}, v{V_T0} offset:{w*2048}")
    g("s_waitcnt lgkmcnt(8)")
    g(f"""v_max3_f32 v{V_T0}, v16, v18, v20
          v_max3_f32 v{V_T1}, v22, v24, v26
          v_max3_f32 v{V_T0}, v{V_T0}, v28, v30
          v_max_f32 v{V_T0}, v{V_T0}, v{V_T1}""")
    for w in range(8): g(f"v_sub_f32 v{16+2*w}, v{16+2*w}, v{V_T0}")
    for w in range(8): g(f"v_mul_f32 v{16+2*w}, s{S_C}, v{16+2*w}")
    for w in range(8): g(f"v_exp_f32 v{16+2*w}, v{16+2*w}")
    g("s_waitcnt lgkmcnt(0)")
    g(f"""v_mul_f32 v{V_T1}, v16, v17
          v_mul_f32 v{V_T2}, v16, v32""")
    for w in range(1, 8):
        g(f"v_fma_f32 v{V_T1}, v{16+2*w}, v{17+2*w}, v{V_T1}")
        g(f"v_fma_f32 v{V_T2}, v{16+2*w}, v{32+w}, v{V_T2}")
    g(f"""v_rcp_f32 v{V_T3}, v{V_T1}
          v_log_f32 v{V_T4}, v{V_T1}
          s_mul_i32 s{S_A}, s{S_S}, 508
          s_sub_u32 s{S_A}, 2048, s{S_A}
          v_mul_f32 v40, v{V_T2}, v{V_T3}
          v_fma_f32 v42, v{V_T0}, s{S_C}, v{V_T4}""")
    canon(g, 40); canon(g, 42)
    g(f"""buffer_store_dword v40, v{V_IN1}, {S4(S_WS)}, 0 offen sc1
          v_and_b32 v{V_T1}, 127, v0
          v_cmp_eq_u32 vcc, 0, v{V_T1}
          s_and_saveexec_b64 s[{S_EX}:{S_EX+1}], vcc
          s_cbranch_execz L_t1s
          buffer_store_dword v42, v{V_IN1}, {S4(S_WS)}, s{S_A} offen sc1""")
    g.label("L_t1s")
    g(f"s_mov_b64 exec, s[{S_EX}:{S_EX+1}]")
    for q in range(4):
        for ks in range(4):
            a1, a2 = (V_A, V_A+1) if ks < 2 else (V_A+2, V_A+3)
            off = (ks & 1) * 28672 + q * 2048
            r = R + (q*4 + ks) * 4
            g(f"ds_read_b64_tr_b16 v[{r}:{r+1}], v{a1} offset:{off}")
            g(f"ds_read_b64_tr_b16 v[{r+2}:{r+3}], v{a2} offset:{off}")
    g.stamp(7)
    g(f"""s_lshl_b32 s{S_Cx}, s{S_WG}, 13
          s_add_u32 s{S_Cx}, s{S_Cx}, {WS_IN:#x}
          s_cmp_ge_u32 s{S_WAVE}, 2
          s_cbranch_scc1 L_t2b
          v_lshlrev_b32 v{V_T0}, 2, v0
          v_mov_b32 v{V_T1}, 2048""")
    g.label("L_p1")
    for s in range(4):
        g(f"buffer_load_dword v{16+s}, v{V_T0}, {S4(S_WS)}, s{S_Cx} offen offset:{s*512} sc1")
    g(f"""buffer_load_dwordx4 v[24:27], v{V_T1}, {S4(S_WS)}, s{S_Cx} offen sc1
          s_waitcnt vmcnt(0)
          v_max3_u32 v{V_T2}, v16, v17, v18
          v_max3_u32 v{V_T3}, v19, v24, v25
          v_max3_u32 v{V_T2}, v{V_T2}, v26, v27
          v_max_u32 v{V_T2}, v{V_T2}, v{V_T3}
          v_cmp_eq_u32 vcc, -1, v{V_T2}""")
    poll_branch(g, "L_p1")
    g(f"""v_max3_f32 v{V_T2}, v24, v25, v26
          v_max_f32 v{V_T2}, v{V_T2}, v27
          v_sub_f32 v24, v24, v{V_T2}
          v_sub_f32 v25, v25, v{V_T2}
          v_sub_f32 v26, v26, v{V_T2}
          v_sub_f32 v27, v27, v{V_T2}
          v_exp_f32 v24, v24
          v_exp_f32 v25, v25
          v_exp_f32 v26, v26
          v_exp_f32 v27, v27
          v_lshlrev_b32 v{V_T0}, 1, v0
          v_add_f32 v{V_T2}, v24, v25
          v_add_f32 v{V_T3}, v26, v27
          v_add_f32 v{V_T2}, v{V_T2}, v{V_T3}
          v_rcp_f32 v{V_T2}, v{V_T2}
          v_mul_f32 v{V_T3}, v24, v16
          v_fma_f32 v{V_T3}, v25, v17, v{V_T3}
          v_fma_f32 v{V_T3}, v26, v18, v{V_T3}
          v_fma_f32 v{V_T3}, v27, v19, v{V_T3}
          v_mul_f32 v{V_T3}, v{V_T3}, v{V_T2}
          v_cvt_pk_bf16_f32 v{V_T3}, v{V_T3}, v{V_T3}
          v_add_u32 v{V_T1}, {L_OF}, v{V_T0}
          ds_write_b16 v{V_T1}, v{V_T3}""")
    if debug & 1:
        g(f"""s_lshl_b32 s{S_A}, s{S_WG}, 8
              s_add_u32 s{S_A}, s{S_A}, {WS_DBG:#x}
              buffer_store_short v{V_T3}, v{V_T0}, {S4(S_WS)}, s{S_A} offen""")
    g.label("L_t2b")
    g(f"""v_lshlrev_b32 v{V_T0}, 4, v{V_G}
          v_add_u32 v{V_T0}, {L_OF}, v{V_T0}
          v_cmp_eq_u32 vcc, 1, v{V_G}
          v_cmp_eq_u32 s[{S_A}:{S_A+1}], 2, v{V_G}
          v_cmp_eq_u32 s[{S_EX}:{S_EX+1}], 3, v{V_G}
          s_waitcnt lgkmcnt(0)
          s_barrier""")
    g.stamp(8)
    for ks in range(4):
        g(f"ds_read_b128 {vr(16+4*ks)}, v{V_T0} offset:{ks*64}")
    g(f"v_lshlrev_b32 v{V_T0}, 2, v0")
    g(f"v_add_u32 v{V_T0}, {O_IN2}, v{V_T0}")
    for ks in range(4):
        g(f"s_waitcnt lgkmcnt({3-ks})")
        for q in range(4):
            c = "0" if ks == 0 else vr(32+4*q)
            g(f"v_mfma_f32_16x16x32_bf16 {vr(32+4*q)}, {vr(16+4*ks)}, {vr(R+(q*4+ks)*4)}, {c}")
    g.nop(8)
    g(f"""v_cndmask_b32 v48, v32, v36, vcc
          v_cndmask_b32 v48, v48, v40, s[{S_A}:{S_A+1}]
          v_cndmask_b32 v48, v48, v44, s[{S_EX}:{S_EX+1}]""")
    canon(g, 48)
    g(f"buffer_store_dword v48, v{V_IN2}, {S4(S_WS)}, 0 offen sc1")
    g.stamp(9)
    V_X = V_GU
    g(f"""v_bfe_u32 v{V_T3}, v{V_LANE}, 2, 2
          v_and_b32 v{V_T4}, 3, v{V_LANE}
          s_cmp_ge_u32 s{S_J}, 112
          s_cbranch_scc1 L_plwd
          s_cmp_eq_u32 s{S_WAVE}, 7
          s_cbranch_scc0 L_pldone
          v_lshlrev_b32 v{V_T5}, 8, v{V_G}
          v_lshl_add_u32 v{V_T5}, v{V_T3}, 5, v{V_T5}
          v_lshl_add_u32 v{V_T5}, v{V_T4}, 3, v{V_T5}
          v_add_u32 v{V_T5}, {L_WD}, v{V_T5}""")
    for m in range(2):
        for ks in range(14):
            r = R + (m*14 + ks)*4
            g(f"ds_read_b64_tr_b16 v[{r}:{r+1}], v{V_T5} offset:{m*14336+ks*1024}")
            g(f"ds_read_b64_tr_b16 v[{r+2}:{r+3}], v{V_T5} offset:{m*14336+ks*1024+128}")
    g("s_branch L_pldone")
    g.label("L_plwd")
    g(f"""s_cmp_ge_u32 s{S_CS}, 56
          s_cbranch_scc1 L_pldone
          v_lshlrev_b32 v{V_T5}, 7, v{V_G}
          v_lshl_add_u32 v{V_T5}, v{V_T3}, 4, v{V_T5}
          v_lshl_add_u32 v{V_T5}, v{V_T4}, 3, v{V_T5}
          s_mul_i32 s{S_A}, s{S_WAVE}, {7*512}
          s_add_u32 s{S_A}, s{S_A}, {L_WD}
          v_add_u32 v{V_T5}, s{S_A}, v{V_T5}""")
    for ks in range(7):
        g(f"ds_read_b64_tr_b16 v[{R+4*ks}:{R+4*ks+1}], v{V_T5} offset:{ks*512}")
        g(f"ds_read_b64_tr_b16 v[{R+4*ks+2}:{R+4*ks+3}], v{V_T5} offset:{ks*512+64}")
    g.label("L_pldone")
    g(f"""s_cmp_eq_u32 s{S_WAVE}, 0
          s_cbranch_scc0 L_t5
          v_cmp_gt_u32 s[{S_A}:{S_A+1}], 14, v{V_N}
          v_lshlrev_b32 v{V_T0}, 9, v{V_G}
          v_lshl_add_u32 v{V_T0}, v{V_N}, 2, v{V_T0}
          v_add_u32 v{V_T0}, {O_IN2}, v{V_T0}
          v_lshlrev_b32 v{V_T5}, 1, v{V_N}
          s_lshl_b32 s{S_Dx}, s{S_WG}, 5
          s_add_u32 s{S_Dx}, s{S_Dx}, {WS_H:#x}
          v_lshlrev_b32 v{V_X}, 16, v{V_X}""")
    g.label("L_p2")
    for u in range(8):
        g(f"buffer_load_dword v{16+u}, v{V_T0}, {S4(S_WS)}, s{S_Cx} offen offset:{u*64} sc1")
    g(f"""s_waitcnt vmcnt(0)
          v_max3_u32 v{V_T1}, v16, v17, v18
          v_max3_u32 v{V_T2}, v19, v20, v21
          v_max3_u32 v{V_T1}, v{V_T1}, v22, v23
          v_max_u32 v{V_T1}, v{V_T1}, v{V_T2}
          v_cmp_eq_u32 vcc, -1, v{V_T1}
          v_add_f32 v16, v16, v17
          v_add_f32 v18, v18, v19
          v_add_f32 v20, v20, v21
          v_add_f32 v22, v22, v23
          s_and_b64 vcc, vcc, s[{S_A}:{S_A+1}]""")
    poll_branch(g, "L_p2", "scc0")
    g(f"""v_add_f32 v16, v16, v18
          v_add_f32 v20, v20, v22
          v_add_f32 v16, v16, v20""")
    xreduce(g, 16, 18, "v_add_f32", [16, 32])
    bf16_round(g, 16, 16)
    g(f"""v_add_f32 v16, v16, v{V_X}
          s_nop 1
          v_mov_b32_dpp v17, v16 quad_perm:[1,1,3,3] row_mask:0xf bank_mask:0xf
          v_cvt_pk_bf16_f32 v16, v16, v17""")
    canon(g, 16)
    g(f"""s_mov_b64 exec, 0x1555
          buffer_store_dword v16, v{V_T5}, {S4(S_WS)}, s{S_Dx} offen sc1
          s_mov_b64 exec, -1""")
    g.label("L_t5")
    g.stamp(10)
    g(f"""s_cmp_lt_u32 s{S_CS}, 56
          s_cbranch_scc1 L_t8
          s_cmp_ge_u32 s{S_J}, 112
          s_cbranch_scc1 L_end""")
    GATE = True
    g(f"""v_lshlrev_b32 v{V_M}, 4, v0
          v_and_b32 v{V_T1}, 1, v0
          v_cmp_eq_u32 s[{S_EX}:{S_EX+1}], 1, v{V_T1}
          s_mul_i32 s{S_A}, s{S_WAVE}, 896
          s_add_u32 s{S_A}, s{S_A}, {L_HN}
          v_bfe_u32 v{V_T3}, v0, 1, 3
          v_lshlrev_b32 v{V_T3}, 2, v{V_T3}
          v_add_u32 v{V_T3}, v{V_T3}, v{V_G}
          v_mul_u32_u24 v{V_T3}, 28, v{V_T3}
          v_lshl_add_u32 v{V_L}, v{V_T1}, 4, v{V_T3}
          v_add_u32 v{V_L}, s{S_A}, v{V_L}
          s_mov_b32 s{S_Cx}, {WS_H:#x}
          v_and_b32 v{V_AL}, 7, v{V_LANE}
          v_mul_u32_u24 v{V_AL}, 896, v{V_AL}
          v_lshl_add_u32 v{V_AL}, v{V_G}, 4, v{V_AL}
          v_add_u32 v{V_AL}, {L_HN}, v{V_AL}
          s_barrier""")
    g.label("L_p3")
    g(f"""buffer_load_dwordx4 v[16:19], v{V_M}, {S4(S_WS)}, s{S_Cx} offen sc1
          s_waitcnt vmcnt(0)
          v_cndmask_b32 v19, v19, 0, s[{S_EX}:{S_EX+1}]
          v_max3_u32 v{V_T3}, v16, v17, v18
          v_max_u32 v{V_T3}, v{V_T3}, v19
          v_cmp_eq_u32 vcc, -1, v{V_T3}""")
    for i in range(4):
        g(f"v_lshlrev_b32 v{24+2*i}, 16, v{16+i}")
        g(f"v_and_b32 v{25+2*i}, s{S_HIM}, v{16+i}")
    poll_branch(g, "L_p3")
    g.stamp(11)
    g(f"""v_pk_add_f32 v[{V_T0}:{V_T1}], v[24:25], v[26:27]
          v_pk_add_f32 v[{V_T2}:{V_T3}], v[28:29], v[30:31]
          v_pk_add_f32 v[{V_T0}:{V_T1}], v[{V_T0}:{V_T1}], v[{V_T2}:{V_T3}]
          v_add_f32 v{V_T0}, v{V_T0}, v{V_T1}""")
    xreduce(g, V_T0, V_T1, "v_add_f32", [1, 2, 4, 8, 16, 32])
    g(f"""v_mul_f32 v{V_T4}, {f32bits(1.0/448.0):#x}, v{V_T0}
          v_mul_f32 v{V_T5}, {f32bits(1.0/448.0):#x}, v{V_T0}""")
    for i in range(4):
        g(f"v_pk_add_f32 v[{24+2*i}:{25+2*i}], v[{24+2*i}:{25+2*i}], v[{V_T4}:{V_T5}] neg_lo:[0,1] neg_hi:[0,1]")
    g(f"""v_cndmask_b32 v30, v30, 0, s[{S_EX}:{S_EX+1}]
          v_cndmask_b32 v31, v31, 0, s[{S_EX}:{S_EX+1}]
          v_pk_mul_f32 v[{V_T0}:{V_T1}], v[24:25], v[24:25]
          v_pk_mul_f32 v[{V_T2}:{V_T3}], v[26:27], v[26:27]
          v_pk_fma_f32 v[{V_T0}:{V_T1}], v[28:29], v[28:29], v[{V_T0}:{V_T1}]
          v_pk_fma_f32 v[{V_T2}:{V_T3}], v[30:31], v[30:31], v[{V_T2}:{V_T3}]""")
    ln_finish(g, [1, 2, 4, 8, 16, 32])
    ln_apply(g, 16, 4, 32)
    g(f"""ds_write2_b32 v{V_L}, v16, v17 offset0:0 offset1:1
          ds_write_b32 v{V_L}, v18 offset:8
          s_andn2_b64 exec, exec, s[{S_EX}:{S_EX+1}]
          ds_write_b32 v{V_L}, v19 offset:12
          s_mov_b64 exec, -1
          s_lshl_b32 s{S_A}, s{S_J}, 8
          s_add_u32 s{S_A}, s{S_A}, {WS_HH:#x}
          v_lshlrev_b32 v{V_T0}, 5, v{V_N}
          v_lshl_add_u32 v{V_T0}, v{V_G}, 3, v{V_T0}
          s_waitcnt lgkmcnt(0)
          s_barrier""")
    g.stamp(12)
    g(f"""s_cmp_eq_u32 s{S_WAVE}, 7
          s_cbranch_scc0 L_end""")
    for ks in range(14):
        g(f"ds_read_b128 {vr(16+4*ks)}, v{V_AL} offset:{ks*64}")
    for ks in range(14):
        g(f"s_waitcnt lgkmcnt({13-ks})")
        c0 = "0" if ks == 0 else "v[80:83]"
        c1 = "0" if ks == 0 else "v[84:87]"
        g(f"v_mfma_f32_16x16x32_bf16 v[80:83], {vr(R+4*ks)}, {vr(16+4*ks)}, {c0}")
        g(f"v_mfma_f32_16x16x32_bf16 v[84:87], {vr(R+56+4*ks)}, {vr(16+4*ks)}, {c1}")
    g("s_mov_b32 exec_lo, 0x00ff00ff")
    g("s_mov_b32 exec_hi, 0x00ff00ff")
    g.nop(6)
    for r in range(8):
        bf16_round(g, 80+r, 80+r)
    g(f"""v_pk_mul_f32 v[80:81], v[80:81], v[84:85]
          v_pk_mul_f32 v[82:83], v[82:83], v[86:87]
          v_cvt_pk_bf16_f32 v16, v80, v81
          v_cvt_pk_bf16_f32 v17, v82, v83""")
    canon(g, 16); canon(g, 17)
    g(f"""buffer_store_dwordx2 v[16:17], v{V_T0}, {S4(S_WS)}, s{S_A} offen sc1
          s_mov_b64 exec, -1""")
    g.stamp(13)
    g("s_branch L_end")
    g.label("L_t8")
    g(f"""s_lshl_b32 s{S_A}, s{S_CS}, 3
          v_and_b32 v{V_T2}, 7, v{V_LANE}
          v_add_u32 v{V_T2}, s{S_A}, v{V_T2}
          v_mul_u32_u24 v{V_T3}, 4682, v{V_T2}
          v_lshrrev_b32 v{V_T3}, 16, v{V_T3}
          v_mul_u32_u24 v{V_T4}, 14, v{V_T3}
          v_sub_u32 v{V_T4}, v{V_T2}, v{V_T4}
          v_and_b32 v{V_M}, 3, v{V_T3}
          v_lshlrev_b32 v{V_M}, 3, v{V_M}
          v_lshrrev_b32 v{V_T3}, 2, v{V_T3}
          v_add_u32 v{V_M}, v{V_M}, v{V_T3}
          v_lshlrev_b32 v{V_M}, 5, v{V_M}
          v_lshl_add_u32 v{V_M}, v{V_T4}, 1, v{V_M}
          v_and_b32 v{V_T3}, 1, v{V_G}
          v_lshl_add_u32 v{V_M}, v{V_T3}, 12, v{V_M}
          s_mov_b32 s{S_Cx}, {WS_H:#x}
          v_and_b32 v{V_T0}, 7, v{V_LANE}
          v_lshlrev_b32 v{V_T0}, 5, v{V_T0}
          v_lshrrev_b32 v{V_T1}, 1, v{V_G}
          v_lshl_add_u32 v{V_T0}, v{V_T1}, 8, v{V_T0}
          v_and_b32 v{V_T1}, 1, v{V_G}
          v_lshl_add_u32 v{V_T0}, v{V_T1}, 4, v{V_T0}
          s_mul_i32 s{S_A}, s{S_WAVE}, {7*512}
          s_add_u32 s{S_A}, s{S_A}, {WS_HH:#x}
          v_lshlrev_b32 v{V_T1}, 4, v{V_LANE}
          s_lshl_b32 s{S_Bx}, s{S_WAVE}, 9
          s_add_u32 s{S_Bx}, s{S_Bx}, {L_WO}
          v_add_u32 v{V_T1}, s{S_Bx}, v{V_T1}
          v_mul_u32_u24 v{V_L}, {4*896}, v{V_G}
          v_lshl_add_u32 v{V_L}, v{V_T2}, 1, v{V_L}""")
    srd(g, S_T, P_OUT, 7168)
    g(f"""s_cmp_eq_u32 s{S_WAVE}, 0
          s_cbranch_scc0 L_ph_ok
          v_and_b32 v{V_NMC}, 0xfffffffc, v{V_M}
          v_and_b32 v{V_AL}, 2, v{V_M}
          v_lshlrev_b32 v{V_AL}, 3, v{V_AL}""")
    g.label("L_ph")
    for r in range(4):
        g(f"buffer_load_dword v{56+r}, v{V_NMC}, {S4(S_WS)}, s{S_Cx} offen offset:{r*1024} sc1")
    g(f"""s_waitcnt vmcnt(0)
          v_max3_u32 v{V_T2}, v56, v57, v58
          v_max_u32 v{V_T2}, v{V_T2}, v59
          v_cmp_eq_u32 vcc, -1, v{V_T2}""")
    poll_branch(g, "L_ph")
    g("s_barrier")
    g.label("L_p4")
    for ks in range(7):
        g(f"buffer_load_dwordx4 {vr(16+4*ks)}, v{V_T0}, {S4(S_WS)}, s{S_A} offen offset:{ks*512} sc1")
    g("s_waitcnt vmcnt(0)")
    g(f"v_max3_u32 v{V_T2}, v16, v17, v18")
    for i in range(19, 44, 2):
        if i + 1 <= 43:
            g(f"v_max3_u32 v{V_T2}, v{V_T2}, v{i}, v{i+1}")
        else:
            g(f"v_max_u32 v{V_T2}, v{V_T2}, v{i}")
    g(f"v_cmp_eq_u32 vcc, -1, v{V_T2}")
    poll_branch(g, "L_p4")
    g.stamp(14)
    g("s_waitcnt lgkmcnt(0)")
    for ks in range(7):
        c = "0" if ks == 0 else "v[48:51]"
        g(f"v_mfma_f32_16x16x32_bf16 v[48:51], {vr(16+4*ks)}, {vr(R+4*ks)}, {c}")
    g("s_mov_b32 exec_hi, 0")
    g.nop(8)
    g(f"""ds_write_b128 v{V_T1}, v[48:51]
          s_mov_b64 exec, -1
          v_lshlrev_b32 v{V_T0}, 4, v{V_LANE}
          s_waitcnt lgkmcnt(0)
          s_barrier
          s_cmp_eq_u32 s{S_WAVE}, 0
          s_cbranch_scc0 L_end""")
    for w in range(8):
        g(f"ds_read_b128 {vr(16+4*w)}, v{V_T0} offset:{L_WO+w*512}")
    g("s_mov_b64 exec, 0x00ff00ff")
    g("s_waitcnt lgkmcnt(0)")
    for w in range(1, 8):
        g(f"v_pk_add_f32 v[16:17], v[16:17], v[{16+4*w}:{17+4*w}]")
        g(f"v_pk_add_f32 v[18:19], v[18:19], v[{18+4*w}:{19+4*w}]")
    for r in range(4):
        bf16_round(g, 16+r, 16+r)
        g(f"v_lshrrev_b32 v{56+r}, v{V_AL}, v{56+r}")
        g(f"v_lshlrev_b32 v{56+r}, 16, v{56+r}")
        g(f"v_add_f32 v{16+r}, v{16+r}, v{56+r}")
        g(f"v_cvt_pk_bf16_f32 v{16+r}, v{16+r}, v{16+r}")
        g(f"buffer_store_short v{16+r}, v{V_L}, {S4(S_T)}, 0 offen offset:{r*896}")

def emit(path, kname, debug=0):
    hdr = open("cdna_kernels/" + NAME + ".s.ref").read().split("\n")
    out = []
    for line in hdr:
        if line.startswith("; @launch"):
            out.append(f"; @launch grid=(256,1,1) block=(512,1,1) lds={LDS_BYTES}")
            break
        out.append(line)
    out.append('.amdgcn_target "amdgcn-amd-amdhsa--gfx950"')
    out.append(".text")
    out.append(f".globl {kname}")
    out.append(".p2align 8")
    out.append(f".type {kname},@function")
    out.append(f"{kname}:")
    out += gen(debug)
    out.append('.section .rodata,"a"')
    out.append(".p2align 6")
    out.append(f".amdhsa_kernel {kname}")
    out.append("""  .amdhsa_next_free_vgpr 256
  .amdhsa_next_free_sgpr 102
  .amdhsa_accum_offset 256
  .amdhsa_group_segment_fixed_size 0
  .amdhsa_kernarg_size 96
  .amdhsa_user_sgpr_count 2
  .amdhsa_user_sgpr_kernarg_segment_ptr 1
  .amdhsa_system_sgpr_workgroup_id_x 1
  .amdhsa_float_denorm_mode_32 3
.end_amdhsa_kernel""")
    open(path, "w").write("\n".join(out) + "\n")

if __name__ == "__main__":
    debug = int(sys.argv[1]) if len(sys.argv) > 1 else 0
    path = sys.argv[2] if len(sys.argv) > 2 else "cdna_kernels/" + NAME + ".s"
    emit(path, NAME + "_kernel", debug)
```

```python
import sys, struct, os
STATIC = int(os.environ.get('STATIC', '1'))
NOW = int(os.environ.get('NOW', '0'))

NAME = "sequential_preLN__gqa_block_cached__glu_gated_bilinear__decode"
def f32bits(x): return struct.unpack("<I", struct.pack("<f", x))[0]

WS_Q   = 0x000000
WS_IN  = 0x100000
O_GO, O_IN2 = 2176, 2304
WS_H   = 0x400000
WS_HH  = 0x410000
WS_TC  = 0x420000
WS_DBG = 0x1000000
WS_BYTES = 0x2000000
L_WO  = 0
L_WD  = 114688
L_SCR = 143360
L_CB  = L_SCR
L_HIMG = L_SCR
L_HN  = L_SCR + 7168
L_QP  = L_SCR + 16384
L_PART = L_SCR + 14336
L_STAT = L_SCR + 16384
L_OF  = L_SCR + 16512
L_P2  = L_SCR + 16768
L_QIMG = L_SCR + 18432
L_FLAG = L_SCR + 19456
L_HHL = L_SCR + 19520
LDS_BYTES = 163840
C_SC = 1.4426950408889634 / 16.0

STAMP_SLOTS = [4,5,6,7,63,89,92,93,94,95,96,97,98,99,100,101]
class G:
    def __init__(self):
        self.L = []; self.prof = 0
    def __call__(self, s):
        for line in s.strip().split("\n"):
            line = line.strip()
            if line: self.L.append("  " + line)
    def label(self, l): self.L.append(l + ":")
    def nop(self, n=1):
        while n > 0:
            k = min(n, 16); self.L.append(f"  s_nop {k-1}"); n -= k
    def stamp(self, i):
        if self.prof:
            self.L.append("  s_memrealtime s[90:91]")
            self.L.append("  s_waitcnt lgkmcnt(0)")
            self.L.append(f"  s_mov_b32 s{STAMP_SLOTS[i]}, s90")

def vr(a, n=4): return f"v[{a}:{a+n-1}]"
def S4(s): return f"s[{s}:{s+3}]"

V_LANE, V_N, V_G = 1, 2, 3
V_K0, V_K1, V_V0, V_V1 = 4, 5, 6, 7
V_IN1, V_IN2 = 8, 9
V_T0, V_T1, V_T2, V_T3, V_T4, V_T5 = 10, 11, 12, 13, 14, 15
V_Q = 16; V_ACC = 48; V_S = 56; V_P = 64; V_GU = 68
V_M, V_L, V_AL, V_NMC = 76, 77, 78, 79
V_A = 80; V_B = 112
R_K0, R_K1, R_V0, R_V1 = 128, 160, 192, 224
S_WG, S_WAVE = 2, 3
S_K, S_V, S_WS, S_T, S_T2 = 8, 12, 16, 20, 24
S_OFF, S_BASE = 28, 29
S_HKV, S_B, S_S, S_R = 30, 31, 32, 33
S_C, S_SELLO, S_SELHI = 34, 35, 60
P_X, P_K, P_V, P_WQ, P_WO, P_BX, P_WG, P_WU, P_WD, P_OUT, P_DBG, P_WS = [36 + 2*i for i in range(12)]
S_MASK = 64
S_A, S_Bx, S_Cx, S_Dx = 80, 81, 82, 83
S_EX = 84
S_HIM, S_I, S_POLL = 86, 87, 88
S_J, S_CS = 61, 62
S_QP = 29 + 0
S_TC = P_K
S_NEXT, S_NEXT2 = P_V, P_V + 1

def srd(g, s, p, nbytes):
    g(f"""s_mov_b32 s{s}, s{p}
          s_and_b32 s{s+1}, s{p+1}, 0xffff
          s_mov_b32 s{s+2}, {nbytes}
          s_mov_b32 s{s+3}, 0x20000""")

def bf16_round(g, d, s):
    g(f"v_cvt_pk_bf16_f32 v{d}, v{s}, v{s}")
    g(f"v_lshlrev_b32 v{d}, 16, v{d}")

def xreduce(g, v, t, op, steps):
    for st in steps:
        if st in (1, 2, 4, 8):
            mod = {1: "quad_perm:[1,0,3,2]", 2: "quad_perm:[2,3,0,1]", 4: "row_ror:4", 8: "row_ror:8"}[st]
            g.nop(2); g(f"{op}_dpp v{v}, v{v}, v{v} {mod} row_mask:0xf bank_mask:0xf")
        else:
            g(f"v_mov_b32 v{t}, v{v}"); g.nop(2)
            g(f"v_permlane{st}_swap_b32 v{v}, v{t}"); g.nop(1)
            g(f"{op} v{v}, v{v}, v{t}")

def poll_branch(g, lab, cond="vccz"):
    g(f"""s_cbranch_{cond} {lab}_ok
          s_sub_u32 s{S_POLL}, s{S_POLL}, 1
          s_cmp_eq_u32 s{S_POLL}, 0
          s_cbranch_scc1 L_end
          s_branch {lab}""")
    g.label(lab + "_ok")

def canon(g, v, t=None):
    g(f"v_min_u32 v{v}, 0xfffffffe, v{v}")

def k_loads(g, which):
    vo, r = (V_K0, R_K0) if which == 0 else (V_K1, R_K1)
    for j in range(8):
        g(f"buffer_load_dwordx4 {vr(r+4*j)}, v{vo}, {S4(S_K)}, s{S_OFF} offen offset:{j*64} nt")

def v_loads(g, half):
    r = R_V0 if half == 0 else R_V1
    for j in range(8):
        vo = V_V0 if j < 4 else V_V1
        g(f"buffer_load_dwordx4 {vr(r+4*j)}, v{vo}, {S4(S_V)}, s{S_OFF} offen offset:{(j&3)*512+half*256} nt")

def tile_body(g, nwait, loads):
    for t, r in ((0, R_K0), (1, R_K1)):
        g(f"s_waitcnt vmcnt({nwait[t]})")
        s = V_S + 4*t
        for j in range(8):
            c = "0" if j == 0 else vr(s)
            g(f"v_mfma_f32_16x16x32_bf16 {vr(s)}, {vr(r+4*j)}, {vr(V_Q+4*j)}, {c}")
        if loads: k_loads(g, t)
        elif t == 1: g.nop(8)
    S = [V_S + i for i in range(8)]
    for i in range(4):
        g(f"v_cvt_pk_bf16_f32 v{V_P+i}, v{S[2*i]}, v{S[2*i+1]}")
    for i in range(4):
        g(f"v_lshlrev_b32 v{S[2*i]}, 16, v{V_P+i}")
        g(f"v_and_b32 v{S[2*i+1]}, s{S_HIM}, v{V_P+i}")
    g(f"""v_max3_f32 v{V_T0}, v{S[0]}, v{S[1]}, v{S[2]}
          v_max3_f32 v{V_T1}, v{S[3]}, v{S[4]}, v{S[5]}
          v_max3_f32 v{V_T0}, v{V_T0}, v{S[6]}, v{S[7]}
          v_max_f32 v{V_T0}, v{V_T0}, v{V_T1}""")
    xreduce(g, V_T0, V_T1, "v_max_f32", [16, 32])
    g(f"""v_max_f32 v{V_T0}, v{V_T0}, v{V_M}
          v_sub_f32 v{V_AL}, v{V_M}, v{V_T0}
          v_mul_f32 v{V_AL}, s{S_C}, v{V_AL}
          v_exp_f32 v{V_AL}, v{V_AL}
          v_mov_b32 v{V_M}, v{V_T0}
          v_mul_f32 v{V_NMC}, s{S_C}, v{V_T0}""")
    for i in range(8):
        g(f"v_fma_f32 v{S[i]}, v{S[i]}, s{S_C}, -v{V_NMC}")
    for i in range(8):
        g(f"v_exp_f32 v{S[i]}, v{S[i]}")
    for r in range(8):
        qp = "[0,0,2,2]" if (r & 1) == 0 else "[1,1,3,3]"
        g(f"v_mul_f32_dpp v{V_ACC+r}, v{V_AL}, v{V_ACC+r} quad_perm:{qp} row_mask:0xf bank_mask:0xf")
    for i in range(4):
        g(f"v_cvt_pk_bf16_f32 v{V_P+i}, v{S[2*i]}, v{S[2*i+1]}")
    g(f"""v_add_f32 v{V_T0}, v{S[0]}, v{S[1]}
          v_add_f32 v{V_T1}, v{S[2]}, v{S[3]}
          v_add_f32 v{V_T2}, v{S[4]}, v{S[5]}
          v_add_f32 v{V_T3}, v{S[6]}, v{S[7]}
          v_add_f32 v{V_T0}, v{V_T0}, v{V_T1}
          v_add_f32 v{V_T2}, v{V_T2}, v{V_T3}
          v_add_f32 v{V_T0}, v{V_T0}, v{V_T2}
          v_fma_f32 v{V_L}, v{V_L}, v{V_AL}, v{V_T0}""")
    for e in range(8):
        for i in range(4):
            g(f"v_cndmask_b32 v{V_A+4*e+i}, 0, v{V_P+i}, s[{S_MASK+2*e}:{S_MASK+2*e+1}]")
    for half, r in ((0, R_V0), (1, R_V1)):
        g(f"s_waitcnt vmcnt({nwait[2+half]})")
        acc = V_ACC + 4*half
        def perms(e):
            b = V_B + 4*(e & 3); q = e >> 1
            sel = S_SELLO if (e & 1) == 0 else S_SELHI
            for p in range(4):
                g(f"v_perm_b32 v{b+p}, v{r+4*(2*p+1)+q}, v{r+4*(2*p)+q}, s{sel}")
        perms(0); perms(1)
        for e in range(8):
            if e + 2 < 8: perms(e + 2)
            else: g.nop(1)
            g(f"v_mfma_f32_16x16x32_bf16 {vr(acc)}, {vr(V_A+4*e)}, {vr(V_B+4*(e&3))}, {vr(acc)}")
        if loads: v_loads(g, half)
    if not loads: g.nop(8)

def ln_finish(g, steps):
    g(f"""v_pk_add_f32 v[{V_T0}:{V_T1}], v[{V_T0}:{V_T1}], v[{V_T2}:{V_T3}]
          v_add_f32 v{V_T0}, v{V_T0}, v{V_T1}""")
    xreduce(g, V_T0, V_T1, "v_add_f32", steps)
    g(f"v_mul_f32 v{V_T0}, {f32bits(1.0/448.0):#x}, v{V_T0}")
    bf16_round(g, V_T0, V_T0)
    g(f"v_add_f32 v{V_T0}, {f32bits(1e-5):#x}, v{V_T0}")
    bf16_round(g, V_T0, V_T0)
    g(f"v_sqrt_f32 v{V_T0}, v{V_T0}")
    bf16_round(g, V_T4, V_T4)
    bf16_round(g, V_T0, V_T0)
    g(f"""v_rcp_f32 v{V_T2}, v{V_T0}
          v_mov_b32 v{V_T5}, v{V_T4}
          v_mov_b32 v{V_T1}, v{V_T0}
          v_mov_b32 v{V_T3}, v{V_T2}""")

def ln_stats(g, XR, ndw, steps, T):
    def unp(i, t):
        g(f"v_lshlrev_b32 v{t}, 16, v{XR+i}")
        g(f"v_and_b32 v{t+1}, s{S_HIM}, v{XR+i}")
    unp(0, V_T0); unp(1, V_T2)
    for i in range(2, ndw):
        t = T + 2*(i & 1); a = V_T0 + 2*(i & 1)
        unp(i, t)
        g(f"v_pk_add_f32 v[{a}:{a+1}], v[{a}:{a+1}], v[{t}:{t+1}]")
    g(f"""v_pk_add_f32 v[{V_T0}:{V_T1}], v[{V_T0}:{V_T1}], v[{V_T2}:{V_T3}]
          v_add_f32 v{V_T0}, v{V_T0}, v{V_T1}""")
    xreduce(g, V_T0, V_T1, "v_add_f32", steps)
    g(f"""v_mul_f32 v{V_T4}, {f32bits(1.0/448.0):#x}, v{V_T0}
          v_mul_f32 v{V_T5}, {f32bits(1.0/448.0):#x}, v{V_T0}
          v_mov_b32 v{V_T0}, 0
          v_mov_b32 v{V_T1}, 0
          v_mov_b32 v{V_T2}, 0
          v_mov_b32 v{V_T3}, 0""")
    for i in range(ndw):
        t = T + 2*(i & 1); a = V_T0 + 2*(i & 1)
        unp(i, t)
        g(f"v_pk_add_f32 v[{t}:{t+1}], v[{t}:{t+1}], v[{V_T4}:{V_T5}] neg_lo:[0,1] neg_hi:[0,1]")
        g(f"v_pk_fma_f32 v[{a}:{a+1}], v[{t}:{t+1}], v[{t}:{t+1}], v[{a}:{a+1}]")
    ln_finish(g, steps)

def ln_apply(g, X, ndw, T):
    for i in range(ndw):
        a, c, e = T, T+2, T+4
        g(f"""v_lshlrev_b32 v{a}, 16, v{X+i}
              v_and_b32 v{a+1}, s{S_HIM}, v{X+i}
              v_pk_add_f32 v[{a}:{a+1}], v[{a}:{a+1}], v[{V_T4}:{V_T5}] neg_lo:[0,1] neg_hi:[0,1]
              v_cvt_pk_bf16_f32 v{a+1}, v{a}, v{a+1}
              v_lshlrev_b32 v{a}, 16, v{a+1}
              v_and_b32 v{a+1}, s{S_HIM}, v{a+1}
              v_pk_mul_f32 v[{c}:{c+1}], v[{a}:{a+1}], v[{V_T2}:{V_T3}]
              v_pk_fma_f32 v[{e}:{e+1}], v[{c}:{c+1}], v[{V_T0}:{V_T1}], v[{a}:{a+1}] neg_lo:[1,0,0] neg_hi:[1,0,0]
              v_pk_fma_f32 v[{c}:{c+1}], v[{e}:{e+1}], v[{V_T2}:{V_T3}], v[{c}:{c+1}]
              v_cvt_pk_bf16_f32 v{X+i}, v{c}, v{c+1}""")

def dma(g, voff, srdreg, soff, m0reg, fl=""):
    g(f"""s_mov_b32 m0, s{m0reg}
          s_add_u32 s{m0reg}, s{m0reg}, 1024
          buffer_load_dwordx4 v{voff}, {S4(srdreg)}, s{soff} offen {fl} lds""")


def small_dma(g):
    g(f"s_sub_u32 s{S_Cx}, s{S_WAVE}, 4")
    g(f"s_cmp_ge_u32 s{S_CS}, 56")
    g(f"s_cbranch_scc1 L_nowd")
    srd(g, S_T, P_WD, 1792*448*2)
    g(f"""v_mul_u32_u24 v{V_T0}, 896, v{V_LANE}
          s_mul_i32 s{S_A}, s{S_Cx}, {7*64*896}
          s_lshl_b32 s{S_Bx}, s{S_CS}, 4
          s_add_u32 s{S_A}, s{S_A}, s{S_Bx}
          s_mul_i32 s{S_Bx}, s{S_Cx}, 7168
          s_add_u32 s{S_Bx}, s{S_Bx}, {L_WD}""")
    for i in range(7):
        dma(g, V_T0, S_T, S_A, S_Bx, "nt" if NTF & 4 else "")
        g(f"s_add_u32 s{S_A}, s{S_A}, {64*896}")
    g.label(f"L_nowd")
    g(f"""s_cmp_ge_u32 s{S_J}, 112
          s_cbranch_scc1 L_nogu
          s_cmp_ge_u32 s{S_Cx}, 2
          s_cselect_b32 s{S_T}, s{P_WU}, s{P_WG}
          s_cselect_b32 s{S_T+1}, s{P_WU+1}, s{P_WG+1}
          s_and_b32 s{S_T+1}, s{S_T+1}, 0xffff
          s_mov_b32 s{S_T+2}, {448*1792*2}
          s_mov_b32 s{S_T+3}, 0x20000
          v_lshrrev_b32 v{V_T0}, 1, v{V_LANE}
          v_mul_u32_u24 v{V_T0}, 3584, v{V_T0}
          v_and_b32 v{V_T1}, 1, v{V_LANE}
          v_lshl_add_u32 v{V_T0}, v{V_T1}, 4, v{V_T0}
          s_and_b32 s{S_A}, s{S_Cx}, 1
          s_mul_i32 s{S_A}, s{S_A}, {224*3584}
          s_lshl_b32 s{S_Bx}, s{S_J}, 5
          s_add_u32 s{S_A}, s{S_A}, s{S_Bx}
          s_mul_i32 s{S_Bx}, s{S_Cx}, 7168
          s_add_u32 s{S_Bx}, s{S_Bx}, {L_WD}""")
    for i in range(7):
        dma(g, V_T0, S_T, S_A, S_Bx, "nt" if NTF & 4 else "")
        g(f"s_add_u32 s{S_A}, s{S_A}, {32*3584}")
    g.label(f"L_nogu")

def wo_dma(g):
    g(f"s_sub_u32 s{S_Cx}, s{S_WAVE}, 4")
    srd(g, S_T, P_WO, 4096*448*2)
    g(f"""v_lshrrev_b32 v{V_T0}, 3, v{V_LANE}
          v_bfe_u32 v{V_T1}, v{V_LANE}, 1, 2
          v_lshrrev_b32 v{V_T2}, 4, v{V_LANE}
          v_xor_b32 v{V_T1}, v{V_T1}, v{V_T2}
          v_mul_u32_u24 v{V_T0}, 896, v{V_T0}
          v_and_b32 v{V_T2}, 1, v{V_LANE}
          v_lshl_add_u32 v{V_T0}, v{V_T2}, 4, v{V_T0}
          v_lshl_add_u32 v{V_T2}, v{V_T1}, 5, v{V_T0}
          v_xor_b32 v{V_T1}, 2, v{V_T1}
          v_lshl_add_u32 v{V_T3}, v{V_T1}, 5, v{V_T0}
          s_lshl_b32 s{S_A}, s{S_I}, 7
          s_lshl_b32 s{S_Bx}, s{S_Cx}, 5
          s_add_u32 s{S_A}, s{S_A}, s{S_Bx}
          s_mul_i32 s{S_A}, s{S_A}, 896
          s_mul_i32 s{S_Bx}, s{S_Cx}, {28*1024}""")
    for kg in range(4):
        for cb7 in range(7):
            dma(g, V_T2 + (kg & 1), S_T, S_A, S_Bx, "nt" if NTF & 2 else "")
            g(f"s_add_u32 s{S_A}, s{S_A}, {128 if cb7 < 6 else 8*896-6*128}")

STAG = int(os.environ.get("STAG", "0"))
BAL = int(os.environ.get("BAL", "1"))
BALS = int(os.environ.get("BALS", "3"))
NTF = int(os.environ.get("NTF", "1"))
TRS = int(os.environ.get("TRS", "0"))
TRW = int(os.environ.get("TRW", "0"))
WARM = int(os.environ.get("WARM", "0"))
WARM0 = int(os.environ.get("WARM0", "0"))
NB1 = 16
def wait_flag(g, tag, off, val):
    g(f"v_mov_b32 v{V_T0}, {L_FLAG}")
    g.label(f"L_wf{tag}")
    g(f"""ds_read_b32 v{V_T1}, v{V_T0} offset:{off}
          s_waitcnt lgkmcnt(0)
          v_cmp_gt_u32 vcc, {val}, v{V_T1}""")
    poll_branch(g, f"L_wf{tag}")

def flag_add(g, off):
    g(f"""v_mov_b32 v{V_T0}, {L_FLAG}
          v_mov_b32 v{V_T1}, 1
          s_mov_b64 exec, 1
          ds_add_u32 v{V_T0}, v{V_T1} offset:{off}
          s_mov_b64 exec, -1""")

def prefetch(g):
    k_loads(g, 0); k_loads(g, 1); v_loads(g, 0); v_loads(g, 1)

def lds_prefetch(g):
    g(f"""s_add_u32 s{S_A}, s{S_OFF}, {8*16384}
          s_lshl_b32 s{S_Bx}, s{S_WAVE}, 15""")
    for which in range(2):
        vo = V_K0 if which == 0 else V_K1
        for j in range(8):
            g(f"""s_mov_b32 m0, s{S_Bx}
                  s_add_u32 s{S_Bx}, s{S_Bx}, {1024-64 if j < 7 else 1024+7*64}
                  buffer_load_dwordx4 v{vo}, {S4(S_K)}, s{S_A} offen offset:{j*64} nt lds""")
    for half in range(2):
        for j in range(8):
            vo = V_V0 if j < 4 else V_V1
            off = (j & 3)*512 + half*256
            idx = half*8 + j + 1
            noff = ((idx & 3)*512 + (idx >> 3)*256) if idx < 16 else 0
            g(f"""s_mov_b32 m0, s{S_Bx}
                  s_add_u32 s{S_Bx}, s{S_Bx}, {(1024 + off - noff) & 0xffffffff:#x}
                  buffer_load_dwordx4 v{vo}, {S4(S_V)}, s{S_A} offen offset:{off} nt lds""")

def cert(g):
    g(f"s_cmp_eq_u32 s{S_WAVE}, 7")
    g("s_cbranch_scc0 L_nocert")
    srd(g, S_T, P_DBG, 256)
    g(f"v_lshlrev_b32 v{V_T0}, 5, v{V_LANE}")
    g("s_mov_b64 exec, 0xff")
    g.label("L_cert")
    g(f"""buffer_load_dword v{V_T1}, v{V_T0}, {S4(S_T)}, 0 offen sc1
          s_waitcnt vmcnt(0)
          v_cmp_gt_u32 vcc, 32, v{V_T1}""")
    poll_branch(g, "L_cert")
    g("s_mov_b64 exec, -1")
    g.label("L_nocert")

def q_gather(g):
    g(f"""s_lshl_b32 s{S_A}, s{S_WG}, 13
          s_add_u32 s{S_A}, s{S_A}, {WS_IN+O_GO:#x}
          s_add_u32 s{S_Cx}, s{P_WS}, s{S_A}
          s_addc_u32 s{S_Dx}, s{P_WS+1}, 0
          s_lshl_b32 s{S_A}, s{S_B}, 13
          s_lshl_b32 s{S_Bx}, s{S_HKV}, 10
          s_add_u32 s{S_A}, s{S_A}, s{S_Bx}
          s_lshl_b32 s{S_Bx}, s{S_S}, 16
          s_add_u32 s{S_A}, s{S_A}, s{S_Bx}
          s_sub_u32 s{S_Bx}, s{S_WAVE}, 4
          s_lshl_b32 s{S_Bx}, s{S_Bx}, 8
          s_add_u32 s{S_A}, s{S_A}, s{S_Bx}
          s_add_u32 s{S_EX}, s{P_WS}, s{S_A}
          s_addc_u32 s{S_EX+1}, s{P_WS+1}, 0
          s_add_u32 s{S_Bx}, s{S_Bx}, {L_QIMG}
          v_mov_b32 v{V_T2}, s{S_Bx}""")
    g.label(f"L_pq")
    g(f"""s_load_dword s64, s[{S_Cx}:{S_Dx}], 0 glc
          s_waitcnt lgkmcnt(0)
          s_cmp_lg_u32 s64, -1""")
    poll_branch(g, f"L_pq", "scc1")
    g.stamp(3)
    for rnd in range(2):
        g(f"s_load_dwordx16 s[64:79], s[{S_EX}:{S_EX+1}], {rnd*128} glc")
        g(f"s_load_dwordx16 s[36:51], s[{S_EX}:{S_EX+1}], {rnd*128+64} glc")
        g("s_waitcnt lgkmcnt(0)")
        for i in range(16):
            g(f"v_mov_b32 v{16+rnd*32+i}, s{64+i}")
        for i in range(16):
            g(f"v_mov_b32 v{32+rnd*32+i}, s{36+i}")
    g(f"s_load_dwordx16 s[36:51], s[0:1], 0")
    g("s_mov_b64 exec, 1")
    for u in range(16):
        g(f"ds_write_b128 v{V_T2}, {vr(16+4*u)} offset:{u*16}")
    g("s_mov_b64 exec, -1")
    g("s_waitcnt lgkmcnt(0)")
    flag_add(g, 12)

def gen(debug=0):
    g = G(); g.prof = debug & 2
    g(f"s_cmp_ge_u32 s{S_WG}, 256")
    g("s_cbranch_scc1 L_end")
    g(f"s_load_dwordx16 s[36:51], s[0:1], 0")
    g(f"s_load_dwordx8 s[52:59], s[0:1], 64")
    if WARM0:
        g(f"""s_getpc_b64 s[{S_Cx}:{S_Dx}]
              v_lshlrev_b32 v{V_T0}, 4, v0
              global_load_dwordx4 v[128:131], v{V_T0}, s[{S_Cx}:{S_Dx}]
              v_add_u32 v{V_T0}, 0x2000, v{V_T0}
              global_load_dwordx4 v[132:135], v{V_T0}, s[{S_Cx}:{S_Dx}]""")
    g(f"""v_lshrrev_b32 v{V_T0}, 6, v0
          v_and_b32 v{V_LANE}, 63, v0
          v_and_b32 v{V_N}, 15, v0
          v_bfe_u32 v{V_G}, v0, 4, 2
          v_readfirstlane_b32 s{S_WAVE}, v{V_T0}
          s_and_b32 s{S_HKV}, s{S_WG}, 7
          s_lshr_b32 s{S_R}, s{S_WG}, 3
          s_lshr_b32 s{S_B}, s{S_WG}, 5
          s_and_b32 s{S_S}, s{S_R}, 3
          s_lshl_b32 s{S_I}, s{S_HKV}, 2
          s_add_u32 s{S_I}, s{S_I}, s{S_S}
          s_mov_b32 s{S_C}, {f32bits(C_SC):#x}
          s_mov_b32 s{S_SELLO}, 0x05040100
          s_mov_b32 s{S_SELHI}, 0x07060302
          s_mov_b32 s{S_HIM}, 0xffff0000
          s_mov_b32 s{S_POLL}, 0x100000
          s_mul_i32 s{S_J}, s{S_HKV}, 14
          s_lshl_b32 s{S_A}, s{S_B}, 1
          s_add_u32 s{S_J}, s{S_J}, s{S_A}
          s_add_u32 s{S_J}, s{S_J}, s{S_S}
          s_sub_u32 s{S_J}, s{S_J}, 1
          s_cmp_eq_u32 s{S_B}, 7
          s_cselect_b32 s{S_J}, 0xffff, s{S_J}
          s_cmp_eq_u32 s{S_S}, 0
          s_cselect_b32 s{S_J}, 0xffff, s{S_J}
          s_cmp_eq_u32 s{S_S}, 3
          s_cselect_b32 s{S_J}, 0xffff, s{S_J}
          s_mul_i32 s{S_CS}, s{S_HKV}, 7
          s_add_u32 s{S_CS}, s{S_CS}, s{S_B}
          s_cmp_eq_u32 s{S_B}, 7
          s_cselect_b32 s{S_CS}, 0xffff, s{S_CS}
          s_cmp_lg_u32 s{S_S}, 0
          s_cselect_b32 s{S_CS}, 0xffff, s{S_CS}""")
    g(f"""v_lshlrev_b32 v{V_K0}, 9, v{V_N}
          v_lshl_add_u32 v{V_K0}, v{V_G}, 4, v{V_K0}
          v_add_u32 v{V_K1}, 0x2000, v{V_K0}
          v_lshlrev_b32 v{V_V0}, 11, v{V_G}
          v_lshl_add_u32 v{V_V0}, v{V_N}, 4, v{V_V0}
          v_add_u32 v{V_V1}, 0x2000, v{V_V0}""")
    g(f"""s_lshl_b32 s{S_A}, s{S_B}, 3
          s_add_u32 s{S_A}, s{S_A}, s{S_HKV}
          s_lshl_b32 s{S_BASE}, s{S_A}, 22
          s_lshl_b32 s{S_Bx}, s{S_S}, 20
          s_add_u32 s{S_BASE}, s{S_BASE}, s{S_Bx}
          s_lshl_b32 s{S_Bx}, s{S_WAVE}, 14
          s_add_u32 s{S_OFF}, s{S_BASE}, s{S_Bx}
          s_lshl_b32 s{S_Dx}, s{S_A}, 8
          s_add_u32 s{S_Dx}, s{S_Dx}, {WS_TC:#x}""")
    g(f"""v_mov_b32 v{V_T0}, {L_FLAG}
          v_mov_b32 v16, 0
          v_mov_b32 v17, 0
          v_mov_b32 v18, 0
          v_mov_b32 v19, 0
          s_cmp_eq_u32 s{S_WAVE}, 4
          s_cbranch_scc0 L_nz
          ds_write_b128 v{V_T0}, v[16:19]
          ds_write_b128 v{V_T0}, v[16:19] offset:16
          ds_write_b128 v{V_T0}, v[16:19] offset:32""")
    g.label("L_nz")
    g("s_waitcnt lgkmcnt(0)")
    if g.prof:
        for sl in STAMP_SLOTS: g(f"s_mov_b32 s{sl}, 0")
    g.stamp(0)
    g(f"s_cmp_lt_u32 s{S_WAVE}, 4")
    g("s_cbranch_scc1 L_qphase")
    srd(g, S_K, P_K, 0x10000000)
    srd(g, S_V, P_V, 0x10000000)
    srd(g, S_WS, P_WS, WS_BYTES)
    g("s_setprio 2")
    g("s_barrier")
    prefetch(g)
    g("s_setprio 0")
    g.stamp(2)
    q_gather(g)
    g(f"s_mov_b32 s{S_NEXT}, 256")
    g("s_branch L_qwait")
    g.label("L_qphase")
    S_P = S_NEXT2
    srd(g, S_K, P_K, 0x10000000)
    srd(g, S_V, P_V, 0x10000000)
    srd(g, S_T, P_X, 7168)
    srd(g, S_WS, P_WS, WS_BYTES)
    g(f"""s_add_u32 s{S_P}, s{S_B}, 4
          s_cmp_eq_u32 s{S_S}, 3
          s_cselect_b32 s{S_P}, s{S_P}, 99
          s_cmp_eq_u32 s{S_B}, 7
          s_cselect_b32 s{S_P}, s{S_S}, s{S_P}
          s_cmp_ge_u32 s{S_P}, 8
          s_cbranch_scc1 L_noq""")
    srd(g, S_T2, P_WQ, 448*4096*2)
    XR = 16; XA = 44; WB = 128
    g(f"""v_lshrrev_b32 v{V_T3}, 3, v{V_LANE}
          v_lshlrev_b32 v{V_T3}, 13, v{V_T3}
          v_and_b32 v{V_T4}, 7, v{V_LANE}
          v_lshl_add_u32 v{V_T3}, v{V_T4}, 4, v{V_T3}
          s_lshl_b32 s{S_A}, s{S_WAVE}, 20
          s_lshl_b32 s{S_Bx}, s{S_HKV}, 10
          s_add_u32 s{S_A}, s{S_A}, s{S_Bx}
          s_lshl_b32 s{S_Bx}, s{S_P}, 7
          s_add_u32 s{S_A}, s{S_A}, s{S_Bx}
          s_lshl_b32 s{S_Bx}, s{S_WAVE}, 15""")
    for i in range(16):
        dma(g, V_T3, S_T2, S_A, S_Bx, "nt" if NTF & 1 else "")
        g(f"s_add_u32 s{S_A}, s{S_A}, 0x10000")
    g(f"""v_and_b32 v{V_T0}, 7, v{V_LANE}
          v_mul_u32_u24 v{V_T0}, 896, v{V_T0}
          v_lshrrev_b32 v{V_T1}, 3, v{V_LANE}
          v_lshl_add_u32 v{V_T1}, v{V_T1}, 4, v{V_T0}
          v_lshl_add_u32 v{V_T2}, v{V_G}, 4, v{V_T0}
          s_lshl_b32 s{S_A}, s{S_WAVE}, 8""")
    for t in range(7):
        g(f"buffer_load_dwordx4 {vr(XR+4*t)}, v{V_T1}, {S4(S_T)}, 0 offen offset:{t*128}")
    for ks in range(4):
        g(f"buffer_load_dwordx4 {vr(XA+4*ks)}, v{V_T2}, {S4(S_T)}, s{S_A} offen offset:{ks*64}")
    g.label("L_noq")
    CLR = 124
    g(f"""s_mul_i32 s{S_A}, s{S_B}, 896
          s_mul_i32 s{S_Bx}, s{S_I}, 28
          s_add_u32 s{S_A}, s{S_A}, s{S_Bx}
          v_lshlrev_b32 v{V_T5}, 1, v{V_N}
          buffer_load_ushort v{V_GU}, v{V_T5}, {S4(S_T)}, s{S_A} offen
          v_mov_b32 v{CLR}, -1
          v_mov_b32 v{CLR+1}, -1
          v_mov_b32 v{CLR+2}, -1
          v_mov_b32 v{CLR+3}, -1
          v_lshlrev_b32 v{V_T0}, 4, v0
          s_lshl_b32 s{S_A}, s{S_WG}, 13
          s_add_u32 s{S_A}, s{S_A}, {WS_IN:#x}
          buffer_store_dwordx4 {vr(CLR)}, v{V_T0}, {S4(S_WS)}, s{S_A} offen sc1
          s_cmp_eq_u32 s{S_WAVE}, 3
          s_cbranch_scc0 L_noclr""")
    g(f"""s_add_u32 s{S_A}, s{S_A}, 4096
          s_lshl_b32 s{S_Bx}, s{S_WG}, 7
          s_add_u32 s{S_Bx}, s{S_Bx}, {WS_HH-256:#x}
          s_lshl_b32 s{S_Cx}, s{S_WG}, 5
          s_add_u32 s{S_Cx}, s{S_Cx}, {WS_H-384:#x}
          v_mov_b32 v{V_T1}, s{S_A}
          v_mov_b32 v{V_T2}, s{S_Bx}
          v_cmp_lt_u32 vcc, 15, v{V_LANE}
          v_mov_b32 v{V_T3}, s{S_Cx}
          s_nop 0
          v_cndmask_b32 v{V_T1}, v{V_T1}, v{V_T2}, vcc
          v_cmp_lt_u32 vcc, 23, v{V_LANE}
          v_lshlrev_b32 v{V_T0}, 4, v{V_LANE}
          s_nop 0
          v_cndmask_b32 v{V_T1}, v{V_T1}, v{V_T3}, vcc
          v_add_u32 v{V_T1}, v{V_T1}, v{V_T0}
          s_mov_b64 exec, 0x3ffffff
          buffer_store_dwordx4 {vr(CLR)}, v{V_T1}, {S4(S_WS)}, 0 offen sc1
          s_mov_b64 exec, -1""")
    g.label("L_noclr")
    g("s_barrier")
    g(f"""s_cmp_ge_u32 s{S_P}, 8
          s_cbranch_scc0 L_prod""")
    k_loads(g, 0)
    g("s_waitcnt vmcnt(8)")
    flag_add(g, 4)
    g(f"""s_cmp_eq_u32 s{S_WAVE}, 0
          s_cbranch_scc0 L_pf2
          s_mov_b32 s{S_NEXT}, 1
          s_branch L_arrive""")
    g.label("L_prod")
    g(f"""v_lshlrev_b32 v104, 10, v{V_G}
          v_bfe_u32 v{V_T0}, v{V_LANE}, 2, 2
          v_lshl_add_u32 v104, v{V_T0}, 7, v104
          v_and_b32 v{V_T0}, 3, v{V_LANE}
          v_lshl_add_u32 v104, v{V_T0}, 3, v104
          s_lshl_b32 s{S_Bx}, s{S_WAVE}, 15
          v_add_u32 v104, s{S_Bx}, v104
          s_setprio 3""")
    g("s_waitcnt vmcnt(6)")
    for ks in range(4):
        for nt in range(4):
            r = WB + (ks*4 + nt)*4
            g(f"ds_read_b64_tr_b16 v[{r}:{r+1}], v104 offset:{ks*4096+nt*32}")
            g(f"ds_read_b64_tr_b16 v[{r+2}:{r+3}], v104 offset:{ks*4096+nt*32+512}")
    ln_stats(g, XR, 28, [8, 16, 32], 96)
    g("s_waitcnt vmcnt(1)")
    ln_apply(g, XA, 16, 96)
    g("s_waitcnt lgkmcnt(0)")
    for ks in range(4):
        for nt in range(4):
            c = "0" if ks == 0 else vr(104+4*nt)
            g(f"v_mfma_f32_16x16x32_bf16 {vr(104+4*nt)}, {vr(WB+(ks*4+nt)*4)}, {vr(XA+4*ks)}, {c}")
    g(f"""v_lshlrev_b32 v{V_T4}, 7, v{V_G}
          v_lshl_add_u32 v{V_T4}, v{V_N}, 4, v{V_T4}
          s_mov_b32 s{S_EX}, 0x00ff00ff
          s_mov_b32 s{S_EX+1}, 0x00ff00ff
          s_lshl_b32 s{S_A}, s{S_WAVE}, 11
          s_add_u32 s{S_A}, s{S_A}, {L_CB}
          v_add_u32 v{V_T5}, s{S_A}, v{V_T4}
          s_lshl_b32 s{S_A}, s{S_WAVE}, 9
          s_add_u32 s{S_A}, s{S_A}, {L_CB}
          v_add_u32 v{V_T4}, s{S_A}, v{V_T4}
          s_mov_b64 exec, s[{S_EX}:{S_EX+1}]""")
    for nt in range(4):
        g(f"ds_write_b128 v{V_T5}, {vr(104+4*nt)} offset:{nt*512}")
    g(f"""s_mov_b64 exec, -1
          s_waitcnt lgkmcnt(0)""")
    flag_add(g, 0)
    g(f"""s_lshl_b32 s{S_A}, s{S_WAVE}, 8
          s_add_u32 s{S_A}, s{S_A}, {L_QP}
          v_lshlrev_b32 v40, 5, v{V_N}
          v_lshl_add_u32 v40, v{V_G}, 3, v40
          v_add_u32 v40, s{S_A}, v40
          v_lshlrev_b32 v{V_T2}, 4, v{V_N}
          v_add_u32 v{V_T2}, s{S_A}, v{V_T2}
          v_bfe_u32 v{V_T3}, v{V_LANE}, 1, 3
          v_lshlrev_b32 v{V_T3}, 13, v{V_T3}
          v_lshl_add_u32 v{V_T3}, v{V_G}, 16, v{V_T3}
          v_and_b32 v{V_T5}, 1, v{V_LANE}
          v_lshl_add_u32 v{V_T3}, v{V_T5}, 4, v{V_T3}
          s_lshl_b32 s{S_A}, s{S_HKV}, 10
          s_lshl_b32 s{S_Bx}, s{S_P}, 7
          s_add_u32 s{S_A}, s{S_A}, s{S_Bx}
          s_lshl_b32 s{S_Bx}, s{S_WAVE}, 5
          s_add_u32 s{S_A}, s{S_A}, s{S_Bx}""")
    wait_flag(g, "c", 0, 4)
    for w in range(4):
        g(f"ds_read_b128 {vr(16+4*w)}, v{V_T4} offset:{w*2048}")
    g(f"""s_waitcnt lgkmcnt(0)
          v_pk_add_f32 v[16:17], v[16:17], v[20:21]
          v_pk_add_f32 v[18:19], v[18:19], v[22:23]
          v_pk_add_f32 v[24:25], v[24:25], v[28:29]
          v_pk_add_f32 v[26:27], v[26:27], v[30:31]
          v_pk_add_f32 v[16:17], v[16:17], v[24:25]
          v_pk_add_f32 v[18:19], v[18:19], v[26:27]
          v_cvt_pk_bf16_f32 v16, v16, v17
          v_cvt_pk_bf16_f32 v17, v18, v19
          s_mov_b64 exec, s[{S_EX}:{S_EX+1}]
          ds_write_b64 v40, v[16:17]
          s_mov_b64 exec, -1
          s_waitcnt lgkmcnt(0)
          ds_read_b128 v[20:23], v{V_T2}
          s_waitcnt lgkmcnt(0)
          buffer_store_dwordx4 v[20:23], v{V_T3}, {S4(S_WS)}, s{S_A} offen sc1
          s_setprio 0""")
    g.stamp(1)
    g("s_waitcnt vmcnt(0)")
    flag_add(g, 4)
    g(f"""s_cmp_eq_u32 s{S_WAVE}, 0
          s_cbranch_scc0 L_pf
          s_mov_b32 s{S_NEXT}, 0""")
    g.label("L_arrive")
    wait_flag(g, "d", 4, 4)
    g(f"""s_lshl_b32 s{S_A}, s{S_HKV}, 5
          s_add_u32 s{S_Cx}, s{P_DBG}, s{S_A}
          s_addc_u32 s{S_Dx}, s{P_DBG+1}, 0
          s_mov_b32 s{S_A}, 1
          s_atomic_add s{S_A}, s[{S_Cx}:{S_Dx}], 0 glc
          s_lshl_b32 s{S_Bx}, s{S_HKV}, 13
          s_add_u32 s{S_Bx}, s{S_Bx}, {WS_IN+O_GO:#x}
          s_add_u32 s{S_Cx}, s{P_WS}, s{S_Bx}
          s_addc_u32 s{S_Dx}, s{P_WS+1}, 0
          s_waitcnt lgkmcnt(0)""")
    g.stamp(2)
    g(f"""s_and_b32 s{S_A}, s{S_A}, 31
          s_cmp_eq_u32 s{S_A}, 31
          s_cbranch_scc0 L_nonot
          s_mov_b32 s{S_A}, 1""")
    for half in range(2):
        for r in range(16):
            g(f"s_atomic_add s{S_A}, s[{S_Cx}:{S_Dx}], {r*65536:#x}")
        if half == 0:
            g(f"""s_add_u32 s{S_Cx}, s{S_Cx}, 0x100000
                  s_addc_u32 s{S_Dx}, s{S_Dx}, 0""")
    g.label("L_nonot")
    g(f"""s_cmp_eq_u32 s{S_NEXT}, 1
          s_cbranch_scc1 L_pf2""")
    g.label("L_pf")
    k_loads(g, 0)
    g.label("L_pf2")
    k_loads(g, 1); v_loads(g, 0); v_loads(g, 1)
    lds_prefetch(g)
    g.label("L_qwait")
    for e in range(8):
        m16 = 3 << (2*e); m32 = m16 | (m16 << 16)
        g(f"s_mov_b32 s{S_MASK+2*e}, {m32:#x}")
        g(f"s_mov_b32 s{S_MASK+2*e+1}, {m32:#x}")
    g(f"""v_lshrrev_b32 v{V_T2}, 7, v0
          s_lshl_b32 s{S_A}, s{S_B}, 5
          s_add_u32 s{S_A}, s{S_A}, s{S_HKV}
          v_lshlrev_b32 v{V_T2}, 3, v{V_T2}
          v_add_u32 v{V_T2}, s{S_A}, v{V_T2}
          v_lshlrev_b32 v{V_IN1}, 13, v{V_T2}
          v_and_b32 v{V_T3}, 127, v0
          v_lshl_add_u32 v{V_IN1}, v{V_T3}, 2, v{V_IN1}
          s_lshl_b32 s{S_A}, s{S_S}, 9
          s_add_u32 s{S_A}, s{S_A}, {WS_IN:#x}
          v_add_u32 v{V_IN1}, s{S_A}, v{V_IN1}""")
    g(f"""v_lshlrev_b32 v{V_T2}, 3, v{V_G}
          v_add_u32 v{V_T2}, s{S_WAVE}, v{V_T2}
          v_lshl_add_u32 v{V_T2}, v{V_T2}, 4, v{V_N}
          v_mul_u32_u24 v{V_T3}, 4682, v{V_T2}
          v_lshrrev_b32 v{V_T3}, 16, v{V_T3}
          v_mul_u32_u24 v{V_T4}, 14, v{V_T3}
          v_sub_u32 v{V_T4}, v{V_T2}, v{V_T4}
          v_and_b32 v{V_T5}, 3, v{V_T3}
          v_lshlrev_b32 v{V_T5}, 3, v{V_T5}
          v_lshrrev_b32 v{V_T3}, 2, v{V_T3}
          v_add_u32 v{V_T5}, v{V_T5}, v{V_T3}
          s_lshl_b32 s{S_A}, s{S_B}, 5
          v_add_u32 v{V_T5}, s{S_A}, v{V_T5}
          v_lshlrev_b32 v{V_IN2}, 13, v{V_T5}
          v_lshl_add_u32 v{V_IN2}, v{V_T4}, 2, v{V_IN2}
          s_lshl_b32 s{S_A}, s{S_I}, 6
          s_add_u32 s{S_A}, s{S_A}, {WS_IN+O_IN2:#x}
          v_add_u32 v{V_IN2}, s{S_A}, v{V_IN2}
          v_cmp_lt_u32 vcc, 447, v{V_T2}
          v_mov_b32 v{V_T3}, 0x7ffffff0
          s_nop 0
          v_cndmask_b32 v{V_IN2}, v{V_IN2}, v{V_T3}, vcc""")
    for r in range(8):
        g(f"v_mov_b32 v{V_ACC+r}, 0")
    g(f"""v_mov_b32 v{V_M}, 0xf149f2ca
          v_mov_b32 v{V_L}, 0
          v_and_b32 v{V_T4}, 1, v{V_N}
          v_lshlrev_b32 v{V_T4}, 9, v{V_T4}
          v_lshl_add_u32 v{V_T4}, v{V_G}, 4, v{V_T4}
          v_add_u32 v{V_T4}, {L_QIMG}, v{V_T4}
          s_nop 0""")
    wait_flag(g, "q", 12, 4)
    for j in range(8):
        g(f"ds_read_b128 {vr(V_Q+4*j)}, v{V_T4} offset:{j*64}")
    g("s_waitcnt lgkmcnt(0)")
    g.stamp(4)
    g(f"""s_cmp_ge_u32 s{S_WAVE}, 4
          s_cbranch_scc1 L_last
          s_add_u32 s{S_OFF}, s{S_OFF}, {12*16384}""")
    tile_body(g, [56, 56, 56, 56], True)
    g(f"""s_add_u32 s{S_OFF}, s{S_OFF}, {4*16384}
          s_mov_b32 s{S_NEXT}, 12
          s_mov_b32 s{S_NEXT2}, 0
          s_lshl_b32 s{S_A}, s{S_WAVE}, 2
          s_add_u32 s{S_A}, s{S_A}, {L_FLAG+16}
          v_mov_b32 v{V_T0}, s{S_A}
          v_mov_b32 v{V_T1}, 1
          s_waitcnt vmcnt(32)
          s_mov_b64 exec, 1
          ds_write_b32 v{V_T0}, v{V_T1}
          s_mov_b64 exec, -1""")
    if BAL:
        g(f"""s_cmp_eq_u32 s{S_B}, 7
              s_cbranch_scc1 L_nobal
              s_cmp_lt_u32 s{S_B}, 4
              s_cselect_b32 s{S_Bx}, {4*BALS}, 12
              s_cselect_b32 s{S_Cx}, {1 if BALS == 0 else 0}, 0
              s_cmp_eq_u32 s{S_Cx}, 1
              s_cbranch_scc1 L_nobal
              s_lshl_b32 s{S_A}, s{S_S}, 2
              s_add_u32 s{S_A}, s{S_A}, s{S_WAVE}
              s_cmp_eq_u32 s{S_A}, 3
              s_cselect_b32 s{S_NEXT}, 11, s{S_NEXT}
              s_cmp_eq_u32 s{S_A}, s{S_Bx}
              s_cselect_b32 s{S_NEXT}, 13, s{S_NEXT}
              s_cselect_b32 s{S_NEXT2}, 1, 0""")
        g.label("L_nobal")
    g.label("L_loop")
    if BAL:
        g(f"""s_cmp_eq_u32 s{S_NEXT}, s{S_NEXT2}
              s_cbranch_scc0 L_nosp
              s_lshl_b32 s{S_A}, s{S_S}, 20
              s_sub_u32 s{S_OFF}, s{S_BASE}, s{S_A}
              s_add_u32 s{S_OFF}, s{S_OFF}, {63*16384}""")
        g.label("L_nosp")
    if STAG or WARM or TRS or TRW:
        g(f"""s_cmp_eq_u32 s{S_WAVE}, 1
              s_cbranch_scc0 L_nopc""")
        flag_add(g, 44)
        g.label("L_nopc")
    if g.prof:
        for val, sl in ((12, 1), (8, 2), (4, 3)):
            g(f"s_cmp_eq_u32 s{S_NEXT}, {val}")
            g(f"s_cbranch_scc0 L_ps{val}")
            g.stamp(sl)
            g.label(f"L_ps{val}")
    tile_body(g, [24, 24, 24, 24], True)
    g(f"""s_add_u32 s{S_OFF}, s{S_OFF}, {4*16384}
          s_sub_u32 s{S_NEXT}, s{S_NEXT}, 1
          s_cmp_gt_u32 s{S_NEXT}, 0
          s_cbranch_scc1 L_loop""")
    if TRS or TRW:
        g(f"""s_cmp_eq_u32 s{S_WAVE}, 1
              s_cbranch_scc0 L_last""")
        flag_add(g, 44)
    g.label("L_last")
    tile_body(g, [24, 16, 8, 0], False)
    g(f"""s_cmp_lt_u32 s{S_WAVE}, 4
          s_cbranch_scc1 L_tail0
          s_cmp_eq_u32 s{S_NEXT}, 257
          s_cbranch_scc1 L_wdma
          s_mov_b32 s{S_NEXT}, 257
          s_lshl_b32 s{S_A}, s{S_WAVE}, 2
          s_add_u32 s{S_A}, s{S_A}, {L_FLAG}
          v_mov_b32 v{V_T0}, s{S_A}""")
    g.label("L_wl")
    g(f"""ds_read_b32 v{V_T1}, v{V_T0}
          s_waitcnt lgkmcnt(0)
          v_cmp_eq_u32 vcc, 0, v{V_T1}""")
    poll_branch(g, "L_wl")
    g(f"""s_sub_u32 s{S_A}, s{S_WAVE}, 4
          s_lshl_b32 s{S_A}, s{S_A}, 15
          v_lshlrev_b32 v{V_T0}, 4, v{V_LANE}
          v_add_u32 v{V_T0}, s{S_A}, v{V_T0}""")
    for u in range(32):
        g(f"ds_read_b128 {vr(128+4*u)}, v{V_T0} offset:{u*1024}")
    g("s_waitcnt lgkmcnt(0)")
    flag_add(g, 32)
    g("s_branch L_last")
    g.label("L_wdma")
    wait_flag(g, "w", 32, 4)
    g("s_setprio 2")
    cert(g)
    if TRS:
        g(f"v_mov_b32 v{V_T0}, {L_FLAG}")
        g.label("L_wps")
        g(f"""s_sleep 4
              ds_read_b32 v{V_T1}, v{V_T0} offset:44
              s_waitcnt lgkmcnt(0)
              v_cmp_gt_u32 vcc, {TRS}, v{V_T1}""")
        poll_branch(g, "L_wps")
    if not (NOW & 1): small_dma(g)
    if STAG:
        g(f"v_mov_b32 v{V_T0}, {L_FLAG}")
        g(f"v_mov_b32 v{V_T2}, s{S_B}")
        g.label("L_wst")
        g(f"""s_sleep 8
              ds_read_b32 v{V_T1}, v{V_T0} offset:44
              s_waitcnt lgkmcnt(0)
              v_cmp_gt_u32 vcc, v{V_T2}, v{V_T1}""")
        poll_branch(g, "L_wst")
    if TRW:
        g(f"v_mov_b32 v{V_T0}, {L_FLAG}")
        g.label("L_wpw")
        g(f"""s_sleep 4
              ds_read_b32 v{V_T1}, v{V_T0} offset:44
              s_waitcnt lgkmcnt(0)
              v_cmp_gt_u32 vcc, {TRW}, v{V_T1}""")
        poll_branch(g, "L_wpw")
    if not (NOW & 4): wo_dma(g)
    g("s_waitcnt vmcnt(0)")
    g("s_setprio 0")
    if WARM:
        g(f"""s_cmp_eq_u32 s{S_WAVE}, 6
              s_cbranch_scc0 L_tail0
              v_mov_b32 v{V_T0}, {L_FLAG}""")
        g.label("L_ww")
        g(f"""s_sleep 8
              ds_read_b32 v{V_T1}, v{V_T0} offset:44
              s_waitcnt lgkmcnt(0)
              v_cmp_gt_u32 vcc, {WARM}, v{V_T1}""")
        poll_branch(g, "L_ww")
        g(f"""s_getpc_b64 s[{S_Cx}:{S_Dx}]
              s_mov_b32 s{S_A}, 18""")
        g.label("L_wm")
        for i in range(4):
            g(f"s_load_dwordx16 s[64:79], s[{S_Cx}:{S_Dx}], {i*64}")
        g(f"""s_add_u32 s{S_Cx}, s{S_Cx}, 256
              s_addc_u32 s{S_Dx}, s{S_Dx}, 0
              s_waitcnt lgkmcnt(0)
              s_sub_u32 s{S_A}, s{S_A}, 1
              s_cmp_gt_u32 s{S_A}, 0
              s_cbranch_scc1 L_wm""")
    g.label("L_tail0")
    g.stamp(5)
    tail(g, debug)
    g.label("L_end")
    if g.prof:
        g(f"s_cmp_ge_u32 s{S_WG}, 256")
        g("s_cbranch_scc1 L_end2")
        g("s_waitcnt vmcnt(0)")
        g.stamp(15)
        g("s_mov_b64 exec, 1")
        g(f"s_lshl_b32 s{S_A}, s{S_WG}, 3")
        g(f"s_add_u32 s{S_A}, s{S_A}, s{S_WAVE}")
        g(f"s_lshl_b32 s{S_A}, s{S_A}, 7")
        g(f"s_add_u32 s{S_A}, s{S_A}, {WS_DBG+0x100000:#x}")
        g("v_mov_b32 v1, 0")
        for i, sl in enumerate(STAMP_SLOTS):
            g(f"v_mov_b32 v{16+i}, s{sl}")
            g(f"buffer_store_dword v{16+i}, v1, {S4(S_WS)}, s{S_A} offen offset:{i*4}")
        g.label("L_end2")
    g("s_endpgm")
    return g.L

def tail(g, debug):
    R = 128
    xreduce(g, V_L, V_T0, "v_add_f32", [16, 32])
    g(f"""v_lshlrev_b32 v{V_T0}, 5, v{V_N}
          v_lshl_add_u32 v{V_T0}, v{V_G}, 3, v{V_T0}
          s_lshl_b32 s{S_A}, s{S_WAVE}, 11
          s_add_u32 s{S_A}, s{S_A}, {L_CB}
          v_add_u32 v{V_T0}, s{S_A}, v{V_T0}
          v_add_u32 v{V_T1}, 1024, v{V_T0}""")
    for half in range(2):
        a = V_ACC + 4*half
        g(f"ds_write2_b32 v{V_T0}, v{a}, v{a+2} offset0:{half*128} offset1:{half*128+1}")
        g(f"ds_write2_b32 v{V_T1}, v{a+1}, v{a+3} offset0:{half*128} offset1:{half*128+1}")
    g(f"""s_lshl_b32 s{S_A}, s{S_WAVE}, 4
          s_add_u32 s{S_A}, s{S_A}, {L_STAT}
          v_lshlrev_b32 v{V_T2}, 3, v{V_LANE}
          v_add_u32 v{V_T2}, s{S_A}, v{V_T2}
          s_mov_b64 exec, 3
          ds_write_b64 v{V_T2}, v[{V_M}:{V_L}]
          s_mov_b64 exec, -1""")
    g(f"""v_lshlrev_b32 v{V_T0}, 2, v0
          v_add_u32 v{V_T0}, {L_CB}, v{V_T0}
          v_lshrrev_b32 v{V_T1}, 8, v0
          v_lshlrev_b32 v{V_T1}, 3, v{V_T1}
          v_add_u32 v{V_T1}, {L_STAT}, v{V_T1}
          v_bfe_u32 v{V_T2}, v{V_LANE}, 2, 2
          v_lshrrev_b32 v{V_T3}, 1, v{V_T2}
          v_and_b32 v{V_T4}, 1, v{V_G}
          v_lshlrev_b32 v{V_T4}, 1, v{V_T4}
          v_xor_b32 v{V_T3}, v{V_T3}, v{V_T4}
          s_and_b32 s{S_A}, s{S_WAVE}, 3
          v_xor_b32 v{V_T3}, s{S_A}, v{V_T3}
          v_mul_u32_u24 v{V_T4}, 7168, v{V_G}
          v_lshl_add_u32 v{V_T4}, v{V_T2}, 7, v{V_T4}
          v_and_b32 v{V_T2}, 3, v{V_LANE}
          v_lshl_add_u32 v{V_T4}, v{V_T2}, 3, v{V_T4}
          s_lshr_b32 s{S_A}, s{S_WAVE}, 2
          s_lshl_b32 s{S_A}, s{S_A}, 10
          v_add_u32 v{V_T4}, s{S_A}, v{V_T4}
          v_lshl_add_u32 v{V_A}, v{V_T3}, 5, v{V_T4}
          v_xor_b32 v{V_T3}, 2, v{V_T3}
          v_lshl_add_u32 v{V_A+1}, v{V_T3}, 5, v{V_T4}
          v_add_u32 v{V_A+1}, 512, v{V_A+1}
          v_add_u32 v{V_A+2}, 57344, v{V_A}
          v_add_u32 v{V_A+3}, 57344, v{V_A+1}
          s_waitcnt lgkmcnt(0)
          s_barrier""")
    g.stamp(6)
    for w in range(8):
        g(f"ds_read_b64 v[{16+2*w}:{17+2*w}], v{V_T1} offset:{w*16}")
    for w in range(8):
        g(f"ds_read_b32 v{32+w}, v{V_T0} offset:{w*2048}")
    g("s_waitcnt lgkmcnt(8)")
    g(f"""v_max3_f32 v{V_T0}, v16, v18, v20
          v_max3_f32 v{V_T1}, v22, v24, v26
          v_max3_f32 v{V_T0}, v{V_T0}, v28, v30
          v_max_f32 v{V_T0}, v{V_T0}, v{V_T1}""")
    for w in range(8): g(f"v_sub_f32 v{16+2*w}, v{16+2*w}, v{V_T0}")
    for w in range(8): g(f"v_mul_f32 v{16+2*w}, s{S_C}, v{16+2*w}")
    for w in range(8): g(f"v_exp_f32 v{16+2*w}, v{16+2*w}")
    g("s_waitcnt lgkmcnt(0)")
    g(f"""v_mul_f32 v{V_T1}, v16, v17
          v_mul_f32 v{V_T2}, v16, v32""")
    for w in range(1, 8):
        g(f"v_fma_f32 v{V_T1}, v{16+2*w}, v{17+2*w}, v{V_T1}")
        g(f"v_fma_f32 v{V_T2}, v{16+2*w}, v{32+w}, v{V_T2}")
    g(f"""v_rcp_f32 v{V_T3}, v{V_T1}
          v_log_f32 v{V_T4}, v{V_T1}
          s_mul_i32 s{S_A}, s{S_S}, 508
          s_sub_u32 s{S_A}, 2048, s{S_A}
          v_mul_f32 v40, v{V_T2}, v{V_T3}
          v_fma_f32 v42, v{V_T0}, s{S_C}, v{V_T4}""")
    canon(g, 40); canon(g, 42)
    g(f"""buffer_store_dword v40, v{V_IN1}, {S4(S_WS)}, 0 offen sc1
          v_and_b32 v{V_T1}, 127, v0
          v_cmp_eq_u32 vcc, 0, v{V_T1}
          s_and_saveexec_b64 s[{S_EX}:{S_EX+1}], vcc
          s_cbranch_execz L_t1s
          buffer_store_dword v42, v{V_IN1}, {S4(S_WS)}, s{S_A} offen sc1""")
    g.label("L_t1s")
    g(f"s_mov_b64 exec, s[{S_EX}:{S_EX+1}]")
    for q in range(4):
        for ks in range(4):
            a1, a2 = (V_A, V_A+1) if ks < 2 else (V_A+2, V_A+3)
            off = (ks & 1) * 28672 + q * 2048
            r = R + (q*4 + ks) * 4
            g(f"ds_read_b64_tr_b16 v[{r}:{r+1}], v{a1} offset:{off}")
            g(f"ds_read_b64_tr_b16 v[{r+2}:{r+3}], v{a2} offset:{off}")
    g.stamp(7)
    g(f"""s_lshl_b32 s{S_Cx}, s{S_WG}, 13
          s_add_u32 s{S_Cx}, s{S_Cx}, {WS_IN:#x}
          s_cmp_ge_u32 s{S_WAVE}, 2
          s_cbranch_scc1 L_t2b
          v_lshlrev_b32 v{V_T0}, 2, v0
          v_mov_b32 v{V_T1}, 2048""")
    g.label("L_p1")
    for s in range(4):
        g(f"buffer_load_dword v{16+s}, v{V_T0}, {S4(S_WS)}, s{S_Cx} offen offset:{s*512} sc1")
    g(f"""buffer_load_dwordx4 v[24:27], v{V_T1}, {S4(S_WS)}, s{S_Cx} offen sc1
          s_waitcnt vmcnt(0)
          v_max3_u32 v{V_T2}, v16, v17, v18
          v_max3_u32 v{V_T3}, v19, v24, v25
          v_max3_u32 v{V_T2}, v{V_T2}, v26, v27
          v_max_u32 v{V_T2}, v{V_T2}, v{V_T3}
          v_cmp_eq_u32 vcc, -1, v{V_T2}""")
    poll_branch(g, "L_p1")
    g(f"""v_max3_f32 v{V_T2}, v24, v25, v26
          v_max_f32 v{V_T2}, v{V_T2}, v27
          v_sub_f32 v24, v24, v{V_T2}
          v_sub_f32 v25, v25, v{V_T2}
          v_sub_f32 v26, v26, v{V_T2}
          v_sub_f32 v27, v27, v{V_T2}
          v_exp_f32 v24, v24
          v_exp_f32 v25, v25
          v_exp_f32 v26, v26
          v_exp_f32 v27, v27
          v_lshlrev_b32 v{V_T0}, 1, v0
          v_add_f32 v{V_T2}, v24, v25
          v_add_f32 v{V_T3}, v26, v27
          v_add_f32 v{V_T2}, v{V_T2}, v{V_T3}
          v_rcp_f32 v{V_T2}, v{V_T2}
          v_mul_f32 v{V_T3}, v24, v16
          v_fma_f32 v{V_T3}, v25, v17, v{V_T3}
          v_fma_f32 v{V_T3}, v26, v18, v{V_T3}
          v_fma_f32 v{V_T3}, v27, v19, v{V_T3}
          v_mul_f32 v{V_T3}, v{V_T3}, v{V_T2}
          v_cvt_pk_bf16_f32 v{V_T3}, v{V_T3}, v{V_T3}
          v_add_u32 v{V_T1}, {L_OF}, v{V_T0}
          ds_write_b16 v{V_T1}, v{V_T3}""")
    if debug & 1:
        g(f"""s_lshl_b32 s{S_A}, s{S_WG}, 8
              s_add_u32 s{S_A}, s{S_A}, {WS_DBG:#x}
              buffer_store_short v{V_T3}, v{V_T0}, {S4(S_WS)}, s{S_A} offen""")
    g.label("L_t2b")
    g(f"""v_lshlrev_b32 v{V_T0}, 4, v{V_G}
          v_add_u32 v{V_T0}, {L_OF}, v{V_T0}
          v_cmp_eq_u32 vcc, 1, v{V_G}
          v_cmp_eq_u32 s[{S_A}:{S_A+1}], 2, v{V_G}
          v_cmp_eq_u32 s[{S_EX}:{S_EX+1}], 3, v{V_G}
          s_waitcnt lgkmcnt(0)
          s_barrier""")
    g.stamp(8)
    for ks in range(4):
        g(f"ds_read_b128 {vr(16+4*ks)}, v{V_T0} offset:{ks*64}")
    g(f"v_lshlrev_b32 v{V_T0}, 2, v0")
    g(f"v_add_u32 v{V_T0}, {O_IN2}, v{V_T0}")
    for ks in range(4):
        g(f"s_waitcnt lgkmcnt({3-ks})")
        for q in range(4):
            c = "0" if ks == 0 else vr(32+4*q)
            g(f"v_mfma_f32_16x16x32_bf16 {vr(32+4*q)}, {vr(16+4*ks)}, {vr(R+(q*4+ks)*4)}, {c}")
    g.nop(8)
    g(f"""v_cndmask_b32 v48, v32, v36, vcc
          v_cndmask_b32 v48, v48, v40, s[{S_A}:{S_A+1}]
          v_cndmask_b32 v48, v48, v44, s[{S_EX}:{S_EX+1}]""")
    canon(g, 48)
    g(f"buffer_store_dword v48, v{V_IN2}, {S4(S_WS)}, 0 offen sc1")
    g.stamp(9)
    V_X = V_GU
    g(f"""v_bfe_u32 v{V_T3}, v{V_LANE}, 2, 2
          v_and_b32 v{V_T4}, 3, v{V_LANE}
          s_cmp_ge_u32 s{S_J}, 112
          s_cbranch_scc1 L_plwd
          s_cmp_eq_u32 s{S_WAVE}, 7
          s_cbranch_scc0 L_pldone
          v_lshlrev_b32 v{V_T5}, 8, v{V_G}
          v_lshl_add_u32 v{V_T5}, v{V_T3}, 5, v{V_T5}
          v_lshl_add_u32 v{V_T5}, v{V_T4}, 3, v{V_T5}
          v_add_u32 v{V_T5}, {L_WD}, v{V_T5}""")
    for m in range(2):
        for ks in range(14):
            r = R + (m*14 + ks)*4
            g(f"ds_read_b64_tr_b16 v[{r}:{r+1}], v{V_T5} offset:{m*14336+ks*1024}")
            g(f"ds_read_b64_tr_b16 v[{r+2}:{r+3}], v{V_T5} offset:{m*14336+ks*1024+128}")
    g("s_branch L_pldone")
    g.label("L_plwd")
    g(f"""s_cmp_ge_u32 s{S_CS}, 56
          s_cbranch_scc1 L_pldone
          v_lshlrev_b32 v{V_T5}, 7, v{V_G}
          v_lshl_add_u32 v{V_T5}, v{V_T3}, 4, v{V_T5}
          v_lshl_add_u32 v{V_T5}, v{V_T4}, 3, v{V_T5}
          s_mul_i32 s{S_A}, s{S_WAVE}, {7*512}
          s_add_u32 s{S_A}, s{S_A}, {L_WD}
          v_add_u32 v{V_T5}, s{S_A}, v{V_T5}""")
    for ks in range(7):
        g(f"ds_read_b64_tr_b16 v[{R+4*ks}:{R+4*ks+1}], v{V_T5} offset:{ks*512}")
        g(f"ds_read_b64_tr_b16 v[{R+4*ks+2}:{R+4*ks+3}], v{V_T5} offset:{ks*512+64}")
    g.label("L_pldone")
    g(f"""s_cmp_eq_u32 s{S_WAVE}, 0
          s_cbranch_scc0 L_t5
          v_cmp_gt_u32 s[{S_A}:{S_A+1}], 14, v{V_N}
          v_lshlrev_b32 v{V_T0}, 9, v{V_G}
          v_lshl_add_u32 v{V_T0}, v{V_N}, 2, v{V_T0}
          v_add_u32 v{V_T0}, {O_IN2}, v{V_T0}
          v_lshlrev_b32 v{V_T5}, 1, v{V_N}
          s_lshl_b32 s{S_Dx}, s{S_WG}, 5
          s_add_u32 s{S_Dx}, s{S_Dx}, {WS_H:#x}
          v_lshlrev_b32 v{V_X}, 16, v{V_X}""")
    g.label("L_p2")
    for u in range(8):
        g(f"buffer_load_dword v{16+u}, v{V_T0}, {S4(S_WS)}, s{S_Cx} offen offset:{u*64} sc1")
    g(f"""s_waitcnt vmcnt(0)
          v_max3_u32 v{V_T1}, v16, v17, v18
          v_max3_u32 v{V_T2}, v19, v20, v21
          v_max3_u32 v{V_T1}, v{V_T1}, v22, v23
          v_max_u32 v{V_T1}, v{V_T1}, v{V_T2}
          v_cmp_eq_u32 vcc, -1, v{V_T1}
          v_add_f32 v16, v16, v17
          v_add_f32 v18, v18, v19
          v_add_f32 v20, v20, v21
          v_add_f32 v22, v22, v23
          s_and_b64 vcc, vcc, s[{S_A}:{S_A+1}]""")
    poll_branch(g, "L_p2", "scc0")
    g(f"""v_add_f32 v16, v16, v18
          v_add_f32 v20, v20, v22
          v_add_f32 v16, v16, v20""")
    xreduce(g, 16, 18, "v_add_f32", [16, 32])
    bf16_round(g, 16, 16)
    g(f"""v_add_f32 v16, v16, v{V_X}
          s_nop 1
          v_mov_b32_dpp v17, v16 quad_perm:[1,1,3,3] row_mask:0xf bank_mask:0xf
          v_cvt_pk_bf16_f32 v16, v16, v17""")
    canon(g, 16)
    g(f"""s_mov_b64 exec, 0x1555
          buffer_store_dword v16, v{V_T5}, {S4(S_WS)}, s{S_Dx} offen sc1
          s_mov_b64 exec, -1""")
    g.label("L_t5")
    g.stamp(10)
    g(f"""s_cmp_lt_u32 s{S_CS}, 56
          s_cbranch_scc1 L_t8
          s_cmp_ge_u32 s{S_J}, 112
          s_cbranch_scc1 L_end""")
    GATE = True
    g(f"""v_lshlrev_b32 v{V_M}, 4, v0
          v_and_b32 v{V_T1}, 1, v0
          v_cmp_eq_u32 s[{S_EX}:{S_EX+1}], 1, v{V_T1}
          s_mul_i32 s{S_A}, s{S_WAVE}, 896
          s_add_u32 s{S_A}, s{S_A}, {L_HN}
          v_bfe_u32 v{V_T3}, v0, 1, 3
          v_lshlrev_b32 v{V_T3}, 2, v{V_T3}
          v_add_u32 v{V_T3}, v{V_T3}, v{V_G}
          v_mul_u32_u24 v{V_T3}, 28, v{V_T3}
          v_lshl_add_u32 v{V_L}, v{V_T1}, 4, v{V_T3}
          v_add_u32 v{V_L}, s{S_A}, v{V_L}
          s_mov_b32 s{S_Cx}, {WS_H:#x}
          v_and_b32 v{V_AL}, 7, v{V_LANE}
          v_mul_u32_u24 v{V_AL}, 896, v{V_AL}
          v_lshl_add_u32 v{V_AL}, v{V_G}, 4, v{V_AL}
          v_add_u32 v{V_AL}, {L_HN}, v{V_AL}
          s_barrier""")
    g.label("L_p3")
    g(f"""buffer_load_dwordx4 v[16:19], v{V_M}, {S4(S_WS)}, s{S_Cx} offen sc1
          s_waitcnt vmcnt(0)
          v_cndmask_b32 v19, v19, 0, s[{S_EX}:{S_EX+1}]
          v_max3_u32 v{V_T3}, v16, v17, v18
          v_max_u32 v{V_T3}, v{V_T3}, v19
          v_cmp_eq_u32 vcc, -1, v{V_T3}""")
    for i in range(4):
        g(f"v_lshlrev_b32 v{24+2*i}, 16, v{16+i}")
        g(f"v_and_b32 v{25+2*i}, s{S_HIM}, v{16+i}")
    poll_branch(g, "L_p3")
    g.stamp(11)
    g(f"""v_pk_add_f32 v[{V_T0}:{V_T1}], v[24:25], v[26:27]
          v_pk_add_f32 v[{V_T2}:{V_T3}], v[28:29], v[30:31]
          v_pk_add_f32 v[{V_T0}:{V_T1}], v[{V_T0}:{V_T1}], v[{V_T2}:{V_T3}]
          v_add_f32 v{V_T0}, v{V_T0}, v{V_T1}""")
    xreduce(g, V_T0, V_T1, "v_add_f32", [1, 2, 4, 8, 16, 32])
    g(f"""v_mul_f32 v{V_T4}, {f32bits(1.0/448.0):#x}, v{V_T0}
          v_mul_f32 v{V_T5}, {f32bits(1.0/448.0):#x}, v{V_T0}""")
    for i in range(4):
        g(f"v_pk_add_f32 v[{24+2*i}:{25+2*i}], v[{24+2*i}:{25+2*i}], v[{V_T4}:{V_T5}] neg_lo:[0,1] neg_hi:[0,1]")
    g(f"""v_cndmask_b32 v30, v30, 0, s[{S_EX}:{S_EX+1}]
          v_cndmask_b32 v31, v31, 0, s[{S_EX}:{S_EX+1}]
          v_pk_mul_f32 v[{V_T0}:{V_T1}], v[24:25], v[24:25]
          v_pk_mul_f32 v[{V_T2}:{V_T3}], v[26:27], v[26:27]
          v_pk_fma_f32 v[{V_T0}:{V_T1}], v[28:29], v[28:29], v[{V_T0}:{V_T1}]
          v_pk_fma_f32 v[{V_T2}:{V_T3}], v[30:31], v[30:31], v[{V_T2}:{V_T3}]""")
    ln_finish(g, [1, 2, 4, 8, 16, 32])
    ln_apply(g, 16, 4, 32)
    g(f"""ds_write2_b32 v{V_L}, v16, v17 offset0:0 offset1:1
          ds_write_b32 v{V_L}, v18 offset:8
          s_andn2_b64 exec, exec, s[{S_EX}:{S_EX+1}]
          ds_write_b32 v{V_L}, v19 offset:12
          s_mov_b64 exec, -1
          s_lshl_b32 s{S_A}, s{S_J}, 8
          s_add_u32 s{S_A}, s{S_A}, {WS_HH:#x}
          v_lshlrev_b32 v{V_T0}, 5, v{V_N}
          v_lshl_add_u32 v{V_T0}, v{V_G}, 3, v{V_T0}
          s_waitcnt lgkmcnt(0)
          s_barrier""")
    g.stamp(12)
    g(f"""s_cmp_eq_u32 s{S_WAVE}, 7
          s_cbranch_scc0 L_end""")
    for ks in range(14):
        g(f"ds_read_b128 {vr(16+4*ks)}, v{V_AL} offset:{ks*64}")
    for ks in range(14):
        g(f"s_waitcnt lgkmcnt({13-ks})")
        c0 = "0" if ks == 0 else "v[80:83]"
        c1 = "0" if ks == 0 else "v[84:87]"
        g(f"v_mfma_f32_16x16x32_bf16 v[80:83], {vr(R+4*ks)}, {vr(16+4*ks)}, {c0}")
        g(f"v_mfma_f32_16x16x32_bf16 v[84:87], {vr(R+56+4*ks)}, {vr(16+4*ks)}, {c1}")
    g("s_mov_b32 exec_lo, 0x00ff00ff")
    g("s_mov_b32 exec_hi, 0x00ff00ff")
    g.nop(6)
    for r in range(8):
        bf16_round(g, 80+r, 80+r)
    g(f"""v_pk_mul_f32 v[80:81], v[80:81], v[84:85]
          v_pk_mul_f32 v[82:83], v[82:83], v[86:87]
          v_cvt_pk_bf16_f32 v16, v80, v81
          v_cvt_pk_bf16_f32 v17, v82, v83""")
    canon(g, 16); canon(g, 17)
    g(f"""buffer_store_dwordx2 v[16:17], v{V_T0}, {S4(S_WS)}, s{S_A} offen sc1
          s_mov_b64 exec, -1""")
    g.stamp(13)
    g("s_branch L_end")
    g.label("L_t8")
    g(f"""s_lshl_b32 s{S_A}, s{S_CS}, 3
          v_and_b32 v{V_T2}, 7, v{V_LANE}
          v_add_u32 v{V_T2}, s{S_A}, v{V_T2}
          v_mul_u32_u24 v{V_T3}, 4682, v{V_T2}
          v_lshrrev_b32 v{V_T3}, 16, v{V_T3}
          v_mul_u32_u24 v{V_T4}, 14, v{V_T3}
          v_sub_u32 v{V_T4}, v{V_T2}, v{V_T4}
          v_and_b32 v{V_M}, 3, v{V_T3}
          v_lshlrev_b32 v{V_M}, 3, v{V_M}
          v_lshrrev_b32 v{V_T3}, 2, v{V_T3}
          v_add_u32 v{V_M}, v{V_M}, v{V_T3}
          v_lshlrev_b32 v{V_M}, 5, v{V_M}
          v_lshl_add_u32 v{V_M}, v{V_T4}, 1, v{V_M}
          v_and_b32 v{V_T3}, 1, v{V_G}
          v_lshl_add_u32 v{V_M}, v{V_T3}, 12, v{V_M}
          s_mov_b32 s{S_Cx}, {WS_H:#x}
          v_and_b32 v{V_T0}, 7, v{V_LANE}
          v_lshlrev_b32 v{V_T0}, 5, v{V_T0}
          v_lshrrev_b32 v{V_T1}, 1, v{V_G}
          v_lshl_add_u32 v{V_T0}, v{V_T1}, 8, v{V_T0}
          v_and_b32 v{V_T1}, 1, v{V_G}
          v_lshl_add_u32 v{V_T0}, v{V_T1}, 4, v{V_T0}
          s_mul_i32 s{S_A}, s{S_WAVE}, {7*512}
          s_add_u32 s{S_A}, s{S_A}, {WS_HH:#x}
          v_lshlrev_b32 v{V_T1}, 4, v{V_LANE}
          s_lshl_b32 s{S_Bx}, s{S_WAVE}, 9
          s_add_u32 s{S_Bx}, s{S_Bx}, {L_WO}
          v_add_u32 v{V_T1}, s{S_Bx}, v{V_T1}
          v_mul_u32_u24 v{V_L}, {4*896}, v{V_G}
          v_lshl_add_u32 v{V_L}, v{V_T2}, 1, v{V_L}""")
    srd(g, S_T, P_OUT, 7168)
    g(f"""s_cmp_eq_u32 s{S_WAVE}, 0
          s_cbranch_scc0 L_ph_ok
          v_and_b32 v{V_NMC}, 0xfffffffc, v{V_M}
          v_and_b32 v{V_AL}, 2, v{V_M}
          v_lshlrev_b32 v{V_AL}, 3, v{V_AL}""")
    g.label("L_ph")
    for r in range(4):
        g(f"buffer_load_dword v{56+r}, v{V_NMC}, {S4(S_WS)}, s{S_Cx} offen offset:{r*1024} sc1")
    g(f"""s_waitcnt vmcnt(0)
          v_max3_u32 v{V_T2}, v56, v57, v58
          v_max_u32 v{V_T2}, v{V_T2}, v59
          v_cmp_eq_u32 vcc, -1, v{V_T2}""")
    poll_branch(g, "L_ph")
    g("s_barrier")
    g.label("L_p4")
    for ks in range(7):
        g(f"buffer_load_dwordx4 {vr(16+4*ks)}, v{V_T0}, {S4(S_WS)}, s{S_A} offen offset:{ks*512} sc1")
    g("s_waitcnt vmcnt(0)")
    g(f"v_max3_u32 v{V_T2}, v16, v17, v18")
    for i in range(19, 44, 2):
        if i + 1 <= 43:
            g(f"v_max3_u32 v{V_T2}, v{V_T2}, v{i}, v{i+1}")
        else:
            g(f"v_max_u32 v{V_T2}, v{V_T2}, v{i}")
    g(f"v_cmp_eq_u32 vcc, -1, v{V_T2}")
    poll_branch(g, "L_p4")
    g.stamp(14)
    g("s_waitcnt lgkmcnt(0)")
    for ks in range(7):
        c = "0" if ks == 0 else "v[48:51]"
        g(f"v_mfma_f32_16x16x32_bf16 v[48:51], {vr(16+4*ks)}, {vr(R+4*ks)}, {c}")
    g("s_mov_b32 exec_hi, 0")
    g.nop(8)
    g(f"""ds_write_b128 v{V_T1}, v[48:51]
          s_mov_b64 exec, -1
          v_lshlrev_b32 v{V_T0}, 4, v{V_LANE}
          s_waitcnt lgkmcnt(0)
          s_barrier
          s_cmp_eq_u32 s{S_WAVE}, 0
          s_cbranch_scc0 L_end""")
    for w in range(8):
        g(f"ds_read_b128 {vr(16+4*w)}, v{V_T0} offset:{L_WO+w*512}")
    g("s_mov_b64 exec, 0x00ff00ff")
    g("s_waitcnt lgkmcnt(0)")
    for w in range(1, 8):
        g(f"v_pk_add_f32 v[16:17], v[16:17], v[{16+4*w}:{17+4*w}]")
        g(f"v_pk_add_f32 v[18:19], v[18:19], v[{18+4*w}:{19+4*w}]")
    for r in range(4):
        bf16_round(g, 16+r, 16+r)
        g(f"v_lshrrev_b32 v{56+r}, v{V_AL}, v{56+r}")
        g(f"v_lshlrev_b32 v{56+r}, 16, v{56+r}")
        g(f"v_add_f32 v{16+r}, v{16+r}, v{56+r}")
        g(f"v_cvt_pk_bf16_f32 v{16+r}, v{16+r}, v{16+r}")
        g(f"buffer_store_short v{16+r}, v{V_L}, {S4(S_T)}, 0 offen offset:{r*896}")

DOC = """
"""
def emit(path, kname, debug=0):
    hdr = open("cdna_kernels/" + NAME + ".s.ref").read().split("\n")
    out = []
    for line in hdr:
        if line.startswith("; @launch"):
            out.append(f"; @launch grid=(256,1,1) block=(512,1,1) lds={LDS_BYTES}")
            out.extend(DOC.strip().split("\n"))
            break
        out.append(line)
    out.append('.amdgcn_target "amdgcn-amd-amdhsa--gfx950"')
    out.append(".text")
    out.append(f".globl {kname}")
    out.append(".p2align 8")
    out.append(f".type {kname},@function")
    out.append(f"{kname}:")
    out += gen(debug)
    out.append('.section .rodata,"a"')
    out.append(".p2align 6")
    out.append(f".amdhsa_kernel {kname}")
    out.append("""  .amdhsa_next_free_vgpr 256
  .amdhsa_next_free_sgpr 102
  .amdhsa_accum_offset 256
  .amdhsa_group_segment_fixed_size 0
  .amdhsa_kernarg_size 96
  .amdhsa_user_sgpr_count 2
  .amdhsa_user_sgpr_kernarg_segment_ptr 1
  .amdhsa_system_sgpr_workgroup_id_x 1
  .amdhsa_float_denorm_mode_32 3
.end_amdhsa_kernel""")
    open(path, "w").write("\n".join(out) + "\n")

if __name__ == "__main__":
    debug = int(sys.argv[1]) if len(sys.argv) > 1 else 0
    path = sys.argv[2] if len(sys.argv) > 2 else "cdna_kernels/" + NAME + ".s"
    emit(path, NAME + "_kernel", debug)
```

```python
import sys, struct, os
STATIC = int(os.environ.get('STATIC', '1'))
NOW = int(os.environ.get('NOW', '0'))

NAME = "sequential_preLN__gqa_block_cached__glu_gated_bilinear__decode"
def f32bits(x): return struct.unpack("<I", struct.pack("<f", x))[0]

WS_Q   = 0x000000
WS_IN  = 0x100000
O_GO, O_IN2 = 2176, 2304
WS_H   = 0x400000
WS_HH  = 0x410000
WS_TC  = 0x420000
WS_DBG = 0x1000000
WS_BYTES = 0x2000000
L_WO  = 0
L_WD  = 114688
L_SCR = 143360
L_CB  = L_SCR
L_HIMG = L_SCR
L_HN  = L_SCR + 7168
L_QP  = L_SCR + 16384
L_PART = L_SCR + 14336
L_STAT = L_SCR + 16384
L_OF  = L_SCR + 16512
L_P2  = L_SCR + 16768
L_QIMG = L_SCR + 18432
L_FLAG = L_SCR + 19456
L_HHL = L_SCR + 19520
LDS_BYTES = 163840
C_SC = 1.4426950408889634 / 16.0

STAMP_SLOTS = [4,5,6,7,63,89,92,93,94,95,96,97,98,99,100,101]
class G:
    def __init__(self):
        self.L = []; self.prof = 0
    def __call__(self, s):
        for line in s.strip().split("\n"):
            line = line.strip()
            if line: self.L.append("  " + line)
    def label(self, l): self.L.append(l + ":")
    def nop(self, n=1):
        while n > 0:
            k = min(n, 16); self.L.append(f"  s_nop {k-1}"); n -= k
    def stamp(self, i):
        if self.prof:
            self.L.append("  s_memrealtime s[90:91]")
            self.L.append("  s_waitcnt lgkmcnt(0)")
            self.L.append(f"  s_mov_b32 s{STAMP_SLOTS[i]}, s90")

def vr(a, n=4): return f"v[{a}:{a+n-1}]"
def S4(s): return f"s[{s}:{s+3}]"

V_LANE, V_N, V_G = 1, 2, 3
V_K0, V_K1, V_V0, V_V1 = 4, 5, 6, 7
V_IN1, V_IN2 = 8, 9
V_T0, V_T1, V_T2, V_T3, V_T4, V_T5 = 10, 11, 12, 13, 14, 15
V_Q = 16; V_ACC = 48; V_S = 56; V_P = 64; V_GU = 68
V_M, V_L, V_AL, V_NMC = 76, 77, 78, 79
V_A = 80; V_B = 112
R_K0, R_K1, R_V0, R_V1 = 128, 160, 192, 224
S_WG, S_WAVE = 2, 3
S_K, S_V, S_WS, S_T, S_T2 = 8, 12, 16, 20, 24
S_OFF, S_BASE = 28, 29
S_HKV, S_B, S_S, S_R = 30, 31, 32, 33
S_C, S_SELLO, S_SELHI = 34, 35, 60
P_X, P_K, P_V, P_WQ, P_WO, P_BX, P_WG, P_WU, P_WD, P_OUT, P_DBG, P_WS = [36 + 2*i for i in range(12)]
S_MASK = 64
S_A, S_Bx, S_Cx, S_Dx = 80, 81, 82, 83
S_EX = 84
S_HIM, S_I, S_POLL = 86, 87, 88
S_J, S_CS = 61, 62
S_QP = 29 + 0
S_TC = P_K
S_NEXT, S_NEXT2 = P_V, P_V + 1

def srd(g, s, p, nbytes):
    g(f"""s_mov_b32 s{s}, s{p}
          s_and_b32 s{s+1}, s{p+1}, 0xffff
          s_mov_b32 s{s+2}, {nbytes}
          s_mov_b32 s{s+3}, 0x20000""")

def bf16_round(g, d, s):
    g(f"v_cvt_pk_bf16_f32 v{d}, v{s}, v{s}")
    g(f"v_lshlrev_b32 v{d}, 16, v{d}")

def xreduce(g, v, t, op, steps):
    for st in steps:
        if st in (1, 2, 4, 8):
            mod = {1: "quad_perm:[1,0,3,2]", 2: "quad_perm:[2,3,0,1]", 4: "row_ror:4", 8: "row_ror:8"}[st]
            g.nop(2); g(f"{op}_dpp v{v}, v{v}, v{v} {mod} row_mask:0xf bank_mask:0xf")
        else:
            g(f"v_mov_b32 v{t}, v{v}"); g.nop(2)
            g(f"v_permlane{st}_swap_b32 v{v}, v{t}"); g.nop(1)
            g(f"{op} v{v}, v{v}, v{t}")

def poll_branch(g, lab, cond="vccz"):
    g(f"""s_cbranch_{cond} {lab}_ok
          s_sub_u32 s{S_POLL}, s{S_POLL}, 1
          s_cmp_eq_u32 s{S_POLL}, 0
          s_cbranch_scc1 L_end
          s_branch {lab}""")
    g.label(lab + "_ok")

def canon(g, v, t=None):
    g(f"v_min_u32 v{v}, 0xfffffffe, v{v}")

def k_loads(g, which):
    vo, r = (V_K0, R_K0) if which == 0 else (V_K1, R_K1)
    for j in range(8):
        g(f"buffer_load_dwordx4 {vr(r+4*j)}, v{vo}, {S4(S_K)}, s{S_OFF} offen offset:{j*64} nt")

def v_loads(g, half):
    r = R_V0 if half == 0 else R_V1
    for j in range(8):
        vo = V_V0 if j < 4 else V_V1
        g(f"buffer_load_dwordx4 {vr(r+4*j)}, v{vo}, {S4(S_V)}, s{S_OFF} offen offset:{(j&3)*512+half*256} nt")

def tile_body(g, nwait, loads):
    for t, r in ((0, R_K0), (1, R_K1)):
        g(f"s_waitcnt vmcnt({nwait[t]})")
        s = V_S + 4*t
        for j in range(8):
            c = "0" if j == 0 else vr(s)
            g(f"v_mfma_f32_16x16x32_bf16 {vr(s)}, {vr(r+4*j)}, {vr(V_Q+4*j)}, {c}")
        if loads: k_loads(g, t)
        elif t == 1: g.nop(8)
    S = [V_S + i for i in range(8)]
    for i in range(4):
        g(f"v_cvt_pk_bf16_f32 v{V_P+i}, v{S[2*i]}, v{S[2*i+1]}")
    for i in range(4):
        g(f"v_lshlrev_b32 v{S[2*i]}, 16, v{V_P+i}")
        g(f"v_and_b32 v{S[2*i+1]}, s{S_HIM}, v{V_P+i}")
    g(f"""v_max3_f32 v{V_T0}, v{S[0]}, v{S[1]}, v{S[2]}
          v_max3_f32 v{V_T1}, v{S[3]}, v{S[4]}, v{S[5]}
          v_max3_f32 v{V_T0}, v{V_T0}, v{S[6]}, v{S[7]}
          v_max_f32 v{V_T0}, v{V_T0}, v{V_T1}""")
    xreduce(g, V_T0, V_T1, "v_max_f32", [16, 32])
    g(f"""v_max_f32 v{V_T0}, v{V_T0}, v{V_M}
          v_sub_f32 v{V_AL}, v{V_M}, v{V_T0}
          v_mul_f32 v{V_AL}, s{S_C}, v{V_AL}
          v_exp_f32 v{V_AL}, v{V_AL}
          v_mov_b32 v{V_M}, v{V_T0}
          v_mul_f32 v{V_NMC}, s{S_C}, v{V_T0}""")
    for i in range(8):
        g(f"v_fma_f32 v{S[i]}, v{S[i]}, s{S_C}, -v{V_NMC}")
    for i in range(8):
        g(f"v_exp_f32 v{S[i]}, v{S[i]}")
    for r in range(8):
        qp = "[0,0,2,2]" if (r & 1) == 0 else "[1,1,3,3]"
        g(f"v_mul_f32_dpp v{V_ACC+r}, v{V_AL}, v{V_ACC+r} quad_perm:{qp} row_mask:0xf bank_mask:0xf")
    for i in range(4):
        g(f"v_cvt_pk_bf16_f32 v{V_P+i}, v{S[2*i]}, v{S[2*i+1]}")
    g(f"""v_add_f32 v{V_T0}, v{S[0]}, v{S[1]}
          v_add_f32 v{V_T1}, v{S[2]}, v{S[3]}
          v_add_f32 v{V_T2}, v{S[4]}, v{S[5]}
          v_add_f32 v{V_T3}, v{S[6]}, v{S[7]}
          v_add_f32 v{V_T0}, v{V_T0}, v{V_T1}
          v_add_f32 v{V_T2}, v{V_T2}, v{V_T3}
          v_add_f32 v{V_T0}, v{V_T0}, v{V_T2}
          v_fma_f32 v{V_L}, v{V_L}, v{V_AL}, v{V_T0}""")
    for e in range(8):
        for i in range(4):
            g(f"v_cndmask_b32 v{V_A+4*e+i}, 0, v{V_P+i}, s[{S_MASK+2*e}:{S_MASK+2*e+1}]")
    for half, r in ((0, R_V0), (1, R_V1)):
        g(f"s_waitcnt vmcnt({nwait[2+half]})")
        acc = V_ACC + 4*half
        def perms(e):
            b = V_B + 4*(e & 3); q = e >> 1
            sel = S_SELLO if (e & 1) == 0 else S_SELHI
            for p in range(4):
                g(f"v_perm_b32 v{b+p}, v{r+4*(2*p+1)+q}, v{r+4*(2*p)+q}, s{sel}")
        perms(0); perms(1)
        for e in range(8):
            if e + 2 < 8: perms(e + 2)
            else: g.nop(1)
            g(f"v_mfma_f32_16x16x32_bf16 {vr(acc)}, {vr(V_A+4*e)}, {vr(V_B+4*(e&3))}, {vr(acc)}")
        if loads: v_loads(g, half)
    if not loads: g.nop(8)

def ln_finish(g, steps):
    g(f"""v_pk_add_f32 v[{V_T0}:{V_T1}], v[{V_T0}:{V_T1}], v[{V_T2}:{V_T3}]
          v_add_f32 v{V_T0}, v{V_T0}, v{V_T1}""")
    xreduce(g, V_T0, V_T1, "v_add_f32", steps)
    g(f"v_mul_f32 v{V_T0}, {f32bits(1.0/448.0):#x}, v{V_T0}")
    bf16_round(g, V_T0, V_T0)
    g(f"v_add_f32 v{V_T0}, {f32bits(1e-5):#x}, v{V_T0}")
    bf16_round(g, V_T0, V_T0)
    g(f"v_sqrt_f32 v{V_T0}, v{V_T0}")
    bf16_round(g, V_T4, V_T4)
    bf16_round(g, V_T0, V_T0)
    g(f"""v_rcp_f32 v{V_T2}, v{V_T0}
          v_mov_b32 v{V_T5}, v{V_T4}
          v_mov_b32 v{V_T1}, v{V_T0}
          v_mov_b32 v{V_T3}, v{V_T2}""")

def ln_stats(g, XR, ndw, steps, T):
    def unp(i, t):
        g(f"v_lshlrev_b32 v{t}, 16, v{XR+i}")
        g(f"v_and_b32 v{t+1}, s{S_HIM}, v{XR+i}")
    unp(0, V_T0); unp(1, V_T2)
    for i in range(2, ndw):
        t = T + 2*(i & 1); a = V_T0 + 2*(i & 1)
        unp(i, t)
        g(f"v_pk_add_f32 v[{a}:{a+1}], v[{a}:{a+1}], v[{t}:{t+1}]")
    g(f"""v_pk_add_f32 v[{V_T0}:{V_T1}], v[{V_T0}:{V_T1}], v[{V_T2}:{V_T3}]
          v_add_f32 v{V_T0}, v{V_T0}, v{V_T1}""")
    xreduce(g, V_T0, V_T1, "v_add_f32", steps)
    g(f"""v_mul_f32 v{V_T4}, {f32bits(1.0/448.0):#x}, v{V_T0}
          v_mul_f32 v{V_T5}, {f32bits(1.0/448.0):#x}, v{V_T0}
          v_mov_b32 v{V_T0}, 0
          v_mov_b32 v{V_T1}, 0
          v_mov_b32 v{V_T2}, 0
          v_mov_b32 v{V_T3}, 0""")
    for i in range(ndw):
        t = T + 2*(i & 1); a = V_T0 + 2*(i & 1)
        unp(i, t)
        g(f"v_pk_add_f32 v[{t}:{t+1}], v[{t}:{t+1}], v[{V_T4}:{V_T5}] neg_lo:[0,1] neg_hi:[0,1]")
        g(f"v_pk_fma_f32 v[{a}:{a+1}], v[{t}:{t+1}], v[{t}:{t+1}], v[{a}:{a+1}]")
    ln_finish(g, steps)

def ln_apply(g, X, ndw, T):
    for i in range(ndw):
        a, c, e = T, T+2, T+4
        g(f"""v_lshlrev_b32 v{a}, 16, v{X+i}
              v_and_b32 v{a+1}, s{S_HIM}, v{X+i}
              v_pk_add_f32 v[{a}:{a+1}], v[{a}:{a+1}], v[{V_T4}:{V_T5}] neg_lo:[0,1] neg_hi:[0,1]
              v_cvt_pk_bf16_f32 v{a+1}, v{a}, v{a+1}
              v_lshlrev_b32 v{a}, 16, v{a+1}
              v_and_b32 v{a+1}, s{S_HIM}, v{a+1}
              v_pk_mul_f32 v[{c}:{c+1}], v[{a}:{a+1}], v[{V_T2}:{V_T3}]
              v_pk_fma_f32 v[{e}:{e+1}], v[{c}:{c+1}], v[{V_T0}:{V_T1}], v[{a}:{a+1}] neg_lo:[1,0,0] neg_hi:[1,0,0]
              v_pk_fma_f32 v[{c}:{c+1}], v[{e}:{e+1}], v[{V_T2}:{V_T3}], v[{c}:{c+1}]
              v_cvt_pk_bf16_f32 v{X+i}, v{c}, v{c+1}""")

def dma(g, voff, srdreg, soff, m0reg, fl=""):
    g(f"""s_mov_b32 m0, s{m0reg}
          s_add_u32 s{m0reg}, s{m0reg}, 1024
          buffer_load_dwordx4 v{voff}, {S4(srdreg)}, s{soff} offen {fl} lds""")


def small_dma(g):
    g(f"s_sub_u32 s{S_Cx}, s{S_WAVE}, 4")
    g(f"s_cmp_ge_u32 s{S_CS}, 56")
    g(f"s_cbranch_scc1 L_nowd")
    srd(g, S_T, P_WD, 1792*448*2)
    g(f"""v_mul_u32_u24 v{V_T0}, 896, v{V_LANE}
          s_mul_i32 s{S_A}, s{S_Cx}, {7*64*896}
          s_lshl_b32 s{S_Bx}, s{S_CS}, 4
          s_add_u32 s{S_A}, s{S_A}, s{S_Bx}
          s_mul_i32 s{S_Bx}, s{S_Cx}, 7168
          s_add_u32 s{S_Bx}, s{S_Bx}, {L_WD}""")
    for i in range(7):
        dma(g, V_T0, S_T, S_A, S_Bx, "nt" if NTF & 4 else "")
        g(f"s_add_u32 s{S_A}, s{S_A}, {64*896}")
    g.label(f"L_nowd")
    g(f"""s_cmp_ge_u32 s{S_J}, 112
          s_cbranch_scc1 L_nogu
          s_cmp_ge_u32 s{S_Cx}, 2
          s_cselect_b32 s{S_T}, s{P_WU}, s{P_WG}
          s_cselect_b32 s{S_T+1}, s{P_WU+1}, s{P_WG+1}
          s_and_b32 s{S_T+1}, s{S_T+1}, 0xffff
          s_mov_b32 s{S_T+2}, {448*1792*2}
          s_mov_b32 s{S_T+3}, 0x20000
          v_lshrrev_b32 v{V_T0}, 1, v{V_LANE}
          v_mul_u32_u24 v{V_T0}, 3584, v{V_T0}
          v_and_b32 v{V_T1}, 1, v{V_LANE}
          v_lshl_add_u32 v{V_T0}, v{V_T1}, 4, v{V_T0}
          s_and_b32 s{S_A}, s{S_Cx}, 1
          s_mul_i32 s{S_A}, s{S_A}, {224*3584}
          s_lshl_b32 s{S_Bx}, s{S_J}, 5
          s_add_u32 s{S_A}, s{S_A}, s{S_Bx}
          s_mul_i32 s{S_Bx}, s{S_Cx}, 7168
          s_add_u32 s{S_Bx}, s{S_Bx}, {L_WD}""")
    for i in range(7):
        dma(g, V_T0, S_T, S_A, S_Bx, "nt" if NTF & 4 else "")
        g(f"s_add_u32 s{S_A}, s{S_A}, {32*3584}")
    g.label(f"L_nogu")

def wo_dma(g):
    g(f"s_sub_u32 s{S_Cx}, s{S_WAVE}, 4")
    srd(g, S_T, P_WO, 4096*448*2)
    g(f"""v_lshrrev_b32 v{V_T0}, 3, v{V_LANE}
          v_bfe_u32 v{V_T1}, v{V_LANE}, 1, 2
          v_lshrrev_b32 v{V_T2}, 4, v{V_LANE}
          v_xor_b32 v{V_T1}, v{V_T1}, v{V_T2}
          v_mul_u32_u24 v{V_T0}, 896, v{V_T0}
          v_and_b32 v{V_T2}, 1, v{V_LANE}
          v_lshl_add_u32 v{V_T0}, v{V_T2}, 4, v{V_T0}
          v_lshl_add_u32 v{V_T2}, v{V_T1}, 5, v{V_T0}
          v_xor_b32 v{V_T1}, 2, v{V_T1}
          v_lshl_add_u32 v{V_T3}, v{V_T1}, 5, v{V_T0}
          s_lshl_b32 s{S_A}, s{S_I}, 7
          s_lshl_b32 s{S_Bx}, s{S_Cx}, 5
          s_add_u32 s{S_A}, s{S_A}, s{S_Bx}
          s_mul_i32 s{S_A}, s{S_A}, 896
          s_mul_i32 s{S_Bx}, s{S_Cx}, {28*1024}""")
    for kg in range(4):
        for cb7 in range(7):
            dma(g, V_T2 + (kg & 1), S_T, S_A, S_Bx, "nt" if NTF & 2 else "")
            g(f"s_add_u32 s{S_A}, s{S_A}, {128 if cb7 < 6 else 8*896-6*128}")

STAG = int(os.environ.get("STAG", "0"))
BAL = int(os.environ.get("BAL", "1"))
BALS = int(os.environ.get("BALS", "3"))
NTF = int(os.environ.get("NTF", "1"))
TRS = int(os.environ.get("TRS", "0"))
TRW = int(os.environ.get("TRW", "0"))
WARM = int(os.environ.get("WARM", "0"))
WARM0 = int(os.environ.get("WARM0", "0"))
NB1 = 16
def wait_flag(g, tag, off, val):
    g(f"v_mov_b32 v{V_T0}, {L_FLAG}")
    g.label(f"L_wf{tag}")
    g(f"""ds_read_b32 v{V_T1}, v{V_T0} offset:{off}
          s_waitcnt lgkmcnt(0)
          v_cmp_gt_u32 vcc, {val}, v{V_T1}""")
    poll_branch(g, f"L_wf{tag}")

def flag_add(g, off):
    g(f"""v_mov_b32 v{V_T0}, {L_FLAG}
          v_mov_b32 v{V_T1}, 1
          s_mov_b64 exec, 1
          ds_add_u32 v{V_T0}, v{V_T1} offset:{off}
          s_mov_b64 exec, -1""")

def prefetch(g):
    k_loads(g, 0); k_loads(g, 1); v_loads(g, 0); v_loads(g, 1)

def lds_prefetch(g):
    g(f"""s_add_u32 s{S_A}, s{S_OFF}, {8*16384}
          s_lshl_b32 s{S_Bx}, s{S_WAVE}, 15""")
    for which in range(2):
        vo = V_K0 if which == 0 else V_K1
        for j in range(8):
            g(f"""s_mov_b32 m0, s{S_Bx}
                  s_add_u32 s{S_Bx}, s{S_Bx}, {1024-64 if j < 7 else 1024+7*64}
                  buffer_load_dwordx4 v{vo}, {S4(S_K)}, s{S_A} offen offset:{j*64} nt lds""")
    for half in range(2):
        for j in range(8):
            vo = V_V0 if j < 4 else V_V1
            off = (j & 3)*512 + half*256
            idx = half*8 + j + 1
            noff = ((idx & 3)*512 + (idx >> 3)*256) if idx < 16 else 0
            g(f"""s_mov_b32 m0, s{S_Bx}
                  s_add_u32 s{S_Bx}, s{S_Bx}, {(1024 + off - noff) & 0xffffffff:#x}
                  buffer_load_dwordx4 v{vo}, {S4(S_V)}, s{S_A} offen offset:{off} nt lds""")

def cert(g):
    g(f"s_cmp_eq_u32 s{S_WAVE}, 7")
    g("s_cbranch_scc0 L_nocert")
    srd(g, S_T, P_DBG, 256)
    g(f"v_lshlrev_b32 v{V_T0}, 5, v{V_LANE}")
    g("s_mov_b64 exec, 0xff")
    g.label("L_cert")
    g(f"""buffer_load_dword v{V_T1}, v{V_T0}, {S4(S_T)}, 0 offen sc1
          s_waitcnt vmcnt(0)
          v_cmp_gt_u32 vcc, 32, v{V_T1}""")
    poll_branch(g, "L_cert")
    g("s_mov_b64 exec, -1")
    g.label("L_nocert")

def q_gather(g):
    g(f"""s_lshl_b32 s{S_A}, s{S_WG}, 13
          s_add_u32 s{S_A}, s{S_A}, {WS_IN+O_GO:#x}
          s_add_u32 s{S_Cx}, s{P_WS}, s{S_A}
          s_addc_u32 s{S_Dx}, s{P_WS+1}, 0
          s_lshl_b32 s{S_A}, s{S_B}, 13
          s_lshl_b32 s{S_Bx}, s{S_HKV}, 10
          s_add_u32 s{S_A}, s{S_A}, s{S_Bx}
          s_lshl_b32 s{S_Bx}, s{S_S}, 16
          s_add_u32 s{S_A}, s{S_A}, s{S_Bx}
          s_sub_u32 s{S_Bx}, s{S_WAVE}, 4
          s_lshl_b32 s{S_Bx}, s{S_Bx}, 8
          s_add_u32 s{S_A}, s{S_A}, s{S_Bx}
          s_add_u32 s{S_EX}, s{P_WS}, s{S_A}
          s_addc_u32 s{S_EX+1}, s{P_WS+1}, 0
          s_add_u32 s{S_Bx}, s{S_Bx}, {L_QIMG}
          v_mov_b32 v{V_T2}, s{S_Bx}""")
    g.label(f"L_pq")
    g(f"""s_load_dword s64, s[{S_Cx}:{S_Dx}], 0 glc
          s_waitcnt lgkmcnt(0)
          s_cmp_lg_u32 s64, -1""")
    poll_branch(g, f"L_pq", "scc1")
    g.stamp(3)
    for rnd in range(2):
        g(f"s_load_dwordx16 s[64:79], s[{S_EX}:{S_EX+1}], {rnd*128} glc")
        g(f"s_load_dwordx16 s[36:51], s[{S_EX}:{S_EX+1}], {rnd*128+64} glc")
        g("s_waitcnt lgkmcnt(0)")
        for i in range(16):
            g(f"v_mov_b32 v{16+rnd*32+i}, s{64+i}")
        for i in range(16):
            g(f"v_mov_b32 v{32+rnd*32+i}, s{36+i}")
    g(f"s_load_dwordx16 s[36:51], s[0:1], 0")
    g("s_mov_b64 exec, 1")
    for u in range(16):
        g(f"ds_write_b128 v{V_T2}, {vr(16+4*u)} offset:{u*16}")
    g("s_mov_b64 exec, -1")
    g("s_waitcnt lgkmcnt(0)")
    flag_add(g, 12)

def gen(debug=0):
    g = G(); g.prof = debug & 2
    g(f"s_cmp_ge_u32 s{S_WG}, 256")
    g("s_cbranch_scc1 L_end")
    g(f"s_load_dwordx16 s[36:51], s[0:1], 0")
    g(f"s_load_dwordx8 s[52:59], s[0:1], 64")
    if WARM0:
        g(f"""s_getpc_b64 s[{S_Cx}:{S_Dx}]
              v_lshlrev_b32 v{V_T0}, 4, v0
              global_load_dwordx4 v[128:131], v{V_T0}, s[{S_Cx}:{S_Dx}]
              v_add_u32 v{V_T0}, 0x2000, v{V_T0}
              global_load_dwordx4 v[132:135], v{V_T0}, s[{S_Cx}:{S_Dx}]""")
    g(f"""v_lshrrev_b32 v{V_T0}, 6, v0
          v_and_b32 v{V_LANE}, 63, v0
          v_and_b32 v{V_N}, 15, v0
          v_bfe_u32 v{V_G}, v0, 4, 2
          v_readfirstlane_b32 s{S_WAVE}, v{V_T0}
          s_and_b32 s{S_HKV}, s{S_WG}, 7
          s_lshr_b32 s{S_R}, s{S_WG}, 3
          s_lshr_b32 s{S_B}, s{S_WG}, 5
          s_and_b32 s{S_S}, s{S_R}, 3
          s_lshl_b32 s{S_I}, s{S_HKV}, 2
          s_add_u32 s{S_I}, s{S_I}, s{S_S}
          s_mov_b32 s{S_C}, {f32bits(C_SC):#x}
          s_mov_b32 s{S_SELLO}, 0x05040100
          s_mov_b32 s{S_SELHI}, 0x07060302
          s_mov_b32 s{S_HIM}, 0xffff0000
          s_mov_b32 s{S_POLL}, 0x100000
          s_mul_i32 s{S_J}, s{S_HKV}, 14
          s_lshl_b32 s{S_A}, s{S_B}, 1
          s_add_u32 s{S_J}, s{S_J}, s{S_A}
          s_add_u32 s{S_J}, s{S_J}, s{S_S}
          s_sub_u32 s{S_J}, s{S_J}, 1
          s_cmp_eq_u32 s{S_B}, 7
          s_cselect_b32 s{S_J}, 0xffff, s{S_J}
          s_cmp_eq_u32 s{S_S}, 0
          s_cselect_b32 s{S_J}, 0xffff, s{S_J}
          s_cmp_eq_u32 s{S_S}, 3
          s_cselect_b32 s{S_J}, 0xffff, s{S_J}
          s_mul_i32 s{S_CS}, s{S_HKV}, 7
          s_add_u32 s{S_CS}, s{S_CS}, s{S_B}
          s_cmp_eq_u32 s{S_B}, 7
          s_cselect_b32 s{S_CS}, 0xffff, s{S_CS}
          s_cmp_lg_u32 s{S_S}, 0
          s_cselect_b32 s{S_CS}, 0xffff, s{S_CS}""")
    g(f"""v_lshlrev_b32 v{V_K0}, 9, v{V_N}
          v_lshl_add_u32 v{V_K0}, v{V_G}, 4, v{V_K0}
          v_add_u32 v{V_K1}, 0x2000, v{V_K0}
          v_lshlrev_b32 v{V_V0}, 11, v{V_G}
          v_lshl_add_u32 v{V_V0}, v{V_N}, 4, v{V_V0}
          v_add_u32 v{V_V1}, 0x2000, v{V_V0}""")
    g(f"""s_lshl_b32 s{S_A}, s{S_B}, 3
          s_add_u32 s{S_A}, s{S_A}, s{S_HKV}
          s_lshl_b32 s{S_BASE}, s{S_A}, 22
          s_lshl_b32 s{S_Bx}, s{S_S}, 20
          s_add_u32 s{S_BASE}, s{S_BASE}, s{S_Bx}
          s_lshl_b32 s{S_Bx}, s{S_WAVE}, 14
          s_add_u32 s{S_OFF}, s{S_BASE}, s{S_Bx}
          s_lshl_b32 s{S_Dx}, s{S_A}, 8
          s_add_u32 s{S_Dx}, s{S_Dx}, {WS_TC:#x}""")
    g(f"""v_mov_b32 v{V_T0}, {L_FLAG}
          v_mov_b32 v16, 0
          v_mov_b32 v17, 0
          v_mov_b32 v18, 0
          v_mov_b32 v19, 0
          s_cmp_eq_u32 s{S_WAVE}, 4
          s_cbranch_scc0 L_nz
          ds_write_b128 v{V_T0}, v[16:19]
          ds_write_b128 v{V_T0}, v[16:19] offset:16
          ds_write_b128 v{V_T0}, v[16:19] offset:32""")
    g.label("L_nz")
    g("s_waitcnt lgkmcnt(0)")
    if g.prof:
        for sl in STAMP_SLOTS: g(f"s_mov_b32 s{sl}, 0")
    g.stamp(0)
    g(f"s_cmp_lt_u32 s{S_WAVE}, 4")
    g("s_cbranch_scc1 L_qphase")
    srd(g, S_K, P_K, 0x10000000)
    srd(g, S_V, P_V, 0x10000000)
    srd(g, S_WS, P_WS, WS_BYTES)
    g("s_setprio 2")
    g("s_barrier")
    prefetch(g)
    g("s_setprio 0")
    g.stamp(2)
    q_gather(g)
    g(f"s_mov_b32 s{S_NEXT}, 256")
    g("s_branch L_qwait")
    g.label("L_qphase")
    S_P = S_NEXT2
    srd(g, S_K, P_K, 0x10000000)
    srd(g, S_V, P_V, 0x10000000)
    srd(g, S_T, P_X, 7168)
    srd(g, S_WS, P_WS, WS_BYTES)
    g(f"""s_add_u32 s{S_P}, s{S_B}, 4
          s_cmp_eq_u32 s{S_S}, 3
          s_cselect_b32 s{S_P}, s{S_P}, 99
          s_cmp_eq_u32 s{S_B}, 7
          s_cselect_b32 s{S_P}, s{S_S}, s{S_P}
          s_cmp_ge_u32 s{S_P}, 8
          s_cbranch_scc1 L_noq""")
    srd(g, S_T2, P_WQ, 448*4096*2)
    XR = 16; XA = 44; WB = 128
    g(f"""v_lshrrev_b32 v{V_T3}, 3, v{V_LANE}
          v_lshlrev_b32 v{V_T3}, 13, v{V_T3}
          v_and_b32 v{V_T4}, 7, v{V_LANE}
          v_lshl_add_u32 v{V_T3}, v{V_T4}, 4, v{V_T3}
          s_lshl_b32 s{S_A}, s{S_WAVE}, 20
          s_lshl_b32 s{S_Bx}, s{S_HKV}, 10
          s_add_u32 s{S_A}, s{S_A}, s{S_Bx}
          s_lshl_b32 s{S_Bx}, s{S_P}, 7
          s_add_u32 s{S_A}, s{S_A}, s{S_Bx}
          s_lshl_b32 s{S_Bx}, s{S_WAVE}, 15""")
    for i in range(16):
        dma(g, V_T3, S_T2, S_A, S_Bx, "nt" if NTF & 1 else "")
        g(f"s_add_u32 s{S_A}, s{S_A}, 0x10000")
    g(f"""v_and_b32 v{V_T0}, 7, v{V_LANE}
          v_mul_u32_u24 v{V_T0}, 896, v{V_T0}
          v_lshrrev_b32 v{V_T1}, 3, v{V_LANE}
          v_lshl_add_u32 v{V_T1}, v{V_T1}, 4, v{V_T0}
          v_lshl_add_u32 v{V_T2}, v{V_G}, 4, v{V_T0}
          s_lshl_b32 s{S_A}, s{S_WAVE}, 8""")
    for t in range(7):
        g(f"buffer_load_dwordx4 {vr(XR+4*t)}, v{V_T1}, {S4(S_T)}, 0 offen offset:{t*128}")
    for ks in range(4):
        g(f"buffer_load_dwordx4 {vr(XA+4*ks)}, v{V_T2}, {S4(S_T)}, s{S_A} offen offset:{ks*64}")
    g.label("L_noq")
    CLR = 124
    g(f"""s_mul_i32 s{S_A}, s{S_B}, 896
          s_mul_i32 s{S_Bx}, s{S_I}, 28
          s_add_u32 s{S_A}, s{S_A}, s{S_Bx}
          v_lshlrev_b32 v{V_T5}, 1, v{V_N}
          buffer_load_ushort v{V_GU}, v{V_T5}, {S4(S_T)}, s{S_A} offen
          v_mov_b32 v{CLR}, -1
          v_mov_b32 v{CLR+1}, -1
          v_mov_b32 v{CLR+2}, -1
          v_mov_b32 v{CLR+3}, -1
          v_lshlrev_b32 v{V_T0}, 4, v0
          s_lshl_b32 s{S_A}, s{S_WG}, 13
          s_add_u32 s{S_A}, s{S_A}, {WS_IN:#x}
          buffer_store_dwordx4 {vr(CLR)}, v{V_T0}, {S4(S_WS)}, s{S_A} offen sc1
          s_cmp_eq_u32 s{S_WAVE}, 3
          s_cbranch_scc0 L_noclr""")
    g(f"""s_add_u32 s{S_A}, s{S_A}, 4096
          s_lshl_b32 s{S_Bx}, s{S_WG}, 7
          s_add_u32 s{S_Bx}, s{S_Bx}, {WS_HH-256:#x}
          s_lshl_b32 s{S_Cx}, s{S_WG}, 5
          s_add_u32 s{S_Cx}, s{S_Cx}, {WS_H-384:#x}
          v_mov_b32 v{V_T1}, s{S_A}
          v_mov_b32 v{V_T2}, s{S_Bx}
          v_cmp_lt_u32 vcc, 15, v{V_LANE}
          v_mov_b32 v{V_T3}, s{S_Cx}
          s_nop 0
          v_cndmask_b32 v{V_T1}, v{V_T1}, v{V_T2}, vcc
          v_cmp_lt_u32 vcc, 23, v{V_LANE}
          v_lshlrev_b32 v{V_T0}, 4, v{V_LANE}
          s_nop 0
          v_cndmask_b32 v{V_T1}, v{V_T1}, v{V_T3}, vcc
          v_add_u32 v{V_T1}, v{V_T1}, v{V_T0}
          s_mov_b64 exec, 0x3ffffff
          buffer_store_dwordx4 {vr(CLR)}, v{V_T1}, {S4(S_WS)}, 0 offen sc1
          s_mov_b64 exec, -1""")
    g.label("L_noclr")
    g("s_barrier")
    g(f"""s_cmp_ge_u32 s{S_P}, 8
          s_cbranch_scc0 L_prod""")
    k_loads(g, 0)
    g("s_waitcnt vmcnt(8)")
    flag_add(g, 4)
    g(f"""s_cmp_eq_u32 s{S_WAVE}, 0
          s_cbranch_scc0 L_pf2
          s_mov_b32 s{S_NEXT}, 1
          s_branch L_arrive""")
    g.label("L_prod")
    g(f"""v_lshlrev_b32 v104, 10, v{V_G}
          v_bfe_u32 v{V_T0}, v{V_LANE}, 2, 2
          v_lshl_add_u32 v104, v{V_T0}, 7, v104
          v_and_b32 v{V_T0}, 3, v{V_LANE}
          v_lshl_add_u32 v104, v{V_T0}, 3, v104
          s_lshl_b32 s{S_Bx}, s{S_WAVE}, 15
          v_add_u32 v104, s{S_Bx}, v104
          s_setprio 3""")
    g("s_waitcnt vmcnt(6)")
    for ks in range(4):
        for nt in range(4):
            r = WB + (ks*4 + nt)*4
            g(f"ds_read_b64_tr_b16 v[{r}:{r+1}], v104 offset:{ks*4096+nt*32}")
            g(f"ds_read_b64_tr_b16 v[{r+2}:{r+3}], v104 offset:{ks*4096+nt*32+512}")
    ln_stats(g, XR, 28, [8, 16, 32], 96)
    g("s_waitcnt vmcnt(1)")
    ln_apply(g, XA, 16, 96)
    g("s_waitcnt lgkmcnt(0)")
    for ks in range(4):
        for nt in range(4):
            c = "0" if ks == 0 else vr(104+4*nt)
            g(f"v_mfma_f32_16x16x32_bf16 {vr(104+4*nt)}, {vr(WB+(ks*4+nt)*4)}, {vr(XA+4*ks)}, {c}")
    g(f"""v_lshlrev_b32 v{V_T4}, 7, v{V_G}
          v_lshl_add_u32 v{V_T4}, v{V_N}, 4, v{V_T4}
          s_mov_b32 s{S_EX}, 0x00ff00ff
          s_mov_b32 s{S_EX+1}, 0x00ff00ff
          s_lshl_b32 s{S_A}, s{S_WAVE}, 11
          s_add_u32 s{S_A}, s{S_A}, {L_CB}
          v_add_u32 v{V_T5}, s{S_A}, v{V_T4}
          s_lshl_b32 s{S_A}, s{S_WAVE}, 9
          s_add_u32 s{S_A}, s{S_A}, {L_CB}
          v_add_u32 v{V_T4}, s{S_A}, v{V_T4}
          s_mov_b64 exec, s[{S_EX}:{S_EX+1}]""")
    for nt in range(4):
        g(f"ds_write_b128 v{V_T5}, {vr(104+4*nt)} offset:{nt*512}")
    g(f"""s_mov_b64 exec, -1
          s_waitcnt lgkmcnt(0)""")
    flag_add(g, 0)
    g(f"""s_lshl_b32 s{S_A}, s{S_WAVE}, 8
          s_add_u32 s{S_A}, s{S_A}, {L_QP}
          v_lshlrev_b32 v40, 5, v{V_N}
          v_lshl_add_u32 v40, v{V_G}, 3, v40
          v_add_u32 v40, s{S_A}, v40
          v_lshlrev_b32 v{V_T2}, 4, v{V_N}
          v_add_u32 v{V_T2}, s{S_A}, v{V_T2}
          v_bfe_u32 v{V_T3}, v{V_LANE}, 1, 3
          v_lshlrev_b32 v{V_T3}, 13, v{V_T3}
          v_lshl_add_u32 v{V_T3}, v{V_G}, 16, v{V_T3}
          v_and_b32 v{V_T5}, 1, v{V_LANE}
          v_lshl_add_u32 v{V_T3}, v{V_T5}, 4, v{V_T3}
          s_lshl_b32 s{S_A}, s{S_HKV}, 10
          s_lshl_b32 s{S_Bx}, s{S_P}, 7
          s_add_u32 s{S_A}, s{S_A}, s{S_Bx}
          s_lshl_b32 s{S_Bx}, s{S_WAVE}, 5
          s_add_u32 s{S_A}, s{S_A}, s{S_Bx}""")
    wait_flag(g, "c", 0, 4)
    for w in range(4):
        g(f"ds_read_b128 {vr(16+4*w)}, v{V_T4} offset:{w*2048}")
    g(f"""s_waitcnt lgkmcnt(0)
          v_pk_add_f32 v[16:17], v[16:17], v[20:21]
          v_pk_add_f32 v[18:19], v[18:19], v[22:23]
          v_pk_add_f32 v[24:25], v[24:25], v[28:29]
          v_pk_add_f32 v[26:27], v[26:27], v[30:31]
          v_pk_add_f32 v[16:17], v[16:17], v[24:25]
          v_pk_add_f32 v[18:19], v[18:19], v[26:27]
          v_cvt_pk_bf16_f32 v16, v16, v17
          v_cvt_pk_bf16_f32 v17, v18, v19
          s_mov_b64 exec, s[{S_EX}:{S_EX+1}]
          ds_write_b64 v40, v[16:17]
          s_mov_b64 exec, -1
          s_waitcnt lgkmcnt(0)
          ds_read_b128 v[20:23], v{V_T2}
          s_waitcnt lgkmcnt(0)
          buffer_store_dwordx4 v[20:23], v{V_T3}, {S4(S_WS)}, s{S_A} offen sc1
          s_setprio 0""")
    g.stamp(1)
    g("s_waitcnt vmcnt(0)")
    flag_add(g, 4)
    g(f"""s_cmp_eq_u32 s{S_WAVE}, 0
          s_cbranch_scc0 L_pf
          s_mov_b32 s{S_NEXT}, 0""")
    g.label("L_arrive")
    wait_flag(g, "d", 4, 4)
    g(f"""s_lshl_b32 s{S_A}, s{S_HKV}, 5
          s_add_u32 s{S_Cx}, s{P_DBG}, s{S_A}
          s_addc_u32 s{S_Dx}, s{P_DBG+1}, 0
          s_mov_b32 s{S_A}, 1
          s_atomic_add s{S_A}, s[{S_Cx}:{S_Dx}], 0 glc
          s_lshl_b32 s{S_Bx}, s{S_HKV}, 13
          s_add_u32 s{S_Bx}, s{S_Bx}, {WS_IN+O_GO:#x}
          s_add_u32 s{S_Cx}, s{P_WS}, s{S_Bx}
          s_addc_u32 s{S_Dx}, s{P_WS+1}, 0
          s_waitcnt lgkmcnt(0)""")
    g.stamp(2)
    g(f"""s_and_b32 s{S_A}, s{S_A}, 31
          s_cmp_eq_u32 s{S_A}, 31
          s_cbranch_scc0 L_nonot
          s_mov_b32 s{S_A}, 1""")
    for half in range(2):
        for r in range(16):
            g(f"s_atomic_add s{S_A}, s[{S_Cx}:{S_Dx}], {r*65536:#x}")
        if half == 0:
            g(f"""s_add_u32 s{S_Cx}, s{S_Cx}, 0x100000
                  s_addc_u32 s{S_Dx}, s{S_Dx}, 0""")
    g.label("L_nonot")
    g(f"""s_cmp_eq_u32 s{S_NEXT}, 1
          s_cbranch_scc1 L_pf2""")
    g.label("L_pf")
    k_loads(g, 0)
    g.label("L_pf2")
    k_loads(g, 1); v_loads(g, 0); v_loads(g, 1)
    lds_prefetch(g)
    g.label("L_qwait")
    for e in range(8):
        m16 = 3 << (2*e); m32 = m16 | (m16 << 16)
        g(f"s_mov_b32 s{S_MASK+2*e}, {m32:#x}")
        g(f"s_mov_b32 s{S_MASK+2*e+1}, {m32:#x}")
    g(f"""v_lshrrev_b32 v{V_T2}, 7, v0
          s_lshl_b32 s{S_A}, s{S_B}, 5
          s_add_u32 s{S_A}, s{S_A}, s{S_HKV}
          v_lshlrev_b32 v{V_T2}, 3, v{V_T2}
          v_add_u32 v{V_T2}, s{S_A}, v{V_T2}
          v_lshlrev_b32 v{V_IN1}, 13, v{V_T2}
          v_and_b32 v{V_T3}, 127, v0
          v_lshl_add_u32 v{V_IN1}, v{V_T3}, 2, v{V_IN1}
          s_lshl_b32 s{S_A}, s{S_S}, 9
          s_add_u32 s{S_A}, s{S_A}, {WS_IN:#x}
          v_add_u32 v{V_IN1}, s{S_A}, v{V_IN1}""")
    g(f"""v_lshlrev_b32 v{V_T2}, 3, v{V_G}
          v_add_u32 v{V_T2}, s{S_WAVE}, v{V_T2}
          v_lshl_add_u32 v{V_T2}, v{V_T2}, 4, v{V_N}
          v_mul_u32_u24 v{V_T3}, 4682, v{V_T2}
          v_lshrrev_b32 v{V_T3}, 16, v{V_T3}
          v_mul_u32_u24 v{V_T4}, 14, v{V_T3}
          v_sub_u32 v{V_T4}, v{V_T2}, v{V_T4}
          v_and_b32 v{V_T5}, 3, v{V_T3}
          v_lshlrev_b32 v{V_T5}, 3, v{V_T5}
          v_lshrrev_b32 v{V_T3}, 2, v{V_T3}
          v_add_u32 v{V_T5}, v{V_T5}, v{V_T3}
          s_lshl_b32 s{S_A}, s{S_B}, 5
          v_add_u32 v{V_T5}, s{S_A}, v{V_T5}
          v_lshlrev_b32 v{V_IN2}, 13, v{V_T5}
          v_lshl_add_u32 v{V_IN2}, v{V_T4}, 2, v{V_IN2}
          s_lshl_b32 s{S_A}, s{S_I}, 6
          s_add_u32 s{S_A}, s{S_A}, {WS_IN+O_IN2:#x}
          v_add_u32 v{V_IN2}, s{S_A}, v{V_IN2}
          v_cmp_lt_u32 vcc, 447, v{V_T2}
          v_mov_b32 v{V_T3}, 0x7ffffff0
          s_nop 0
          v_cndmask_b32 v{V_IN2}, v{V_IN2}, v{V_T3}, vcc""")
    for r in range(8):
        g(f"v_mov_b32 v{V_ACC+r}, 0")
    g(f"""v_mov_b32 v{V_M}, 0xf149f2ca
          v_mov_b32 v{V_L}, 0
          v_and_b32 v{V_T4}, 1, v{V_N}
          v_lshlrev_b32 v{V_T4}, 9, v{V_T4}
          v_lshl_add_u32 v{V_T4}, v{V_G}, 4, v{V_T4}
          v_add_u32 v{V_T4}, {L_QIMG}, v{V_T4}
          s_nop 0""")
    wait_flag(g, "q", 12, 4)
    for j in range(8):
        g(f"ds_read_b128 {vr(V_Q+4*j)}, v{V_T4} offset:{j*64}")
    g("s_waitcnt lgkmcnt(0)")
    g.stamp(4)
    g(f"""s_cmp_ge_u32 s{S_WAVE}, 4
          s_cbranch_scc1 L_last
          s_add_u32 s{S_OFF}, s{S_OFF}, {12*16384}""")
    tile_body(g, [56, 56, 56, 56], True)
    g(f"""s_add_u32 s{S_OFF}, s{S_OFF}, {4*16384}
          s_mov_b32 s{S_NEXT}, 12
          s_mov_b32 s{S_NEXT2}, 0
          s_lshl_b32 s{S_A}, s{S_WAVE}, 2
          s_add_u32 s{S_A}, s{S_A}, {L_FLAG+16}
          v_mov_b32 v{V_T0}, s{S_A}
          v_mov_b32 v{V_T1}, 1
          s_waitcnt vmcnt(32)
          s_mov_b64 exec, 1
          ds_write_b32 v{V_T0}, v{V_T1}
          s_mov_b64 exec, -1""")
    if BAL:
        g(f"""s_cmp_eq_u32 s{S_B}, 7
              s_cbranch_scc1 L_nobal
              s_cmp_lt_u32 s{S_B}, 4
              s_cselect_b32 s{S_Bx}, {4*BALS}, 12
              s_cselect_b32 s{S_Cx}, {1 if BALS == 0 else 0}, 0
              s_cmp_eq_u32 s{S_Cx}, 1
              s_cbranch_scc1 L_nobal
              s_lshl_b32 s{S_A}, s{S_S}, 2
              s_add_u32 s{S_A}, s{S_A}, s{S_WAVE}
              s_cmp_eq_u32 s{S_A}, 3
              s_cselect_b32 s{S_NEXT}, 11, s{S_NEXT}
              s_cmp_eq_u32 s{S_A}, s{S_Bx}
              s_cselect_b32 s{S_NEXT}, 13, s{S_NEXT}
              s_cselect_b32 s{S_NEXT2}, 1, 0""")
        g.label("L_nobal")
    g.label("L_loop")
    if BAL:
        g(f"""s_cmp_eq_u32 s{S_NEXT}, s{S_NEXT2}
              s_cbranch_scc0 L_nosp
              s_lshl_b32 s{S_A}, s{S_S}, 20
              s_sub_u32 s{S_OFF}, s{S_BASE}, s{S_A}
              s_add_u32 s{S_OFF}, s{S_OFF}, {63*16384}""")
        g.label("L_nosp")
    if STAG or WARM or TRS or TRW:
        g(f"""s_cmp_eq_u32 s{S_WAVE}, 1
              s_cbranch_scc0 L_nopc""")
        flag_add(g, 44)
        g.label("L_nopc")
    if g.prof:
        for val, sl in ((12, 1), (8, 2), (4, 3)):
            g(f"s_cmp_eq_u32 s{S_NEXT}, {val}")
            g(f"s_cbranch_scc0 L_ps{val}")
            g.stamp(sl)
            g.label(f"L_ps{val}")
    tile_body(g, [24, 24, 24, 24], True)
    g(f"""s_add_u32 s{S_OFF}, s{S_OFF}, {4*16384}
          s_sub_u32 s{S_NEXT}, s{S_NEXT}, 1
          s_cmp_gt_u32 s{S_NEXT}, 0
          s_cbranch_scc1 L_loop""")
    if TRS or TRW:
        g(f"""s_cmp_eq_u32 s{S_WAVE}, 1
              s_cbranch_scc0 L_last""")
        flag_add(g, 44)
    g.label("L_last")
    tile_body(g, [24, 16, 8, 0], False)
    g(f"""s_cmp_lt_u32 s{S_WAVE}, 4
          s_cbranch_scc1 L_tail0
          s_cmp_eq_u32 s{S_NEXT}, 257
          s_cbranch_scc1 L_wdma
          s_mov_b32 s{S_NEXT}, 257
          s_lshl_b32 s{S_A}, s{S_WAVE}, 2
          s_add_u32 s{S_A}, s{S_A}, {L_FLAG}
          v_mov_b32 v{V_T0}, s{S_A}""")
    g.label("L_wl")
    g(f"""ds_read_b32 v{V_T1}, v{V_T0}
          s_waitcnt lgkmcnt(0)
          v_cmp_eq_u32 vcc, 0, v{V_T1}""")
    poll_branch(g, "L_wl")
    g(f"""s_sub_u32 s{S_A}, s{S_WAVE}, 4
          s_lshl_b32 s{S_A}, s{S_A}, 15
          v_lshlrev_b32 v{V_T0}, 4, v{V_LANE}
          v_add_u32 v{V_T0}, s{S_A}, v{V_T0}""")
    for u in range(32):
        g(f"ds_read_b128 {vr(128+4*u)}, v{V_T0} offset:{u*1024}")
    g("s_waitcnt lgkmcnt(0)")
    flag_add(g, 32)
    g("s_branch L_last")
    g.label("L_wdma")
    wait_flag(g, "w", 32, 4)
    g("s_setprio 2")
    cert(g)
    if TRS:
        g(f"v_mov_b32 v{V_T0}, {L_FLAG}")
        g.label("L_wps")
        g(f"""s_sleep 4
              ds_read_b32 v{V_T1}, v{V_T0} offset:44
              s_waitcnt lgkmcnt(0)
              v_cmp_gt_u32 vcc, {TRS}, v{V_T1}""")
        poll_branch(g, "L_wps")
    if not (NOW & 1): small_dma(g)
    if STAG:
        g(f"v_mov_b32 v{V_T0}, {L_FLAG}")
        g(f"v_mov_b32 v{V_T2}, s{S_B}")
        g.label("L_wst")
        g(f"""s_sleep 8
              ds_read_b32 v{V_T1}, v{V_T0} offset:44
              s_waitcnt lgkmcnt(0)
              v_cmp_gt_u32 vcc, v{V_T2}, v{V_T1}""")
        poll_branch(g, "L_wst")
    if TRW:
        g(f"v_mov_b32 v{V_T0}, {L_FLAG}")
        g.label("L_wpw")
        g(f"""s_sleep 4
              ds_read_b32 v{V_T1}, v{V_T0} offset:44
              s_waitcnt lgkmcnt(0)
              v_cmp_gt_u32 vcc, {TRW}, v{V_T1}""")
        poll_branch(g, "L_wpw")
    if not (NOW & 4): wo_dma(g)
    g("s_waitcnt vmcnt(0)")
    g("s_setprio 0")
    if WARM:
        g(f"""s_cmp_eq_u32 s{S_WAVE}, 6
              s_cbranch_scc0 L_tail0
              v_mov_b32 v{V_T0}, {L_FLAG}""")
        g.label("L_ww")
        g(f"""s_sleep 8
              ds_read_b32 v{V_T1}, v{V_T0} offset:44
              s_waitcnt lgkmcnt(0)
              v_cmp_gt_u32 vcc, {WARM}, v{V_T1}""")
        poll_branch(g, "L_ww")
        g(f"""s_getpc_b64 s[{S_Cx}:{S_Dx}]
              s_mov_b32 s{S_A}, 18""")
        g.label("L_wm")
        for i in range(4):
            g(f"s_load_dwordx16 s[64:79], s[{S_Cx}:{S_Dx}], {i*64}")
        g(f"""s_add_u32 s{S_Cx}, s{S_Cx}, 256
              s_addc_u32 s{S_Dx}, s{S_Dx}, 0
              s_waitcnt lgkmcnt(0)
              s_sub_u32 s{S_A}, s{S_A}, 1
              s_cmp_gt_u32 s{S_A}, 0
              s_cbranch_scc1 L_wm""")
    g.label("L_tail0")
    g.stamp(5)
    tail(g, debug)
    g.label("L_end")
    if g.prof:
        g(f"s_cmp_ge_u32 s{S_WG}, 256")
        g("s_cbranch_scc1 L_end2")
        g("s_waitcnt vmcnt(0)")
        g.stamp(15)
        g("s_mov_b64 exec, 1")
        g(f"s_lshl_b32 s{S_A}, s{S_WG}, 3")
        g(f"s_add_u32 s{S_A}, s{S_A}, s{S_WAVE}")
        g(f"s_lshl_b32 s{S_A}, s{S_A}, 7")
        g(f"s_add_u32 s{S_A}, s{S_A}, {WS_DBG+0x100000:#x}")
        g("v_mov_b32 v1, 0")
        for i, sl in enumerate(STAMP_SLOTS):
            g(f"v_mov_b32 v{16+i}, s{sl}")
            g(f"buffer_store_dword v{16+i}, v1, {S4(S_WS)}, s{S_A} offen offset:{i*4}")
        if debug & 4:
            g(f"""s_cmp_eq_u32 s{S_WG}, 0
                  s_cbranch_scc0 L_end2
                  s_cmp_eq_u32 s{S_WAVE}, 0
                  s_cbranch_scc0 L_end2""")
            srd(g, S_T, P_DBG, 256)
            for k_, i in enumerate((4, 5, 6, 10, 14, 15)):
                g(f"s_sub_u32 s{S_A}, s{STAMP_SLOTS[i]}, s{STAMP_SLOTS[0]}")
                g(f"v_mov_b32 v16, s{S_A}")
                g(f"buffer_store_dword v16, v1, {S4(S_T)}, 0 offen offset:{4+4*k_}")
        g.label("L_end2")
    g("s_endpgm")
    return g.L

def tail(g, debug):
    R = 128
    xreduce(g, V_L, V_T0, "v_add_f32", [16, 32])
    g(f"""v_lshlrev_b32 v{V_T0}, 5, v{V_N}
          v_lshl_add_u32 v{V_T0}, v{V_G}, 3, v{V_T0}
          s_lshl_b32 s{S_A}, s{S_WAVE}, 11
          s_add_u32 s{S_A}, s{S_A}, {L_CB}
          v_add_u32 v{V_T0}, s{S_A}, v{V_T0}
          v_add_u32 v{V_T1}, 1024, v{V_T0}""")
    for half in range(2):
        a = V_ACC + 4*half
        g(f"ds_write2_b32 v{V_T0}, v{a}, v{a+2} offset0:{half*128} offset1:{half*128+1}")
        g(f"ds_write2_b32 v{V_T1}, v{a+1}, v{a+3} offset0:{half*128} offset1:{half*128+1}")
    g(f"""s_lshl_b32 s{S_A}, s{S_WAVE}, 4
          s_add_u32 s{S_A}, s{S_A}, {L_STAT}
          v_lshlrev_b32 v{V_T2}, 3, v{V_LANE}
          v_add_u32 v{V_T2}, s{S_A}, v{V_T2}
          s_mov_b64 exec, 3
          ds_write_b64 v{V_T2}, v[{V_M}:{V_L}]
          s_mov_b64 exec, -1""")
    g(f"""v_lshlrev_b32 v{V_T0}, 2, v0
          v_add_u32 v{V_T0}, {L_CB}, v{V_T0}
          v_lshrrev_b32 v{V_T1}, 8, v0
          v_lshlrev_b32 v{V_T1}, 3, v{V_T1}
          v_add_u32 v{V_T1}, {L_STAT}, v{V_T1}
          v_bfe_u32 v{V_T2}, v{V_LANE}, 2, 2
          v_lshrrev_b32 v{V_T3}, 1, v{V_T2}
          v_and_b32 v{V_T4}, 1, v{V_G}
          v_lshlrev_b32 v{V_T4}, 1, v{V_T4}
          v_xor_b32 v{V_T3}, v{V_T3}, v{V_T4}
          s_and_b32 s{S_A}, s{S_WAVE}, 3
          v_xor_b32 v{V_T3}, s{S_A}, v{V_T3}
          v_mul_u32_u24 v{V_T4}, 7168, v{V_G}
          v_lshl_add_u32 v{V_T4}, v{V_T2}, 7, v{V_T4}
          v_and_b32 v{V_T2}, 3, v{V_LANE}
          v_lshl_add_u32 v{V_T4}, v{V_T2}, 3, v{V_T4}
          s_lshr_b32 s{S_A}, s{S_WAVE}, 2
          s_lshl_b32 s{S_A}, s{S_A}, 10
          v_add_u32 v{V_T4}, s{S_A}, v{V_T4}
          v_lshl_add_u32 v{V_A}, v{V_T3}, 5, v{V_T4}
          v_xor_b32 v{V_T3}, 2, v{V_T3}
          v_lshl_add_u32 v{V_A+1}, v{V_T3}, 5, v{V_T4}
          v_add_u32 v{V_A+1}, 512, v{V_A+1}
          v_add_u32 v{V_A+2}, 57344, v{V_A}
          v_add_u32 v{V_A+3}, 57344, v{V_A+1}
          s_waitcnt lgkmcnt(0)
          s_barrier""")
    g.stamp(6)
    for w in range(8):
        g(f"ds_read_b64 v[{16+2*w}:{17+2*w}], v{V_T1} offset:{w*16}")
    for w in range(8):
        g(f"ds_read_b32 v{32+w}, v{V_T0} offset:{w*2048}")
    g("s_waitcnt lgkmcnt(8)")
    g(f"""v_max3_f32 v{V_T0}, v16, v18, v20
          v_max3_f32 v{V_T1}, v22, v24, v26
          v_max3_f32 v{V_T0}, v{V_T0}, v28, v30
          v_max_f32 v{V_T0}, v{V_T0}, v{V_T1}""")
    for w in range(8): g(f"v_sub_f32 v{16+2*w}, v{16+2*w}, v{V_T0}")
    for w in range(8): g(f"v_mul_f32 v{16+2*w}, s{S_C}, v{16+2*w}")
    for w in range(8): g(f"v_exp_f32 v{16+2*w}, v{16+2*w}")
    g("s_waitcnt lgkmcnt(0)")
    g(f"""v_mul_f32 v{V_T1}, v16, v17
          v_mul_f32 v{V_T2}, v16, v32""")
    for w in range(1, 8):
        g(f"v_fma_f32 v{V_T1}, v{16+2*w}, v{17+2*w}, v{V_T1}")
        g(f"v_fma_f32 v{V_T2}, v{16+2*w}, v{32+w}, v{V_T2}")
    g(f"""v_rcp_f32 v{V_T3}, v{V_T1}
          v_log_f32 v{V_T4}, v{V_T1}
          s_mul_i32 s{S_A}, s{S_S}, 508
          s_sub_u32 s{S_A}, 2048, s{S_A}
          v_mul_f32 v40, v{V_T2}, v{V_T3}
          v_fma_f32 v42, v{V_T0}, s{S_C}, v{V_T4}""")
    canon(g, 40); canon(g, 42)
    g(f"""buffer_store_dword v40, v{V_IN1}, {S4(S_WS)}, 0 offen sc1
          v_and_b32 v{V_T1}, 127, v0
          v_cmp_eq_u32 vcc, 0, v{V_T1}
          s_and_saveexec_b64 s[{S_EX}:{S_EX+1}], vcc
          s_cbranch_execz L_t1s
          buffer_store_dword v42, v{V_IN1}, {S4(S_WS)}, s{S_A} offen sc1""")
    g.label("L_t1s")
    g(f"s_mov_b64 exec, s[{S_EX}:{S_EX+1}]")
    for q in range(4):
        for ks in range(4):
            a1, a2 = (V_A, V_A+1) if ks < 2 else (V_A+2, V_A+3)
            off = (ks & 1) * 28672 + q * 2048
            r = R + (q*4 + ks) * 4
            g(f"ds_read_b64_tr_b16 v[{r}:{r+1}], v{a1} offset:{off}")
            g(f"ds_read_b64_tr_b16 v[{r+2}:{r+3}], v{a2} offset:{off}")
    g.stamp(7)
    g(f"""s_lshl_b32 s{S_Cx}, s{S_WG}, 13
          s_add_u32 s{S_Cx}, s{S_Cx}, {WS_IN:#x}
          s_cmp_ge_u32 s{S_WAVE}, 2
          s_cbranch_scc1 L_t2b
          v_lshlrev_b32 v{V_T0}, 2, v0
          v_mov_b32 v{V_T1}, 2048""")
    g.label("L_p1")
    for s in range(4):
        g(f"buffer_load_dword v{16+s}, v{V_T0}, {S4(S_WS)}, s{S_Cx} offen offset:{s*512} sc1")
    g(f"""buffer_load_dwordx4 v[24:27], v{V_T1}, {S4(S_WS)}, s{S_Cx} offen sc1
          s_waitcnt vmcnt(0)
          v_max3_u32 v{V_T2}, v16, v17, v18
          v_max3_u32 v{V_T3}, v19, v24, v25
          v_max3_u32 v{V_T2}, v{V_T2}, v26, v27
          v_max_u32 v{V_T2}, v{V_T2}, v{V_T3}
          v_cmp_eq_u32 vcc, -1, v{V_T2}""")
    poll_branch(g, "L_p1")
    g(f"""v_max3_f32 v{V_T2}, v24, v25, v26
          v_max_f32 v{V_T2}, v{V_T2}, v27
          v_sub_f32 v24, v24, v{V_T2}
          v_sub_f32 v25, v25, v{V_T2}
          v_sub_f32 v26, v26, v{V_T2}
          v_sub_f32 v27, v27, v{V_T2}
          v_exp_f32 v24, v24
          v_exp_f32 v25, v25
          v_exp_f32 v26, v26
          v_exp_f32 v27, v27
          v_lshlrev_b32 v{V_T0}, 1, v0
          v_add_f32 v{V_T2}, v24, v25
          v_add_f32 v{V_T3}, v26, v27
          v_add_f32 v{V_T2}, v{V_T2}, v{V_T3}
          v_rcp_f32 v{V_T2}, v{V_T2}
          v_mul_f32 v{V_T3}, v24, v16
          v_fma_f32 v{V_T3}, v25, v17, v{V_T3}
          v_fma_f32 v{V_T3}, v26, v18, v{V_T3}
          v_fma_f32 v{V_T3}, v27, v19, v{V_T3}
          v_mul_f32 v{V_T3}, v{V_T3}, v{V_T2}
          v_cvt_pk_bf16_f32 v{V_T3}, v{V_T3}, v{V_T3}
          v_add_u32 v{V_T1}, {L_OF}, v{V_T0}
          ds_write_b16 v{V_T1}, v{V_T3}""")
    if debug & 1:
        g(f"""s_lshl_b32 s{S_A}, s{S_WG}, 8
              s_add_u32 s{S_A}, s{S_A}, {WS_DBG:#x}
              buffer_store_short v{V_T3}, v{V_T0}, {S4(S_WS)}, s{S_A} offen""")
    g.label("L_t2b")
    g(f"""v_lshlrev_b32 v{V_T0}, 4, v{V_G}
          v_add_u32 v{V_T0}, {L_OF}, v{V_T0}
          v_cmp_eq_u32 vcc, 1, v{V_G}
          v_cmp_eq_u32 s[{S_A}:{S_A+1}], 2, v{V_G}
          v_cmp_eq_u32 s[{S_EX}:{S_EX+1}], 3, v{V_G}
          s_waitcnt lgkmcnt(0)
          s_barrier""")
    g.stamp(8)
    for ks in range(4):
        g(f"ds_read_b128 {vr(16+4*ks)}, v{V_T0} offset:{ks*64}")
    g(f"v_lshlrev_b32 v{V_T0}, 2, v0")
    g(f"v_add_u32 v{V_T0}, {O_IN2}, v{V_T0}")
    for ks in range(4):
        g(f"s_waitcnt lgkmcnt({3-ks})")
        for q in range(4):
            c = "0" if ks == 0 else vr(32+4*q)
            g(f"v_mfma_f32_16x16x32_bf16 {vr(32+4*q)}, {vr(16+4*ks)}, {vr(R+(q*4+ks)*4)}, {c}")
    g.nop(8)
    g(f"""v_cndmask_b32 v48, v32, v36, vcc
          v_cndmask_b32 v48, v48, v40, s[{S_A}:{S_A+1}]
          v_cndmask_b32 v48, v48, v44, s[{S_EX}:{S_EX+1}]""")
    canon(g, 48)
    g(f"buffer_store_dword v48, v{V_IN2}, {S4(S_WS)}, 0 offen sc1")
    g.stamp(9)
    V_X = V_GU
    g(f"""v_bfe_u32 v{V_T3}, v{V_LANE}, 2, 2
          v_and_b32 v{V_T4}, 3, v{V_LANE}
          s_cmp_ge_u32 s{S_J}, 112
          s_cbranch_scc1 L_plwd
          s_cmp_eq_u32 s{S_WAVE}, 7
          s_cbranch_scc0 L_pldone
          v_lshlrev_b32 v{V_T5}, 8, v{V_G}
          v_lshl_add_u32 v{V_T5}, v{V_T3}, 5, v{V_T5}
          v_lshl_add_u32 v{V_T5}, v{V_T4}, 3, v{V_T5}
          v_add_u32 v{V_T5}, {L_WD}, v{V_T5}""")
    for m in range(2):
        for ks in range(14):
            r = R + (m*14 + ks)*4
            g(f"ds_read_b64_tr_b16 v[{r}:{r+1}], v{V_T5} offset:{m*14336+ks*1024}")
            g(f"ds_read_b64_tr_b16 v[{r+2}:{r+3}], v{V_T5} offset:{m*14336+ks*1024+128}")
    g("s_branch L_pldone")
    g.label("L_plwd")
    g(f"""s_cmp_ge_u32 s{S_CS}, 56
          s_cbranch_scc1 L_pldone
          v_lshlrev_b32 v{V_T5}, 7, v{V_G}
          v_lshl_add_u32 v{V_T5}, v{V_T3}, 4, v{V_T5}
          v_lshl_add_u32 v{V_T5}, v{V_T4}, 3, v{V_T5}
          s_mul_i32 s{S_A}, s{S_WAVE}, {7*512}
          s_add_u32 s{S_A}, s{S_A}, {L_WD}
          v_add_u32 v{V_T5}, s{S_A}, v{V_T5}""")
    for ks in range(7):
        g(f"ds_read_b64_tr_b16 v[{R+4*ks}:{R+4*ks+1}], v{V_T5} offset:{ks*512}")
        g(f"ds_read_b64_tr_b16 v[{R+4*ks+2}:{R+4*ks+3}], v{V_T5} offset:{ks*512+64}")
    g.label("L_pldone")
    g(f"""s_cmp_eq_u32 s{S_WAVE}, 0
          s_cbranch_scc0 L_t5
          v_cmp_gt_u32 s[{S_A}:{S_A+1}], 14, v{V_N}
          v_lshlrev_b32 v{V_T0}, 9, v{V_G}
          v_lshl_add_u32 v{V_T0}, v{V_N}, 2, v{V_T0}
          v_add_u32 v{V_T0}, {O_IN2}, v{V_T0}
          v_lshlrev_b32 v{V_T5}, 1, v{V_N}
          s_lshl_b32 s{S_Dx}, s{S_WG}, 5
          s_add_u32 s{S_Dx}, s{S_Dx}, {WS_H:#x}
          v_lshlrev_b32 v{V_X}, 16, v{V_X}""")
    g.label("L_p2")
    for u in range(8):
        g(f"buffer_load_dword v{16+u}, v{V_T0}, {S4(S_WS)}, s{S_Cx} offen offset:{u*64} sc1")
    g(f"""s_waitcnt vmcnt(0)
          v_max3_u32 v{V_T1}, v16, v17, v18
          v_max3_u32 v{V_T2}, v19, v20, v21
          v_max3_u32 v{V_T1}, v{V_T1}, v22, v23
          v_max_u32 v{V_T1}, v{V_T1}, v{V_T2}
          v_cmp_eq_u32 vcc, -1, v{V_T1}
          v_add_f32 v16, v16, v17
          v_add_f32 v18, v18, v19
          v_add_f32 v20, v20, v21
          v_add_f32 v22, v22, v23
          s_and_b64 vcc, vcc, s[{S_A}:{S_A+1}]""")
    poll_branch(g, "L_p2", "scc0")
    g(f"""v_add_f32 v16, v16, v18
          v_add_f32 v20, v20, v22
          v_add_f32 v16, v16, v20""")
    xreduce(g, 16, 18, "v_add_f32", [16, 32])
    bf16_round(g, 16, 16)
    g(f"""v_add_f32 v16, v16, v{V_X}
          s_nop 1
          v_mov_b32_dpp v17, v16 quad_perm:[1,1,3,3] row_mask:0xf bank_mask:0xf
          v_cvt_pk_bf16_f32 v16, v16, v17""")
    canon(g, 16)
    g(f"""s_mov_b64 exec, 0x1555
          buffer_store_dword v16, v{V_T5}, {S4(S_WS)}, s{S_Dx} offen sc1
          s_mov_b64 exec, -1""")
    g.label("L_t5")
    g.stamp(10)
    g(f"""s_cmp_lt_u32 s{S_CS}, 56
          s_cbranch_scc1 L_t8
          s_cmp_ge_u32 s{S_J}, 112
          s_cbranch_scc1 L_end""")
    GATE = True
    g(f"""v_lshlrev_b32 v{V_M}, 4, v0
          v_and_b32 v{V_T1}, 1, v0
          v_cmp_eq_u32 s[{S_EX}:{S_EX+1}], 1, v{V_T1}
          s_mul_i32 s{S_A}, s{S_WAVE}, 896
          s_add_u32 s{S_A}, s{S_A}, {L_HN}
          v_bfe_u32 v{V_T3}, v0, 1, 3
          v_lshlrev_b32 v{V_T3}, 2, v{V_T3}
          v_add_u32 v{V_T3}, v{V_T3}, v{V_G}
          v_mul_u32_u24 v{V_T3}, 28, v{V_T3}
          v_lshl_add_u32 v{V_L}, v{V_T1}, 4, v{V_T3}
          v_add_u32 v{V_L}, s{S_A}, v{V_L}
          s_mov_b32 s{S_Cx}, {WS_H:#x}
          v_and_b32 v{V_AL}, 7, v{V_LANE}
          v_mul_u32_u24 v{V_AL}, 896, v{V_AL}
          v_lshl_add_u32 v{V_AL}, v{V_G}, 4, v{V_AL}
          v_add_u32 v{V_AL}, {L_HN}, v{V_AL}
          s_barrier""")
    g.label("L_p3")
    g(f"""buffer_load_dwordx4 v[16:19], v{V_M}, {S4(S_WS)}, s{S_Cx} offen sc1
          s_waitcnt vmcnt(0)
          v_cndmask_b32 v19, v19, 0, s[{S_EX}:{S_EX+1}]
          v_max3_u32 v{V_T3}, v16, v17, v18
          v_max_u32 v{V_T3}, v{V_T3}, v19
          v_cmp_eq_u32 vcc, -1, v{V_T3}""")
    for i in range(4):
        g(f"v_lshlrev_b32 v{24+2*i}, 16, v{16+i}")
        g(f"v_and_b32 v{25+2*i}, s{S_HIM}, v{16+i}")
    poll_branch(g, "L_p3")
    g.stamp(11)
    g(f"""v_pk_add_f32 v[{V_T0}:{V_T1}], v[24:25], v[26:27]
          v_pk_add_f32 v[{V_T2}:{V_T3}], v[28:29], v[30:31]
          v_pk_add_f32 v[{V_T0}:{V_T1}], v[{V_T0}:{V_T1}], v[{V_T2}:{V_T3}]
          v_add_f32 v{V_T0}, v{V_T0}, v{V_T1}""")
    xreduce(g, V_T0, V_T1, "v_add_f32", [1, 2, 4, 8, 16, 32])
    g(f"""v_mul_f32 v{V_T4}, {f32bits(1.0/448.0):#x}, v{V_T0}
          v_mul_f32 v{V_T5}, {f32bits(1.0/448.0):#x}, v{V_T0}""")
    for i in range(4):
        g(f"v_pk_add_f32 v[{24+2*i}:{25+2*i}], v[{24+2*i}:{25+2*i}], v[{V_T4}:{V_T5}] neg_lo:[0,1] neg_hi:[0,1]")
    g(f"""v_cndmask_b32 v30, v30, 0, s[{S_EX}:{S_EX+1}]
          v_cndmask_b32 v31, v31, 0, s[{S_EX}:{S_EX+1}]
          v_pk_mul_f32 v[{V_T0}:{V_T1}], v[24:25], v[24:25]
          v_pk_mul_f32 v[{V_T2}:{V_T3}], v[26:27], v[26:27]
          v_pk_fma_f32 v[{V_T0}:{V_T1}], v[28:29], v[28:29], v[{V_T0}:{V_T1}]
          v_pk_fma_f32 v[{V_T2}:{V_T3}], v[30:31], v[30:31], v[{V_T2}:{V_T3}]""")
    ln_finish(g, [1, 2, 4, 8, 16, 32])
    ln_apply(g, 16, 4, 32)
    g(f"""ds_write2_b32 v{V_L}, v16, v17 offset0:0 offset1:1
          ds_write_b32 v{V_L}, v18 offset:8
          s_andn2_b64 exec, exec, s[{S_EX}:{S_EX+1}]
          ds_write_b32 v{V_L}, v19 offset:12
          s_mov_b64 exec, -1
          s_lshl_b32 s{S_A}, s{S_J}, 8
          s_add_u32 s{S_A}, s{S_A}, {WS_HH:#x}
          v_lshlrev_b32 v{V_T0}, 5, v{V_N}
          v_lshl_add_u32 v{V_T0}, v{V_G}, 3, v{V_T0}
          s_waitcnt lgkmcnt(0)
          s_barrier""")
    g.stamp(12)
    g(f"""s_cmp_eq_u32 s{S_WAVE}, 7
          s_cbranch_scc0 L_end""")
    for ks in range(14):
        g(f"ds_read_b128 {vr(16+4*ks)}, v{V_AL} offset:{ks*64}")
    for ks in range(14):
        g(f"s_waitcnt lgkmcnt({13-ks})")
        c0 = "0" if ks == 0 else "v[80:83]"
        c1 = "0" if ks == 0 else "v[84:87]"
        g(f"v_mfma_f32_16x16x32_bf16 v[80:83], {vr(R+4*ks)}, {vr(16+4*ks)}, {c0}")
        g(f"v_mfma_f32_16x16x32_bf16 v[84:87], {vr(R+56+4*ks)}, {vr(16+4*ks)}, {c1}")
    g("s_mov_b32 exec_lo, 0x00ff00ff")
    g("s_mov_b32 exec_hi, 0x00ff00ff")
    g.nop(6)
    for r in range(8):
        bf16_round(g, 80+r, 80+r)
    g(f"""v_pk_mul_f32 v[80:81], v[80:81], v[84:85]
          v_pk_mul_f32 v[82:83], v[82:83], v[86:87]
          v_cvt_pk_bf16_f32 v16, v80, v81
          v_cvt_pk_bf16_f32 v17, v82, v83""")
    canon(g, 16); canon(g, 17)
    g(f"""buffer_store_dwordx2 v[16:17], v{V_T0}, {S4(S_WS)}, s{S_A} offen sc1
          s_mov_b64 exec, -1""")
    g.stamp(13)
    g("s_branch L_end")
    g.label("L_t8")
    g(f"""s_lshl_b32 s{S_A}, s{S_CS}, 3
          v_and_b32 v{V_T2}, 7, v{V_LANE}
          v_add_u32 v{V_T2}, s{S_A}, v{V_T2}
          v_mul_u32_u24 v{V_T3}, 4682, v{V_T2}
          v_lshrrev_b32 v{V_T3}, 16, v{V_T3}
          v_mul_u32_u24 v{V_T4}, 14, v{V_T3}
          v_sub_u32 v{V_T4}, v{V_T2}, v{V_T4}
          v_and_b32 v{V_M}, 3, v{V_T3}
          v_lshlrev_b32 v{V_M}, 3, v{V_M}
          v_lshrrev_b32 v{V_T3}, 2, v{V_T3}
          v_add_u32 v{V_M}, v{V_M}, v{V_T3}
          v_lshlrev_b32 v{V_M}, 5, v{V_M}
          v_lshl_add_u32 v{V_M}, v{V_T4}, 1, v{V_M}
          v_and_b32 v{V_T3}, 1, v{V_G}
          v_lshl_add_u32 v{V_M}, v{V_T3}, 12, v{V_M}
          s_mov_b32 s{S_Cx}, {WS_H:#x}
          v_and_b32 v{V_T0}, 7, v{V_LANE}
          v_lshlrev_b32 v{V_T0}, 5, v{V_T0}
          v_lshrrev_b32 v{V_T1}, 1, v{V_G}
          v_lshl_add_u32 v{V_T0}, v{V_T1}, 8, v{V_T0}
          v_and_b32 v{V_T1}, 1, v{V_G}
          v_lshl_add_u32 v{V_T0}, v{V_T1}, 4, v{V_T0}
          s_mul_i32 s{S_A}, s{S_WAVE}, {7*512}
          s_add_u32 s{S_A}, s{S_A}, {WS_HH:#x}
          v_lshlrev_b32 v{V_T1}, 4, v{V_LANE}
          s_lshl_b32 s{S_Bx}, s{S_WAVE}, 9
          s_add_u32 s{S_Bx}, s{S_Bx}, {L_WO}
          v_add_u32 v{V_T1}, s{S_Bx}, v{V_T1}
          v_mul_u32_u24 v{V_L}, {4*896}, v{V_G}
          v_lshl_add_u32 v{V_L}, v{V_T2}, 1, v{V_L}""")
    srd(g, S_T, P_OUT, 7168)
    g(f"""s_cmp_eq_u32 s{S_WAVE}, 0
          s_cbranch_scc0 L_ph_ok
          v_and_b32 v{V_NMC}, 0xfffffffc, v{V_M}
          v_and_b32 v{V_AL}, 2, v{V_M}
          v_lshlrev_b32 v{V_AL}, 3, v{V_AL}""")
    g.label("L_ph")
    for r in range(4):
        g(f"buffer_load_dword v{56+r}, v{V_NMC}, {S4(S_WS)}, s{S_Cx} offen offset:{r*1024} sc1")
    g(f"""s_waitcnt vmcnt(0)
          v_max3_u32 v{V_T2}, v56, v57, v58
          v_max_u32 v{V_T2}, v{V_T2}, v59
          v_cmp_eq_u32 vcc, -1, v{V_T2}""")
    poll_branch(g, "L_ph")
    g("s_barrier")
    g.label("L_p4")
    for ks in range(7):
        g(f"buffer_load_dwordx4 {vr(16+4*ks)}, v{V_T0}, {S4(S_WS)}, s{S_A} offen offset:{ks*512} sc1")
    g("s_waitcnt vmcnt(0)")
    g(f"v_max3_u32 v{V_T2}, v16, v17, v18")
    for i in range(19, 44, 2):
        if i + 1 <= 43:
            g(f"v_max3_u32 v{V_T2}, v{V_T2}, v{i}, v{i+1}")
        else:
            g(f"v_max_u32 v{V_T2}, v{V_T2}, v{i}")
    g(f"v_cmp_eq_u32 vcc, -1, v{V_T2}")
    poll_branch(g, "L_p4")
    g.stamp(14)
    g("s_waitcnt lgkmcnt(0)")
    for ks in range(7):
        c = "0" if ks == 0 else "v[48:51]"
        g(f"v_mfma_f32_16x16x32_bf16 v[48:51], {vr(16+4*ks)}, {vr(R+4*ks)}, {c}")
    g("s_mov_b32 exec_hi, 0")
    g.nop(8)
    g(f"""ds_write_b128 v{V_T1}, v[48:51]
          s_mov_b64 exec, -1
          v_lshlrev_b32 v{V_T0}, 4, v{V_LANE}
          s_waitcnt lgkmcnt(0)
          s_barrier
          s_cmp_eq_u32 s{S_WAVE}, 0
          s_cbranch_scc0 L_end""")
    for w in range(8):
        g(f"ds_read_b128 {vr(16+4*w)}, v{V_T0} offset:{L_WO+w*512}")
    g("s_mov_b64 exec, 0x00ff00ff")
    g("s_waitcnt lgkmcnt(0)")
    for w in range(1, 8):
        g(f"v_pk_add_f32 v[16:17], v[16:17], v[{16+4*w}:{17+4*w}]")
        g(f"v_pk_add_f32 v[18:19], v[18:19], v[{18+4*w}:{19+4*w}]")
    for r in range(4):
        bf16_round(g, 16+r, 16+r)
        g(f"v_lshrrev_b32 v{56+r}, v{V_AL}, v{56+r}")
        g(f"v_lshlrev_b32 v{56+r}, 16, v{56+r}")
        g(f"v_add_f32 v{16+r}, v{16+r}, v{56+r}")
        g(f"v_cvt_pk_bf16_f32 v{16+r}, v{16+r}, v{16+r}")
        g(f"buffer_store_short v{16+r}, v{V_L}, {S4(S_T)}, 0 offen offset:{r*896}")

DOC = """
"""
def emit(path, kname, debug=0):
    hdr = open("cdna_kernels/" + NAME + ".s.ref").read().split("\n")
    out = []
    for line in hdr:
        if line.startswith("; @launch"):
            out.append(f"; @launch grid=(256,1,1) block=(512,1,1) lds={LDS_BYTES}")
            out.extend(DOC.strip().split("\n"))
            break
        out.append(line)
    out.append('.amdgcn_target "amdgcn-amd-amdhsa--gfx950"')
    out.append(".text")
    out.append(f".globl {kname}")
    out.append(".p2align 8")
    out.append(f".type {kname},@function")
    out.append(f"{kname}:")
    out += gen(debug)
    out.append('.section .rodata,"a"')
    out.append(".p2align 6")
    out.append(f".amdhsa_kernel {kname}")
    out.append("""  .amdhsa_next_free_vgpr 256
  .amdhsa_next_free_sgpr 102
  .amdhsa_accum_offset 256
  .amdhsa_group_segment_fixed_size 0
  .amdhsa_kernarg_size 96
  .amdhsa_user_sgpr_count 2
  .amdhsa_user_sgpr_kernarg_segment_ptr 1
  .amdhsa_system_sgpr_workgroup_id_x 1
  .amdhsa_float_denorm_mode_32 3
.end_amdhsa_kernel""")
    open(path, "w").write("\n".join(out) + "\n")

if __name__ == "__main__":
    debug = int(sys.argv[1]) if len(sys.argv) > 1 else 0
    path = sys.argv[2] if len(sys.argv) > 2 else "cdna_kernels/" + NAME + ".s"
    emit(path, NAME + "_kernel", debug)
```

```python
import sys, struct, os, re
STATIC = int(os.environ.get('STATIC', '1'))
NOW = int(os.environ.get('NOW', '0'))

NAME = "sequential_preLN__gqa_block_cached__glu_gated_bilinear__decode"
def f32bits(x): return struct.unpack("<I", struct.pack("<f", x))[0]

WS_Q   = 0x000000
WS_IN  = 0x100000
O_GO, O_IN2 = 2176, 2304
WS_H   = 0x400000
WS_HH  = 0x410000
WS_TC  = 0x420000
WS_DBG = 0x1000000
WS_BYTES = 0x2000000
L_WO  = 0
L_WD  = 114688
L_SCR = 143360
L_CB  = L_SCR
L_HIMG = L_SCR
L_HN  = L_SCR + 7168
L_QP  = L_SCR + 16384
L_PART = L_SCR + 14336
L_STAT = L_SCR + 16384
L_OF  = L_SCR + 16512
L_P2  = L_SCR + 16768
L_QIMG = L_SCR + 18432
L_FLAG = L_SCR + 19456
L_HHL = L_SCR + 19520
LDS_BYTES = 163840
C_SC = 1.4426950408889634 / 16.0

STAMP_SLOTS = [4,5,5,5,63,89,92,93,94,95,96,97,98,99,100,101]
S_DRY = 6
S_WSV = 47
class G:
    def __init__(self):
        self.L = []; self.prof = 0
    def __call__(self, s):
        for line in s.strip().split("\n"):
            line = line.strip()
            if not line: continue
            if getattr(self, "dry", False):
                D = f"s[{S_DRY}:{S_DRY+1}]"
                isv = line.startswith(("buffer_", "global_"))
                if isv and not self.invm:
                    self.nd += 1; self.L.append(f"  s_cbranch_execz L_dv{self.nd}"); self.invm = True
                elif not isv and self.invm:
                    self.L.append(f"L_dv{self.nd}:"); self.invm = False
                if line == "s_barrier":
                    self.nd += 1
                    self.L += [f"  s_cbranch_execz L_dv{self.nd}", "  s_barrier", f"L_dv{self.nd}:"]
                    continue
                if line == "s_mov_b64 exec, -1": line = f"s_mov_b64 exec, {D}"
                else:
                    m = re.match(r"s_mov_b64 exec, (.+)$", line)
                    if m: line = f"s_and_b64 exec, {D}, {m.group(1)}"
                    m = re.match(r"s_mov_b32 exec_(lo|hi), (.+)$", line)
                    if m and m.group(2) != "0": line = f"s_and_b32 exec_{m.group(1)}, s{S_DRY}, {m.group(2)}"
            self.L.append("  " + line)
    def closevm(self):
        if getattr(self, "dry", False) and self.invm:
            self.L.append(f"L_dv{self.nd}:"); self.invm = False
    def label(self, l):
        self.closevm(); self.L.append(l + ":")
    def nop(self, n=1):
        self.closevm()
        while n > 0:
            k = min(n, 16); self.L.append(f"  s_nop {k-1}"); n -= k
    def stamp(self, i):
        self.closevm()
        if self.prof:
            self.L.append("  s_memrealtime s[90:91]")
            self.L.append("  s_waitcnt lgkmcnt(0)")
            self.L.append(f"  s_mov_b32 s{STAMP_SLOTS[i]}, s90")

def vr(a, n=4): return f"v[{a}:{a+n-1}]"
def S4(s): return f"s[{s}:{s+3}]"

V_LANE, V_N, V_G = 1, 2, 3
V_K0, V_K1, V_V0, V_V1 = 4, 5, 6, 7
V_IN1, V_IN2 = 8, 9
V_T0, V_T1, V_T2, V_T3, V_T4, V_T5 = 10, 11, 12, 13, 14, 15
V_Q = 16; V_ACC = 48; V_S = 56; V_P = 64; V_GU = 68
V_M, V_L, V_AL, V_NMC = 76, 77, 78, 79
V_A = 80; V_B = 112
R_K0, R_K1, R_V0, R_V1 = 128, 160, 192, 224
S_WG, S_WAVE = 2, 3
S_K, S_V, S_WS, S_T, S_T2 = 8, 12, 16, 20, 24
S_OFF, S_BASE = 28, 29
S_HKV, S_B, S_S, S_R = 30, 31, 32, 33
S_C, S_SELLO, S_SELHI = 34, 35, 60
P_X, P_K, P_V, P_WQ, P_WO, P_BX, P_WG, P_WU, P_WD, P_OUT, P_DBG, P_WS = [36 + 2*i for i in range(12)]
S_MASK = 64
S_A, S_Bx, S_Cx, S_Dx = 80, 81, 82, 83
S_EX = 84
S_HIM, S_I, S_POLL = 86, 87, 88
S_J, S_CS = 61, 62
S_QP = 29 + 0
S_TC = P_K
S_NEXT, S_NEXT2 = P_V, P_V + 1

def srd(g, s, p, nbytes):
    g(f"""s_mov_b32 s{s}, s{p}
          s_and_b32 s{s+1}, s{p+1}, 0xffff
          s_mov_b32 s{s+2}, {nbytes}
          s_mov_b32 s{s+3}, 0x20000""")

def bf16_round(g, d, s):
    g(f"v_cvt_pk_bf16_f32 v{d}, v{s}, v{s}")
    g(f"v_lshlrev_b32 v{d}, 16, v{d}")

def xreduce(g, v, t, op, steps):
    for st in steps:
        if st in (1, 2, 4, 8):
            mod = {1: "quad_perm:[1,0,3,2]", 2: "quad_perm:[2,3,0,1]", 4: "row_ror:4", 8: "row_ror:8"}[st]
            g.nop(2); g(f"{op}_dpp v{v}, v{v}, v{v} {mod} row_mask:0xf bank_mask:0xf")
        else:
            g(f"v_mov_b32 v{t}, v{v}"); g.nop(2)
            g(f"v_permlane{st}_swap_b32 v{v}, v{t}"); g.nop(1)
            g(f"{op} v{v}, v{v}, v{t}")

def poll_branch(g, lab, cond="vccz"):
    g(f"""s_cbranch_{cond} {lab}_ok
          s_sub_u32 s{S_POLL}, s{S_POLL}, 1
          s_cmp_eq_u32 s{S_POLL}, 0
          s_cbranch_scc1 L_exit
          s_branch {lab}""")
    g.label(lab + "_ok")

def canon(g, v, t=None):
    g(f"v_min_u32 v{v}, 0xfffffffe, v{v}")

def k_loads(g, which):
    vo, r = (V_K0, R_K0) if which == 0 else (V_K1, R_K1)
    for j in range(8):
        g(f"buffer_load_dwordx4 {vr(r+4*j)}, v{vo}, {S4(S_K)}, s{S_OFF} offen offset:{j*64} nt")

def v_loads(g, half):
    r = R_V0 if half == 0 else R_V1
    for j in range(8):
        vo = V_V0 if j < 4 else V_V1
        g(f"buffer_load_dwordx4 {vr(r+4*j)}, v{vo}, {S4(S_V)}, s{S_OFF} offen offset:{(j&3)*512+half*256} nt")

def tile_body(g, nwait, loads):
    for t, r in ((0, R_K0), (1, R_K1)):
        g(f"s_waitcnt vmcnt({nwait[t]})")
        s = V_S + 4*t
        for j in range(8):
            c = "0" if j == 0 else vr(s)
            g(f"v_mfma_f32_16x16x32_bf16 {vr(s)}, {vr(r+4*j)}, {vr(V_Q+4*j)}, {c}")
        if loads: k_loads(g, t)
        elif t == 1: g.nop(8)
    S = [V_S + i for i in range(8)]
    for i in range(4):
        g(f"v_cvt_pk_bf16_f32 v{V_P+i}, v{S[2*i]}, v{S[2*i+1]}")
    for i in range(4):
        g(f"v_lshlrev_b32 v{S[2*i]}, 16, v{V_P+i}")
        g(f"v_and_b32 v{S[2*i+1]}, s{S_HIM}, v{V_P+i}")
    g(f"""v_max3_f32 v{V_T0}, v{S[0]}, v{S[1]}, v{S[2]}
          v_max3_f32 v{V_T1}, v{S[3]}, v{S[4]}, v{S[5]}
          v_max3_f32 v{V_T0}, v{V_T0}, v{S[6]}, v{S[7]}
          v_max_f32 v{V_T0}, v{V_T0}, v{V_T1}""")
    xreduce(g, V_T0, V_T1, "v_max_f32", [16, 32])
    g(f"""v_max_f32 v{V_T0}, v{V_T0}, v{V_M}
          v_sub_f32 v{V_AL}, v{V_M}, v{V_T0}
          v_mul_f32 v{V_AL}, s{S_C}, v{V_AL}
          v_exp_f32 v{V_AL}, v{V_AL}
          v_mov_b32 v{V_M}, v{V_T0}
          v_mul_f32 v{V_NMC}, s{S_C}, v{V_T0}""")
    for i in range(8):
        g(f"v_fma_f32 v{S[i]}, v{S[i]}, s{S_C}, -v{V_NMC}")
    for i in range(8):
        g(f"v_exp_f32 v{S[i]}, v{S[i]}")
    for r in range(8):
        qp = "[0,0,2,2]" if (r & 1) == 0 else "[1,1,3,3]"
        g(f"v_mul_f32_dpp v{V_ACC+r}, v{V_AL}, v{V_ACC+r} quad_perm:{qp} row_mask:0xf bank_mask:0xf")
    for i in range(4):
        g(f"v_cvt_pk_bf16_f32 v{V_P+i}, v{S[2*i]}, v{S[2*i+1]}")
    g(f"""v_add_f32 v{V_T0}, v{S[0]}, v{S[1]}
          v_add_f32 v{V_T1}, v{S[2]}, v{S[3]}
          v_add_f32 v{V_T2}, v{S[4]}, v{S[5]}
          v_add_f32 v{V_T3}, v{S[6]}, v{S[7]}
          v_add_f32 v{V_T0}, v{V_T0}, v{V_T1}
          v_add_f32 v{V_T2}, v{V_T2}, v{V_T3}
          v_add_f32 v{V_T0}, v{V_T0}, v{V_T2}
          v_fma_f32 v{V_L}, v{V_L}, v{V_AL}, v{V_T0}""")
    for e in range(8):
        for i in range(4):
            g(f"v_cndmask_b32 v{V_A+4*e+i}, 0, v{V_P+i}, s[{S_MASK+2*e}:{S_MASK+2*e+1}]")
    for half, r in ((0, R_V0), (1, R_V1)):
        g(f"s_waitcnt vmcnt({nwait[2+half]})")
        acc = V_ACC + 4*half
        def perms(e):
            b = V_B + 4*(e & 3); q = e >> 1
            sel = S_SELLO if (e & 1) == 0 else S_SELHI
            for p in range(4):
                g(f"v_perm_b32 v{b+p}, v{r+4*(2*p+1)+q}, v{r+4*(2*p)+q}, s{sel}")
        perms(0); perms(1)
        for e in range(8):
            if e + 2 < 8: perms(e + 2)
            else: g.nop(1)
            g(f"v_mfma_f32_16x16x32_bf16 {vr(acc)}, {vr(V_A+4*e)}, {vr(V_B+4*(e&3))}, {vr(acc)}")
        if loads: v_loads(g, half)
    if not loads: g.nop(8)

def ln_finish(g, steps):
    g(f"""v_pk_add_f32 v[{V_T0}:{V_T1}], v[{V_T0}:{V_T1}], v[{V_T2}:{V_T3}]
          v_add_f32 v{V_T0}, v{V_T0}, v{V_T1}""")
    xreduce(g, V_T0, V_T1, "v_add_f32", steps)
    g(f"v_mul_f32 v{V_T0}, {f32bits(1.0/448.0):#x}, v{V_T0}")
    bf16_round(g, V_T0, V_T0)
    g(f"v_add_f32 v{V_T0}, {f32bits(1e-5):#x}, v{V_T0}")
    bf16_round(g, V_T0, V_T0)
    g(f"v_sqrt_f32 v{V_T0}, v{V_T0}")
    bf16_round(g, V_T4, V_T4)
    bf16_round(g, V_T0, V_T0)
    g(f"""v_rcp_f32 v{V_T2}, v{V_T0}
          v_mov_b32 v{V_T5}, v{V_T4}
          v_mov_b32 v{V_T1}, v{V_T0}
          v_mov_b32 v{V_T3}, v{V_T2}""")

def ln_stats(g, XR, ndw, steps, T):
    def unp(i, t):
        g(f"v_lshlrev_b32 v{t}, 16, v{XR+i}")
        g(f"v_and_b32 v{t+1}, s{S_HIM}, v{XR+i}")
    unp(0, V_T0); unp(1, V_T2)
    for i in range(2, ndw):
        t = T + 2*(i & 1); a = V_T0 + 2*(i & 1)
        unp(i, t)
        g(f"v_pk_add_f32 v[{a}:{a+1}], v[{a}:{a+1}], v[{t}:{t+1}]")
    g(f"""v_pk_add_f32 v[{V_T0}:{V_T1}], v[{V_T0}:{V_T1}], v[{V_T2}:{V_T3}]
          v_add_f32 v{V_T0}, v{V_T0}, v{V_T1}""")
    xreduce(g, V_T0, V_T1, "v_add_f32", steps)
    g(f"""v_mul_f32 v{V_T4}, {f32bits(1.0/448.0):#x}, v{V_T0}
          v_mul_f32 v{V_T5}, {f32bits(1.0/448.0):#x}, v{V_T0}
          v_mov_b32 v{V_T0}, 0
          v_mov_b32 v{V_T1}, 0
          v_mov_b32 v{V_T2}, 0
          v_mov_b32 v{V_T3}, 0""")
    for i in range(ndw):
        t = T + 2*(i & 1); a = V_T0 + 2*(i & 1)
        unp(i, t)
        g(f"v_pk_add_f32 v[{t}:{t+1}], v[{t}:{t+1}], v[{V_T4}:{V_T5}] neg_lo:[0,1] neg_hi:[0,1]")
        g(f"v_pk_fma_f32 v[{a}:{a+1}], v[{t}:{t+1}], v[{t}:{t+1}], v[{a}:{a+1}]")
    ln_finish(g, steps)

def ln_apply(g, X, ndw, T):
    for i in range(ndw):
        a, c, e = T, T+2, T+4
        g(f"""v_lshlrev_b32 v{a}, 16, v{X+i}
              v_and_b32 v{a+1}, s{S_HIM}, v{X+i}
              v_pk_add_f32 v[{a}:{a+1}], v[{a}:{a+1}], v[{V_T4}:{V_T5}] neg_lo:[0,1] neg_hi:[0,1]
              v_cvt_pk_bf16_f32 v{a+1}, v{a}, v{a+1}
              v_lshlrev_b32 v{a}, 16, v{a+1}
              v_and_b32 v{a+1}, s{S_HIM}, v{a+1}
              v_pk_mul_f32 v[{c}:{c+1}], v[{a}:{a+1}], v[{V_T2}:{V_T3}]
              v_pk_fma_f32 v[{e}:{e+1}], v[{c}:{c+1}], v[{V_T0}:{V_T1}], v[{a}:{a+1}] neg_lo:[1,0,0] neg_hi:[1,0,0]
              v_pk_fma_f32 v[{c}:{c+1}], v[{e}:{e+1}], v[{V_T2}:{V_T3}], v[{c}:{c+1}]
              v_cvt_pk_bf16_f32 v{X+i}, v{c}, v{c+1}""")

def dma(g, voff, srdreg, soff, m0reg, fl=""):
    g(f"""s_mov_b32 m0, s{m0reg}
          s_add_u32 s{m0reg}, s{m0reg}, 1024
          buffer_load_dwordx4 v{voff}, {S4(srdreg)}, s{soff} offen {fl} lds""")


def small_dma(g):
    g(f"s_sub_u32 s{S_Cx}, s{S_WAVE}, 4")
    g(f"s_cmp_ge_u32 s{S_CS}, 56")
    g(f"s_cbranch_scc1 L_nowd")
    srd(g, S_T, P_WD, 1792*448*2)
    g(f"""v_mul_u32_u24 v{V_T0}, 896, v{V_LANE}
          s_mul_i32 s{S_A}, s{S_Cx}, {7*64*896}
          s_lshl_b32 s{S_Bx}, s{S_CS}, 4
          s_add_u32 s{S_A}, s{S_A}, s{S_Bx}
          s_mul_i32 s{S_Bx}, s{S_Cx}, 7168
          s_add_u32 s{S_Bx}, s{S_Bx}, {L_WD}""")
    for i in range(7):
        dma(g, V_T0, S_T, S_A, S_Bx, "nt" if NTF & 4 else "")
        g(f"s_add_u32 s{S_A}, s{S_A}, {64*896}")
    g.label(f"L_nowd")
    g(f"""s_cmp_ge_u32 s{S_J}, 112
          s_cbranch_scc1 L_nogu
          s_cmp_ge_u32 s{S_Cx}, 2
          s_cselect_b32 s{S_T}, s{P_WU}, s{P_WG}
          s_cselect_b32 s{S_T+1}, s{P_WU+1}, s{P_WG+1}
          s_and_b32 s{S_T+1}, s{S_T+1}, 0xffff
          s_mov_b32 s{S_T+2}, {448*1792*2}
          s_mov_b32 s{S_T+3}, 0x20000
          v_lshrrev_b32 v{V_T0}, 1, v{V_LANE}
          v_mul_u32_u24 v{V_T0}, 3584, v{V_T0}
          v_and_b32 v{V_T1}, 1, v{V_LANE}
          v_lshl_add_u32 v{V_T0}, v{V_T1}, 4, v{V_T0}
          s_and_b32 s{S_A}, s{S_Cx}, 1
          s_mul_i32 s{S_A}, s{S_A}, {224*3584}
          s_lshl_b32 s{S_Bx}, s{S_J}, 5
          s_add_u32 s{S_A}, s{S_A}, s{S_Bx}
          s_mul_i32 s{S_Bx}, s{S_Cx}, 7168
          s_add_u32 s{S_Bx}, s{S_Bx}, {L_WD}""")
    for i in range(7):
        dma(g, V_T0, S_T, S_A, S_Bx, "nt" if NTF & 4 else "")
        g(f"s_add_u32 s{S_A}, s{S_A}, {32*3584}")
    g.label(f"L_nogu")

def wo_dma(g):
    g(f"s_sub_u32 s{S_Cx}, s{S_WAVE}, 4")
    srd(g, S_T, P_WO, 4096*448*2)
    g(f"""v_lshrrev_b32 v{V_T0}, 3, v{V_LANE}
          v_bfe_u32 v{V_T1}, v{V_LANE}, 1, 2
          v_lshrrev_b32 v{V_T2}, 4, v{V_LANE}
          v_xor_b32 v{V_T1}, v{V_T1}, v{V_T2}
          v_mul_u32_u24 v{V_T0}, 896, v{V_T0}
          v_and_b32 v{V_T2}, 1, v{V_LANE}
          v_lshl_add_u32 v{V_T0}, v{V_T2}, 4, v{V_T0}
          v_lshl_add_u32 v{V_T2}, v{V_T1}, 5, v{V_T0}
          v_xor_b32 v{V_T1}, 2, v{V_T1}
          v_lshl_add_u32 v{V_T3}, v{V_T1}, 5, v{V_T0}
          s_lshl_b32 s{S_A}, s{S_I}, 7
          s_lshl_b32 s{S_Bx}, s{S_Cx}, 5
          s_add_u32 s{S_A}, s{S_A}, s{S_Bx}
          s_mul_i32 s{S_A}, s{S_A}, 896
          s_mul_i32 s{S_Bx}, s{S_Cx}, {28*1024}""")
    for kg in range(4):
        for cb7 in range(7):
            dma(g, V_T2 + (kg & 1), S_T, S_A, S_Bx, "nt" if NTF & 2 else "")
            g(f"s_add_u32 s{S_A}, s{S_A}, {128 if cb7 < 6 else 8*896-6*128}")

STAG = int(os.environ.get("STAG", "0"))
BAL = int(os.environ.get("BAL", "1"))
BALS = int(os.environ.get("BALS", "3"))
DRYAT = int(os.environ.get("DRYAT", "9"))
NTF = int(os.environ.get("NTF", "1"))
TRS = int(os.environ.get("TRS", "0"))
TRW = int(os.environ.get("TRW", "0"))
WARM = int(os.environ.get("WARM", "0"))
WARM0 = int(os.environ.get("WARM0", "0"))
NB1 = 16
def wait_flag(g, tag, off, val):
    g(f"v_mov_b32 v{V_T0}, {L_FLAG}")
    g.label(f"L_wf{tag}")
    g(f"""ds_read_b32 v{V_T1}, v{V_T0} offset:{off}
          s_waitcnt lgkmcnt(0)
          v_cmp_gt_u32 vcc, {val}, v{V_T1}""")
    poll_branch(g, f"L_wf{tag}")

def flag_add(g, off):
    g(f"""v_mov_b32 v{V_T0}, {L_FLAG}
          v_mov_b32 v{V_T1}, 1
          s_mov_b64 exec, 1
          ds_add_u32 v{V_T0}, v{V_T1} offset:{off}
          s_mov_b64 exec, -1""")

def prefetch(g):
    k_loads(g, 0); k_loads(g, 1); v_loads(g, 0); v_loads(g, 1)

def lds_prefetch(g):
    g(f"""s_add_u32 s{S_A}, s{S_OFF}, {8*16384}
          s_lshl_b32 s{S_Bx}, s{S_WAVE}, 15""")
    for which in range(2):
        vo = V_K0 if which == 0 else V_K1
        for j in range(8):
            g(f"""s_mov_b32 m0, s{S_Bx}
                  s_add_u32 s{S_Bx}, s{S_Bx}, {1024-64 if j < 7 else 1024+7*64}
                  buffer_load_dwordx4 v{vo}, {S4(S_K)}, s{S_A} offen offset:{j*64} nt lds""")
    for half in range(2):
        for j in range(8):
            vo = V_V0 if j < 4 else V_V1
            off = (j & 3)*512 + half*256
            idx = half*8 + j + 1
            noff = ((idx & 3)*512 + (idx >> 3)*256) if idx < 16 else 0
            g(f"""s_mov_b32 m0, s{S_Bx}
                  s_add_u32 s{S_Bx}, s{S_Bx}, {(1024 + off - noff) & 0xffffffff:#x}
                  buffer_load_dwordx4 v{vo}, {S4(S_V)}, s{S_A} offen offset:{off} nt lds""")

def cert(g):
    g(f"s_cmp_eq_u32 s{S_WAVE}, 7")
    g("s_cbranch_scc0 L_nocert")
    srd(g, S_T, P_DBG, 256)
    g(f"v_lshlrev_b32 v{V_T0}, 5, v{V_LANE}")
    g("s_mov_b64 exec, 0xff")
    g.label("L_cert")
    g(f"""buffer_load_dword v{V_T1}, v{V_T0}, {S4(S_T)}, 0 offen sc1
          s_waitcnt vmcnt(0)
          v_cmp_gt_u32 vcc, 32, v{V_T1}""")
    poll_branch(g, "L_cert")
    g("s_mov_b64 exec, -1")
    g.label("L_nocert")

def q_gather(g):
    g(f"""s_lshl_b32 s{S_A}, s{S_WG}, 13
          s_add_u32 s{S_A}, s{S_A}, {WS_IN+O_GO:#x}
          s_add_u32 s{S_Cx}, s{P_WS}, s{S_A}
          s_addc_u32 s{S_Dx}, s{P_WS+1}, 0
          s_lshl_b32 s{S_A}, s{S_B}, 13
          s_lshl_b32 s{S_Bx}, s{S_HKV}, 10
          s_add_u32 s{S_A}, s{S_A}, s{S_Bx}
          s_lshl_b32 s{S_Bx}, s{S_S}, 16
          s_add_u32 s{S_A}, s{S_A}, s{S_Bx}
          s_sub_u32 s{S_Bx}, s{S_WAVE}, 4
          s_lshl_b32 s{S_Bx}, s{S_Bx}, 8
          s_add_u32 s{S_A}, s{S_A}, s{S_Bx}
          s_add_u32 s{S_EX}, s{P_WS}, s{S_A}
          s_addc_u32 s{S_EX+1}, s{P_WS+1}, 0
          s_add_u32 s{S_Bx}, s{S_Bx}, {L_QIMG}
          v_mov_b32 v{V_T2}, s{S_Bx}""")
    g.label(f"L_pq")
    g(f"""s_load_dword s64, s[{S_Cx}:{S_Dx}], 0 glc
          s_waitcnt lgkmcnt(0)
          s_cmp_lg_u32 s64, -1""")
    poll_branch(g, f"L_pq", "scc1")
    g.stamp(3)
    for rnd in range(2):
        g(f"s_load_dwordx16 s[64:79], s[{S_EX}:{S_EX+1}], {rnd*128} glc")
        g(f"s_load_dwordx16 s[36:51], s[{S_EX}:{S_EX+1}], {rnd*128+64} glc")
        g("s_waitcnt lgkmcnt(0)")
        for i in range(16):
            g(f"v_mov_b32 v{16+rnd*32+i}, s{64+i}")
        for i in range(16):
            g(f"v_mov_b32 v{32+rnd*32+i}, s{36+i}")
    g(f"s_load_dwordx16 s[36:51], s[0:1], 0")
    g("s_mov_b64 exec, 1")
    for u in range(16):
        g(f"ds_write_b128 v{V_T2}, {vr(16+4*u)} offset:{u*16}")
    g("s_mov_b64 exec, -1")
    g("s_waitcnt lgkmcnt(0)")
    flag_add(g, 12)

def gen(debug=0):
    g = G(); g.prof = debug & 2
    g(f"s_cmp_ge_u32 s{S_WG}, 256")
    g("s_cbranch_scc1 L_exit")
    g(f"s_mov_b64 s[{S_DRY}:{S_DRY+1}], -1")
    g(f"s_load_dwordx16 s[36:51], s[0:1], 0")
    g(f"s_load_dwordx8 s[52:59], s[0:1], 64")
    if WARM0:
        g(f"""s_getpc_b64 s[{S_Cx}:{S_Dx}]
              v_lshlrev_b32 v{V_T0}, 4, v0
              global_load_dwordx4 v[128:131], v{V_T0}, s[{S_Cx}:{S_Dx}]
              v_add_u32 v{V_T0}, 0x2000, v{V_T0}
              global_load_dwordx4 v[132:135], v{V_T0}, s[{S_Cx}:{S_Dx}]""")
    g(f"""v_lshrrev_b32 v{V_T0}, 6, v0
          v_and_b32 v{V_LANE}, 63, v0
          v_and_b32 v{V_N}, 15, v0
          v_bfe_u32 v{V_G}, v0, 4, 2
          v_readfirstlane_b32 s{S_WAVE}, v{V_T0}
          s_and_b32 s{S_HKV}, s{S_WG}, 7
          s_lshr_b32 s{S_R}, s{S_WG}, 3
          s_lshr_b32 s{S_B}, s{S_WG}, 5
          s_and_b32 s{S_S}, s{S_R}, 3
          s_lshl_b32 s{S_I}, s{S_HKV}, 2
          s_add_u32 s{S_I}, s{S_I}, s{S_S}
          s_mov_b32 s{S_C}, {f32bits(C_SC):#x}
          s_mov_b32 s{S_SELLO}, 0x05040100
          s_mov_b32 s{S_SELHI}, 0x07060302
          s_mov_b32 s{S_HIM}, 0xffff0000
          s_mov_b32 s{S_POLL}, 0x100000
          s_mul_i32 s{S_J}, s{S_HKV}, 14
          s_lshl_b32 s{S_A}, s{S_B}, 1
          s_add_u32 s{S_J}, s{S_J}, s{S_A}
          s_add_u32 s{S_J}, s{S_J}, s{S_S}
          s_sub_u32 s{S_J}, s{S_J}, 1
          s_cmp_eq_u32 s{S_B}, 7
          s_cselect_b32 s{S_J}, 0xffff, s{S_J}
          s_cmp_eq_u32 s{S_S}, 0
          s_cselect_b32 s{S_J}, 0xffff, s{S_J}
          s_cmp_eq_u32 s{S_S}, 3
          s_cselect_b32 s{S_J}, 0xffff, s{S_J}
          s_mul_i32 s{S_CS}, s{S_HKV}, 7
          s_add_u32 s{S_CS}, s{S_CS}, s{S_B}
          s_cmp_eq_u32 s{S_B}, 7
          s_cselect_b32 s{S_CS}, 0xffff, s{S_CS}
          s_cmp_lg_u32 s{S_S}, 0
          s_cselect_b32 s{S_CS}, 0xffff, s{S_CS}""")
    for r_ in (8, 9, 11, 12, 13, 14, 15, 76, 77, 78, 79):
        g(f"v_mov_b32 v{r_}, 0")
    g(f"""v_lshlrev_b32 v{V_K0}, 9, v{V_N}
          v_lshl_add_u32 v{V_K0}, v{V_G}, 4, v{V_K0}
          v_add_u32 v{V_K1}, 0x2000, v{V_K0}
          v_lshlrev_b32 v{V_V0}, 11, v{V_G}
          v_lshl_add_u32 v{V_V0}, v{V_N}, 4, v{V_V0}
          v_add_u32 v{V_V1}, 0x2000, v{V_V0}""")
    g(f"""s_lshl_b32 s{S_A}, s{S_B}, 3
          s_add_u32 s{S_A}, s{S_A}, s{S_HKV}
          s_lshl_b32 s{S_BASE}, s{S_A}, 22
          s_lshl_b32 s{S_Bx}, s{S_S}, 20
          s_add_u32 s{S_BASE}, s{S_BASE}, s{S_Bx}
          s_lshl_b32 s{S_Bx}, s{S_WAVE}, 14
          s_add_u32 s{S_OFF}, s{S_BASE}, s{S_Bx}
          s_lshl_b32 s{S_Dx}, s{S_A}, 8
          s_add_u32 s{S_Dx}, s{S_Dx}, {WS_TC:#x}""")
    g(f"""v_mov_b32 v{V_T0}, {L_FLAG}
          v_mov_b32 v16, 0
          v_mov_b32 v17, 0
          v_mov_b32 v18, 0
          v_mov_b32 v19, 0
          s_cmp_eq_u32 s{S_WAVE}, 4
          s_cbranch_scc0 L_nz
          ds_write_b128 v{V_T0}, v[16:19]
          ds_write_b128 v{V_T0}, v[16:19] offset:16
          ds_write_b128 v{V_T0}, v[16:19] offset:32""")
    g.label("L_nz")
    g("s_waitcnt lgkmcnt(0)")
    if g.prof:
        for sl in STAMP_SLOTS: g(f"s_mov_b32 s{sl}, 0")
    g.stamp(0)
    g(f"s_cmp_lt_u32 s{S_WAVE}, 4")
    g("s_cbranch_scc1 L_qphase")
    srd(g, S_K, P_K, 0x10000000)
    srd(g, S_V, P_V, 0x10000000)
    srd(g, S_WS, P_WS, WS_BYTES)
    g("s_setprio 2")
    g("s_barrier")
    prefetch(g)
    g("s_setprio 0")
    g.stamp(2)
    q_gather(g)
    g(f"s_mov_b32 s{S_NEXT}, 256")
    g("s_branch L_qwait")
    g.label("L_qphase")
    S_P = S_NEXT2
    srd(g, S_K, P_K, 0x10000000)
    srd(g, S_V, P_V, 0x10000000)
    srd(g, S_T, P_X, 7168)
    srd(g, S_WS, P_WS, WS_BYTES)
    g(f"""s_add_u32 s{S_P}, s{S_B}, 4
          s_cmp_eq_u32 s{S_S}, 3
          s_cselect_b32 s{S_P}, s{S_P}, 99
          s_cmp_eq_u32 s{S_B}, 7
          s_cselect_b32 s{S_P}, s{S_S}, s{S_P}
          s_cmp_ge_u32 s{S_P}, 8
          s_cbranch_scc1 L_noq""")
    srd(g, S_T2, P_WQ, 448*4096*2)
    XR = 16; XA = 44; WB = 128
    g(f"""v_lshrrev_b32 v{V_T3}, 3, v{V_LANE}
          v_lshlrev_b32 v{V_T3}, 13, v{V_T3}
          v_and_b32 v{V_T4}, 7, v{V_LANE}
          v_lshl_add_u32 v{V_T3}, v{V_T4}, 4, v{V_T3}
          s_lshl_b32 s{S_A}, s{S_WAVE}, 20
          s_lshl_b32 s{S_Bx}, s{S_HKV}, 10
          s_add_u32 s{S_A}, s{S_A}, s{S_Bx}
          s_lshl_b32 s{S_Bx}, s{S_P}, 7
          s_add_u32 s{S_A}, s{S_A}, s{S_Bx}
          s_lshl_b32 s{S_Bx}, s{S_WAVE}, 15""")
    for i in range(16):
        dma(g, V_T3, S_T2, S_A, S_Bx, "nt" if NTF & 1 else "")
        g(f"s_add_u32 s{S_A}, s{S_A}, 0x10000")
    g(f"""v_and_b32 v{V_T0}, 7, v{V_LANE}
          v_mul_u32_u24 v{V_T0}, 896, v{V_T0}
          v_lshrrev_b32 v{V_T1}, 3, v{V_LANE}
          v_lshl_add_u32 v{V_T1}, v{V_T1}, 4, v{V_T0}
          v_lshl_add_u32 v{V_T2}, v{V_G}, 4, v{V_T0}
          s_lshl_b32 s{S_A}, s{S_WAVE}, 8""")
    for t in range(7):
        g(f"buffer_load_dwordx4 {vr(XR+4*t)}, v{V_T1}, {S4(S_T)}, 0 offen offset:{t*128}")
    for ks in range(4):
        g(f"buffer_load_dwordx4 {vr(XA+4*ks)}, v{V_T2}, {S4(S_T)}, s{S_A} offen offset:{ks*64}")
    g.label("L_noq")
    CLR = 124
    g(f"""s_mul_i32 s{S_A}, s{S_B}, 896
          s_mul_i32 s{S_Bx}, s{S_I}, 28
          s_add_u32 s{S_A}, s{S_A}, s{S_Bx}
          v_lshlrev_b32 v{V_T5}, 1, v{V_N}
          buffer_load_ushort v{V_GU}, v{V_T5}, {S4(S_T)}, s{S_A} offen
          v_mov_b32 v{CLR}, -1
          v_mov_b32 v{CLR+1}, -1
          v_mov_b32 v{CLR+2}, -1
          v_mov_b32 v{CLR+3}, -1
          v_lshlrev_b32 v{V_T0}, 4, v0
          s_lshl_b32 s{S_A}, s{S_WG}, 13
          s_add_u32 s{S_A}, s{S_A}, {WS_IN:#x}
          buffer_store_dwordx4 {vr(CLR)}, v{V_T0}, {S4(S_WS)}, s{S_A} offen sc1
          s_cmp_eq_u32 s{S_WAVE}, 3
          s_cbranch_scc0 L_noclr""")
    g(f"""s_add_u32 s{S_A}, s{S_A}, 4096
          s_lshl_b32 s{S_Bx}, s{S_WG}, 7
          s_add_u32 s{S_Bx}, s{S_Bx}, {WS_HH-256:#x}
          s_lshl_b32 s{S_Cx}, s{S_WG}, 5
          s_add_u32 s{S_Cx}, s{S_Cx}, {WS_H-384:#x}
          v_mov_b32 v{V_T1}, s{S_A}
          v_mov_b32 v{V_T2}, s{S_Bx}
          v_cmp_lt_u32 vcc, 15, v{V_LANE}
          v_mov_b32 v{V_T3}, s{S_Cx}
          s_nop 0
          v_cndmask_b32 v{V_T1}, v{V_T1}, v{V_T2}, vcc
          v_cmp_lt_u32 vcc, 23, v{V_LANE}
          v_lshlrev_b32 v{V_T0}, 4, v{V_LANE}
          s_nop 0
          v_cndmask_b32 v{V_T1}, v{V_T1}, v{V_T3}, vcc
          v_add_u32 v{V_T1}, v{V_T1}, v{V_T0}
          s_mov_b64 exec, 0x3ffffff
          buffer_store_dwordx4 {vr(CLR)}, v{V_T1}, {S4(S_WS)}, 0 offen sc1
          s_mov_b64 exec, -1""")
    g.label("L_noclr")
    g("s_barrier")
    g(f"""s_cmp_ge_u32 s{S_P}, 8
          s_cbranch_scc0 L_prod""")
    k_loads(g, 0)
    g("s_waitcnt vmcnt(8)")
    flag_add(g, 4)
    g(f"""s_cmp_eq_u32 s{S_WAVE}, 0
          s_cbranch_scc0 L_pf2
          s_mov_b32 s{S_NEXT}, 1
          s_branch L_arrive""")
    g.label("L_prod")
    g(f"""v_lshlrev_b32 v104, 10, v{V_G}
          v_bfe_u32 v{V_T0}, v{V_LANE}, 2, 2
          v_lshl_add_u32 v104, v{V_T0}, 7, v104
          v_and_b32 v{V_T0}, 3, v{V_LANE}
          v_lshl_add_u32 v104, v{V_T0}, 3, v104
          s_lshl_b32 s{S_Bx}, s{S_WAVE}, 15
          v_add_u32 v104, s{S_Bx}, v104
          s_setprio 3""")
    g("s_waitcnt vmcnt(6)")
    for ks in range(4):
        for nt in range(4):
            r = WB + (ks*4 + nt)*4
            g(f"ds_read_b64_tr_b16 v[{r}:{r+1}], v104 offset:{ks*4096+nt*32}")
            g(f"ds_read_b64_tr_b16 v[{r+2}:{r+3}], v104 offset:{ks*4096+nt*32+512}")
    ln_stats(g, XR, 28, [8, 16, 32], 96)
    g("s_waitcnt vmcnt(1)")
    ln_apply(g, XA, 16, 96)
    g("s_waitcnt lgkmcnt(0)")
    for ks in range(4):
        for nt in range(4):
            c = "0" if ks == 0 else vr(104+4*nt)
            g(f"v_mfma_f32_16x16x32_bf16 {vr(104+4*nt)}, {vr(WB+(ks*4+nt)*4)}, {vr(XA+4*ks)}, {c}")
    g(f"""v_lshlrev_b32 v{V_T4}, 7, v{V_G}
          v_lshl_add_u32 v{V_T4}, v{V_N}, 4, v{V_T4}
          s_mov_b32 s{S_EX}, 0x00ff00ff
          s_mov_b32 s{S_EX+1}, 0x00ff00ff
          s_lshl_b32 s{S_A}, s{S_WAVE}, 11
          s_add_u32 s{S_A}, s{S_A}, {L_CB}
          v_add_u32 v{V_T5}, s{S_A}, v{V_T4}
          s_lshl_b32 s{S_A}, s{S_WAVE}, 9
          s_add_u32 s{S_A}, s{S_A}, {L_CB}
          v_add_u32 v{V_T4}, s{S_A}, v{V_T4}
          s_mov_b64 exec, s[{S_EX}:{S_EX+1}]""")
    for nt in range(4):
        g(f"ds_write_b128 v{V_T5}, {vr(104+4*nt)} offset:{nt*512}")
    g(f"""s_mov_b64 exec, -1
          s_waitcnt lgkmcnt(0)""")
    flag_add(g, 0)
    g(f"""s_lshl_b32 s{S_A}, s{S_WAVE}, 8
          s_add_u32 s{S_A}, s{S_A}, {L_QP}
          v_lshlrev_b32 v40, 5, v{V_N}
          v_lshl_add_u32 v40, v{V_G}, 3, v40
          v_add_u32 v40, s{S_A}, v40
          v_lshlrev_b32 v{V_T2}, 4, v{V_N}
          v_add_u32 v{V_T2}, s{S_A}, v{V_T2}
          v_bfe_u32 v{V_T3}, v{V_LANE}, 1, 3
          v_lshlrev_b32 v{V_T3}, 13, v{V_T3}
          v_lshl_add_u32 v{V_T3}, v{V_G}, 16, v{V_T3}
          v_and_b32 v{V_T5}, 1, v{V_LANE}
          v_lshl_add_u32 v{V_T3}, v{V_T5}, 4, v{V_T3}
          s_lshl_b32 s{S_A}, s{S_HKV}, 10
          s_lshl_b32 s{S_Bx}, s{S_P}, 7
          s_add_u32 s{S_A}, s{S_A}, s{S_Bx}
          s_lshl_b32 s{S_Bx}, s{S_WAVE}, 5
          s_add_u32 s{S_A}, s{S_A}, s{S_Bx}""")
    wait_flag(g, "c", 0, 4)
    for w in range(4):
        g(f"ds_read_b128 {vr(16+4*w)}, v{V_T4} offset:{w*2048}")
    g(f"""s_waitcnt lgkmcnt(0)
          v_pk_add_f32 v[16:17], v[16:17], v[20:21]
          v_pk_add_f32 v[18:19], v[18:19], v[22:23]
          v_pk_add_f32 v[24:25], v[24:25], v[28:29]
          v_pk_add_f32 v[26:27], v[26:27], v[30:31]
          v_pk_add_f32 v[16:17], v[16:17], v[24:25]
          v_pk_add_f32 v[18:19], v[18:19], v[26:27]
          v_cvt_pk_bf16_f32 v16, v16, v17
          v_cvt_pk_bf16_f32 v17, v18, v19
          s_mov_b64 exec, s[{S_EX}:{S_EX+1}]
          ds_write_b64 v40, v[16:17]
          s_mov_b64 exec, -1
          s_waitcnt lgkmcnt(0)
          ds_read_b128 v[20:23], v{V_T2}
          s_waitcnt lgkmcnt(0)
          buffer_store_dwordx4 v[20:23], v{V_T3}, {S4(S_WS)}, s{S_A} offen sc1
          s_setprio 0""")
    g.stamp(1)
    g("s_waitcnt vmcnt(0)")
    flag_add(g, 4)
    g(f"""s_cmp_eq_u32 s{S_WAVE}, 0
          s_cbranch_scc0 L_pf
          s_mov_b32 s{S_NEXT}, 0""")
    g.label("L_arrive")
    wait_flag(g, "d", 4, 4)
    g(f"""s_lshl_b32 s{S_A}, s{S_HKV}, 5
          s_add_u32 s{S_Cx}, s{P_DBG}, s{S_A}
          s_addc_u32 s{S_Dx}, s{P_DBG+1}, 0
          s_mov_b32 s{S_A}, 1
          s_atomic_add s{S_A}, s[{S_Cx}:{S_Dx}], 0 glc
          s_lshl_b32 s{S_Bx}, s{S_HKV}, 13
          s_add_u32 s{S_Bx}, s{S_Bx}, {WS_IN+O_GO:#x}
          s_add_u32 s{S_Cx}, s{P_WS}, s{S_Bx}
          s_addc_u32 s{S_Dx}, s{P_WS+1}, 0
          s_waitcnt lgkmcnt(0)""")
    g.stamp(2)
    g(f"""s_and_b32 s{S_A}, s{S_A}, 31
          s_cmp_eq_u32 s{S_A}, 31
          s_cbranch_scc0 L_nonot
          s_mov_b32 s{S_A}, 1""")
    for half in range(2):
        for r in range(16):
            g(f"s_atomic_add s{S_A}, s[{S_Cx}:{S_Dx}], {r*65536:#x}")
        if half == 0:
            g(f"""s_add_u32 s{S_Cx}, s{S_Cx}, 0x100000
                  s_addc_u32 s{S_Dx}, s{S_Dx}, 0""")
    g.label("L_nonot")
    g(f"""s_cmp_eq_u32 s{S_NEXT}, 1
          s_cbranch_scc1 L_pf2""")
    g.label("L_pf")
    k_loads(g, 0)
    g.label("L_pf2")
    k_loads(g, 1); v_loads(g, 0); v_loads(g, 1)
    lds_prefetch(g)
    g.label("L_qwait")
    for e in range(8):
        m16 = 3 << (2*e); m32 = m16 | (m16 << 16)
        g(f"s_mov_b32 s{S_MASK+2*e}, {m32:#x}")
        g(f"s_mov_b32 s{S_MASK+2*e+1}, {m32:#x}")
    g(f"""v_lshrrev_b32 v{V_T2}, 7, v0
          s_lshl_b32 s{S_A}, s{S_B}, 5
          s_add_u32 s{S_A}, s{S_A}, s{S_HKV}
          v_lshlrev_b32 v{V_T2}, 3, v{V_T2}
          v_add_u32 v{V_T2}, s{S_A}, v{V_T2}
          v_lshlrev_b32 v{V_IN1}, 13, v{V_T2}
          v_and_b32 v{V_T3}, 127, v0
          v_lshl_add_u32 v{V_IN1}, v{V_T3}, 2, v{V_IN1}
          s_lshl_b32 s{S_A}, s{S_S}, 9
          s_add_u32 s{S_A}, s{S_A}, {WS_IN:#x}
          v_add_u32 v{V_IN1}, s{S_A}, v{V_IN1}""")
    g(f"""v_lshlrev_b32 v{V_T2}, 3, v{V_G}
          v_add_u32 v{V_T2}, s{S_WAVE}, v{V_T2}
          v_lshl_add_u32 v{V_T2}, v{V_T2}, 4, v{V_N}
          v_mul_u32_u24 v{V_T3}, 4682, v{V_T2}
          v_lshrrev_b32 v{V_T3}, 16, v{V_T3}
          v_mul_u32_u24 v{V_T4}, 14, v{V_T3}
          v_sub_u32 v{V_T4}, v{V_T2}, v{V_T4}
          v_and_b32 v{V_T5}, 3, v{V_T3}
          v_lshlrev_b32 v{V_T5}, 3, v{V_T5}
          v_lshrrev_b32 v{V_T3}, 2, v{V_T3}
          v_add_u32 v{V_T5}, v{V_T5}, v{V_T3}
          s_lshl_b32 s{S_A}, s{S_B}, 5
          v_add_u32 v{V_T5}, s{S_A}, v{V_T5}
          v_lshlrev_b32 v{V_IN2}, 13, v{V_T5}
          v_lshl_add_u32 v{V_IN2}, v{V_T4}, 2, v{V_IN2}
          s_lshl_b32 s{S_A}, s{S_I}, 6
          s_add_u32 s{S_A}, s{S_A}, {WS_IN+O_IN2:#x}
          v_add_u32 v{V_IN2}, s{S_A}, v{V_IN2}
          v_cmp_lt_u32 vcc, 447, v{V_T2}
          v_mov_b32 v{V_T3}, 0x7ffffff0
          s_nop 0
          v_cndmask_b32 v{V_IN2}, v{V_IN2}, v{V_T3}, vcc""")
    for r in range(8):
        g(f"v_mov_b32 v{V_ACC+r}, 0")
    g(f"""v_mov_b32 v{V_M}, 0xf149f2ca
          v_mov_b32 v{V_L}, 0
          v_and_b32 v{V_T4}, 1, v{V_N}
          v_lshlrev_b32 v{V_T4}, 9, v{V_T4}
          v_lshl_add_u32 v{V_T4}, v{V_G}, 4, v{V_T4}
          v_add_u32 v{V_T4}, {L_QIMG}, v{V_T4}
          s_nop 0""")
    wait_flag(g, "q", 12, 4)
    for j in range(8):
        g(f"ds_read_b128 {vr(V_Q+4*j)}, v{V_T4} offset:{j*64}")
    g("s_waitcnt lgkmcnt(0)")
    g.stamp(4)
    g(f"""s_cmp_ge_u32 s{S_WAVE}, 4
          s_cbranch_scc1 L_last
          s_add_u32 s{S_OFF}, s{S_OFF}, {12*16384}""")
    tile_body(g, [56, 56, 56, 56], True)
    g(f"""s_add_u32 s{S_OFF}, s{S_OFF}, {4*16384}
          s_mov_b32 s{S_NEXT}, 12
          s_mov_b32 s{S_NEXT2}, 0
          s_lshl_b32 s{S_A}, s{S_WAVE}, 2
          s_add_u32 s{S_A}, s{S_A}, {L_FLAG+16}
          v_mov_b32 v{V_T0}, s{S_A}
          v_mov_b32 v{V_T1}, 1
          s_waitcnt vmcnt(32)
          s_mov_b64 exec, 1
          ds_write_b32 v{V_T0}, v{V_T1}
          s_mov_b64 exec, -1""")
    if BAL:
        g(f"""s_cmp_eq_u32 s{S_B}, 7
              s_cbranch_scc1 L_nobal
              s_cmp_lt_u32 s{S_B}, 4
              s_cselect_b32 s{S_Bx}, {4*BALS}, 12
              s_cselect_b32 s{S_Cx}, {1 if BALS == 0 else 0}, 0
              s_cmp_eq_u32 s{S_Cx}, 1
              s_cbranch_scc1 L_nobal
              s_lshl_b32 s{S_A}, s{S_S}, 2
              s_add_u32 s{S_A}, s{S_A}, s{S_WAVE}
              s_cmp_eq_u32 s{S_A}, 3
              s_cselect_b32 s{S_NEXT}, 11, s{S_NEXT}
              s_cmp_eq_u32 s{S_A}, s{S_Bx}
              s_cselect_b32 s{S_NEXT}, 13, s{S_NEXT}
              s_cselect_b32 s{S_NEXT2}, 1, 0""")
        g.label("L_nobal")
    g.label("L_loop")
    if BAL:
        g(f"""s_cmp_eq_u32 s{S_NEXT}, s{S_NEXT2}
              s_cbranch_scc0 L_nosp
              s_lshl_b32 s{S_A}, s{S_S}, 20
              s_sub_u32 s{S_OFF}, s{S_BASE}, s{S_A}
              s_add_u32 s{S_OFF}, s{S_OFF}, {63*16384}""")
        g.label("L_nosp")
    if STAG or WARM or TRS or TRW or DRYAT:
        g(f"""s_cmp_eq_u32 s{S_WAVE}, 1
              s_cbranch_scc0 L_nopc""")
        flag_add(g, 44)
        g.label("L_nopc")
    if g.prof:
        for val, sl in ((12, 1), (8, 2), (4, 3)):
            g(f"s_cmp_eq_u32 s{S_NEXT}, {val}")
            g(f"s_cbranch_scc0 L_ps{val}")
            g.stamp(sl)
            g.label(f"L_ps{val}")
    tile_body(g, [24, 24, 24, 24], True)
    g(f"""s_add_u32 s{S_OFF}, s{S_OFF}, {4*16384}
          s_sub_u32 s{S_NEXT}, s{S_NEXT}, 1
          s_cmp_gt_u32 s{S_NEXT}, 0
          s_cbranch_scc1 L_loop""")
    if TRS or TRW:
        g(f"""s_cmp_eq_u32 s{S_WAVE}, 1
              s_cbranch_scc0 L_last""")
        flag_add(g, 44)
    g.label("L_last")
    tile_body(g, [24, 16, 8, 0], False)
    g(f"""s_cmp_lt_u32 s{S_WAVE}, 4
          s_cbranch_scc1 L_tail0
          s_cmp_eq_u32 s{S_NEXT}, 257
          s_cbranch_scc1 L_wdma
          s_mov_b32 s{S_NEXT}, 257
          s_lshl_b32 s{S_A}, s{S_WAVE}, 2
          s_add_u32 s{S_A}, s{S_A}, {L_FLAG}
          v_mov_b32 v{V_T0}, s{S_A}""")
    g.label("L_wl")
    g(f"""ds_read_b32 v{V_T1}, v{V_T0}
          s_waitcnt lgkmcnt(0)
          v_cmp_eq_u32 vcc, 0, v{V_T1}""")
    poll_branch(g, "L_wl")
    g(f"""s_sub_u32 s{S_A}, s{S_WAVE}, 4
          s_lshl_b32 s{S_A}, s{S_A}, 15
          v_lshlrev_b32 v{V_T0}, 4, v{V_LANE}
          v_add_u32 v{V_T0}, s{S_A}, v{V_T0}""")
    for u in range(32):
        g(f"ds_read_b128 {vr(128+4*u)}, v{V_T0} offset:{u*1024}")
    g("s_waitcnt lgkmcnt(0)")
    flag_add(g, 32)
    g("s_branch L_last")
    g.label("L_wdma")
    wait_flag(g, "w", 32, 4)
    g("s_setprio 2")
    cert(g)
    if TRS:
        g(f"v_mov_b32 v{V_T0}, {L_FLAG}")
        g.label("L_wps")
        g(f"""s_sleep 4
              ds_read_b32 v{V_T1}, v{V_T0} offset:44
              s_waitcnt lgkmcnt(0)
              v_cmp_gt_u32 vcc, {TRS}, v{V_T1}""")
        poll_branch(g, "L_wps")
    if not (NOW & 1): small_dma(g)
    if STAG:
        g(f"v_mov_b32 v{V_T0}, {L_FLAG}")
        g(f"v_mov_b32 v{V_T2}, s{S_B}")
        g.label("L_wst")
        g(f"""s_sleep 8
              ds_read_b32 v{V_T1}, v{V_T0} offset:44
              s_waitcnt lgkmcnt(0)
              v_cmp_gt_u32 vcc, v{V_T2}, v{V_T1}""")
        poll_branch(g, "L_wst")
    if TRW:
        g(f"v_mov_b32 v{V_T0}, {L_FLAG}")
        g.label("L_wpw")
        g(f"""s_sleep 4
              ds_read_b32 v{V_T1}, v{V_T0} offset:44
              s_waitcnt lgkmcnt(0)
              v_cmp_gt_u32 vcc, {TRW}, v{V_T1}""")
        poll_branch(g, "L_wpw")
    if not (NOW & 4): wo_dma(g)
    g("s_waitcnt vmcnt(0)")
    g("s_setprio 0")
    if DRYAT:
        g(f"""s_sub_u32 s{S_A}, s{S_WAVE}, 5
              s_cmp_lt_u32 s{S_A}, 2
              s_cbranch_scc0 L_tail0
              v_mov_b32 v{V_T0}, {L_FLAG}""")
        g.label("L_dw")
        g(f"""s_sleep 8
              ds_read_b32 v{V_T1}, v{V_T0} offset:44
              s_waitcnt lgkmcnt(0)
              v_cmp_gt_u32 vcc, {DRYAT}, v{V_T1}""")
        poll_branch(g, "L_dw")
        g(f"""s_mov_b32 s{S_WSV}, s{S_WAVE}
              s_mul_i32 s{S_WAVE}, s{S_A}, 7
              s_mov_b64 s[{S_DRY}:{S_DRY+1}], 0
              s_mov_b64 exec, 0""")
    if WARM:
        g(f"""s_cmp_eq_u32 s{S_WAVE}, 6
              s_cbranch_scc0 L_tail0
              v_mov_b32 v{V_T0}, {L_FLAG}""")
        g.label("L_ww")
        g(f"""s_sleep 8
              ds_read_b32 v{V_T1}, v{V_T0} offset:44
              s_waitcnt lgkmcnt(0)
              v_cmp_gt_u32 vcc, {WARM}, v{V_T1}""")
        poll_branch(g, "L_ww")
        g(f"""s_getpc_b64 s[{S_Cx}:{S_Dx}]
              s_mov_b32 s{S_A}, 18""")
        g.label("L_wm")
        for i in range(4):
            g(f"s_load_dwordx16 s[64:79], s[{S_Cx}:{S_Dx}], {i*64}")
        g(f"""s_add_u32 s{S_Cx}, s{S_Cx}, 256
              s_addc_u32 s{S_Dx}, s{S_Dx}, 0
              s_waitcnt lgkmcnt(0)
              s_sub_u32 s{S_A}, s{S_A}, 1
              s_cmp_gt_u32 s{S_A}, 0
              s_cbranch_scc1 L_wm""")
    g.label("L_tail0")
    g.stamp(5)
    g.dry = bool(DRYAT); g.invm = False; g.nd = 0
    tail(g, debug)
    g.closevm(); g.dry = False
    g.label("L_end")
    if DRYAT:
        g(f"""s_cmp_eq_u32 s{S_DRY}, 0
              s_cbranch_scc0 L_real
              s_waitcnt vmcnt(0) lgkmcnt(0)
              s_nop 7
              s_nop 7
              s_mov_b64 s[{S_DRY}:{S_DRY+1}], -1
              s_mov_b64 exec, -1
              s_mov_b32 s{S_WAVE}, s{S_WSV}
              s_branch L_tail0""")
        g.label("L_real")
    if g.prof:
        g(f"s_cmp_ge_u32 s{S_WG}, 256")
        g("s_cbranch_scc1 L_end2")
        g("s_waitcnt vmcnt(0)")
        g.stamp(15)
        g("s_mov_b64 exec, 1")
        g(f"s_lshl_b32 s{S_A}, s{S_WG}, 3")
        g(f"s_add_u32 s{S_A}, s{S_A}, s{S_WAVE}")
        g(f"s_lshl_b32 s{S_A}, s{S_A}, 7")
        g(f"s_add_u32 s{S_A}, s{S_A}, {WS_DBG+0x100000:#x}")
        g("v_mov_b32 v1, 0")
        for i, sl in enumerate(STAMP_SLOTS):
            g(f"v_mov_b32 v{16+i}, s{sl}")
            g(f"buffer_store_dword v{16+i}, v1, {S4(S_WS)}, s{S_A} offen offset:{i*4}")
        if debug & 4:
            g(f"""s_cmp_eq_u32 s{S_WG}, 0
                  s_cbranch_scc0 L_end2
                  s_cmp_eq_u32 s{S_WAVE}, 0
                  s_cbranch_scc0 L_end2""")
            srd(g, S_T, P_DBG, 256)
            for k_, i in enumerate((4, 5, 6, 10, 14, 15)):
                g(f"s_sub_u32 s{S_A}, s{STAMP_SLOTS[i]}, s{STAMP_SLOTS[0]}")
                g(f"v_mov_b32 v16, s{S_A}")
                g(f"buffer_store_dword v16, v1, {S4(S_T)}, 0 offen offset:{4+4*k_}")
        g.label("L_end2")
    g.label("L_exit")
    g("s_endpgm")
    return g.L

def tail(g, debug):
    R = 128
    xreduce(g, V_L, V_T0, "v_add_f32", [16, 32])
    g(f"""v_lshlrev_b32 v{V_T0}, 5, v{V_N}
          v_lshl_add_u32 v{V_T0}, v{V_G}, 3, v{V_T0}
          s_lshl_b32 s{S_A}, s{S_WAVE}, 11
          s_add_u32 s{S_A}, s{S_A}, {L_CB}
          v_add_u32 v{V_T0}, s{S_A}, v{V_T0}
          v_add_u32 v{V_T1}, 1024, v{V_T0}""")
    for half in range(2):
        a = V_ACC + 4*half
        g(f"ds_write2_b32 v{V_T0}, v{a}, v{a+2} offset0:{half*128} offset1:{half*128+1}")
        g(f"ds_write2_b32 v{V_T1}, v{a+1}, v{a+3} offset0:{half*128} offset1:{half*128+1}")
    g(f"""s_lshl_b32 s{S_A}, s{S_WAVE}, 4
          s_add_u32 s{S_A}, s{S_A}, {L_STAT}
          v_lshlrev_b32 v{V_T2}, 3, v{V_LANE}
          v_add_u32 v{V_T2}, s{S_A}, v{V_T2}
          s_mov_b64 exec, 3
          ds_write_b64 v{V_T2}, v[{V_M}:{V_L}]
          s_mov_b64 exec, -1""")
    g(f"""v_lshlrev_b32 v{V_T0}, 2, v0
          v_add_u32 v{V_T0}, {L_CB}, v{V_T0}
          v_lshrrev_b32 v{V_T1}, 8, v0
          v_lshlrev_b32 v{V_T1}, 3, v{V_T1}
          v_add_u32 v{V_T1}, {L_STAT}, v{V_T1}
          v_bfe_u32 v{V_T2}, v{V_LANE}, 2, 2
          v_lshrrev_b32 v{V_T3}, 1, v{V_T2}
          v_and_b32 v{V_T4}, 1, v{V_G}
          v_lshlrev_b32 v{V_T4}, 1, v{V_T4}
          v_xor_b32 v{V_T3}, v{V_T3}, v{V_T4}
          s_and_b32 s{S_A}, s{S_WAVE}, 3
          v_xor_b32 v{V_T3}, s{S_A}, v{V_T3}
          v_mul_u32_u24 v{V_T4}, 7168, v{V_G}
          v_lshl_add_u32 v{V_T4}, v{V_T2}, 7, v{V_T4}
          v_and_b32 v{V_T2}, 3, v{V_LANE}
          v_lshl_add_u32 v{V_T4}, v{V_T2}, 3, v{V_T4}
          s_lshr_b32 s{S_A}, s{S_WAVE}, 2
          s_lshl_b32 s{S_A}, s{S_A}, 10
          v_add_u32 v{V_T4}, s{S_A}, v{V_T4}
          v_lshl_add_u32 v{V_A}, v{V_T3}, 5, v{V_T4}
          v_xor_b32 v{V_T3}, 2, v{V_T3}
          v_lshl_add_u32 v{V_A+1}, v{V_T3}, 5, v{V_T4}
          v_add_u32 v{V_A+1}, 512, v{V_A+1}
          v_add_u32 v{V_A+2}, 57344, v{V_A}
          v_add_u32 v{V_A+3}, 57344, v{V_A+1}
          s_waitcnt lgkmcnt(0)
          s_barrier""")
    g.stamp(6)
    for w in range(8):
        g(f"ds_read_b64 v[{16+2*w}:{17+2*w}], v{V_T1} offset:{w*16}")
    for w in range(8):
        g(f"ds_read_b32 v{32+w}, v{V_T0} offset:{w*2048}")
    g("s_waitcnt lgkmcnt(8)")
    g(f"""v_max3_f32 v{V_T0}, v16, v18, v20
          v_max3_f32 v{V_T1}, v22, v24, v26
          v_max3_f32 v{V_T0}, v{V_T0}, v28, v30
          v_max_f32 v{V_T0}, v{V_T0}, v{V_T1}""")
    for w in range(8): g(f"v_sub_f32 v{16+2*w}, v{16+2*w}, v{V_T0}")
    for w in range(8): g(f"v_mul_f32 v{16+2*w}, s{S_C}, v{16+2*w}")
    for w in range(8): g(f"v_exp_f32 v{16+2*w}, v{16+2*w}")
    g("s_waitcnt lgkmcnt(0)")
    g(f"""v_mul_f32 v{V_T1}, v16, v17
          v_mul_f32 v{V_T2}, v16, v32""")
    for w in range(1, 8):
        g(f"v_fma_f32 v{V_T1}, v{16+2*w}, v{17+2*w}, v{V_T1}")
        g(f"v_fma_f32 v{V_T2}, v{16+2*w}, v{32+w}, v{V_T2}")
    g(f"""v_rcp_f32 v{V_T3}, v{V_T1}
          v_log_f32 v{V_T4}, v{V_T1}
          s_mul_i32 s{S_A}, s{S_S}, 508
          s_sub_u32 s{S_A}, 2048, s{S_A}
          v_mul_f32 v40, v{V_T2}, v{V_T3}
          v_fma_f32 v42, v{V_T0}, s{S_C}, v{V_T4}""")
    canon(g, 40); canon(g, 42)
    g(f"""buffer_store_dword v40, v{V_IN1}, {S4(S_WS)}, 0 offen sc1
          v_and_b32 v{V_T1}, 127, v0
          v_cmp_eq_u32 vcc, 0, v{V_T1}
          s_and_saveexec_b64 s[{S_EX}:{S_EX+1}], vcc
          s_cbranch_execz L_t1s
          buffer_store_dword v42, v{V_IN1}, {S4(S_WS)}, s{S_A} offen sc1""")
    g.label("L_t1s")
    g(f"s_mov_b64 exec, s[{S_EX}:{S_EX+1}]")
    for q in range(4):
        for ks in range(4):
            a1, a2 = (V_A, V_A+1) if ks < 2 else (V_A+2, V_A+3)
            off = (ks & 1) * 28672 + q * 2048
            r = R + (q*4 + ks) * 4
            g(f"ds_read_b64_tr_b16 v[{r}:{r+1}], v{a1} offset:{off}")
            g(f"ds_read_b64_tr_b16 v[{r+2}:{r+3}], v{a2} offset:{off}")
    g.stamp(7)
    g(f"""s_lshl_b32 s{S_Cx}, s{S_WG}, 13
          s_add_u32 s{S_Cx}, s{S_Cx}, {WS_IN:#x}
          s_cmp_ge_u32 s{S_WAVE}, 2
          s_cbranch_scc1 L_t2b
          v_lshlrev_b32 v{V_T0}, 2, v0
          v_mov_b32 v{V_T1}, 2048""")
    g.label("L_p1")
    for s in range(4):
        g(f"buffer_load_dword v{16+s}, v{V_T0}, {S4(S_WS)}, s{S_Cx} offen offset:{s*512} sc1")
    g(f"""buffer_load_dwordx4 v[24:27], v{V_T1}, {S4(S_WS)}, s{S_Cx} offen sc1
          s_waitcnt vmcnt(0)
          v_max3_u32 v{V_T2}, v16, v17, v18
          v_max3_u32 v{V_T3}, v19, v24, v25
          v_max3_u32 v{V_T2}, v{V_T2}, v26, v27
          v_max_u32 v{V_T2}, v{V_T2}, v{V_T3}
          v_cmp_eq_u32 vcc, -1, v{V_T2}""")
    poll_branch(g, "L_p1")
    g(f"""v_max3_f32 v{V_T2}, v24, v25, v26
          v_max_f32 v{V_T2}, v{V_T2}, v27
          v_sub_f32 v24, v24, v{V_T2}
          v_sub_f32 v25, v25, v{V_T2}
          v_sub_f32 v26, v26, v{V_T2}
          v_sub_f32 v27, v27, v{V_T2}
          v_exp_f32 v24, v24
          v_exp_f32 v25, v25
          v_exp_f32 v26, v26
          v_exp_f32 v27, v27
          v_lshlrev_b32 v{V_T0}, 1, v0
          v_add_f32 v{V_T2}, v24, v25
          v_add_f32 v{V_T3}, v26, v27
          v_add_f32 v{V_T2}, v{V_T2}, v{V_T3}
          v_rcp_f32 v{V_T2}, v{V_T2}
          v_mul_f32 v{V_T3}, v24, v16
          v_fma_f32 v{V_T3}, v25, v17, v{V_T3}
          v_fma_f32 v{V_T3}, v26, v18, v{V_T3}
          v_fma_f32 v{V_T3}, v27, v19, v{V_T3}
          v_mul_f32 v{V_T3}, v{V_T3}, v{V_T2}
          v_cvt_pk_bf16_f32 v{V_T3}, v{V_T3}, v{V_T3}
          v_add_u32 v{V_T1}, {L_OF}, v{V_T0}
          ds_write_b16 v{V_T1}, v{V_T3}""")
    if debug & 1:
        g(f"""s_lshl_b32 s{S_A}, s{S_WG}, 8
              s_add_u32 s{S_A}, s{S_A}, {WS_DBG:#x}
              buffer_store_short v{V_T3}, v{V_T0}, {S4(S_WS)}, s{S_A} offen""")
    g.label("L_t2b")
    g(f"""v_lshlrev_b32 v{V_T0}, 4, v{V_G}
          v_add_u32 v{V_T0}, {L_OF}, v{V_T0}
          v_cmp_eq_u32 vcc, 1, v{V_G}
          v_cmp_eq_u32 s[{S_A}:{S_A+1}], 2, v{V_G}
          v_cmp_eq_u32 s[{S_EX}:{S_EX+1}], 3, v{V_G}
          s_waitcnt lgkmcnt(0)
          s_barrier""")
    g.stamp(8)
    for ks in range(4):
        g(f"ds_read_b128 {vr(16+4*ks)}, v{V_T0} offset:{ks*64}")
    g(f"v_lshlrev_b32 v{V_T0}, 2, v0")
    g(f"v_add_u32 v{V_T0}, {O_IN2}, v{V_T0}")
    for ks in range(4):
        g(f"s_waitcnt lgkmcnt({3-ks})")
        for q in range(4):
            c = "0" if ks == 0 else vr(32+4*q)
            g(f"v_mfma_f32_16x16x32_bf16 {vr(32+4*q)}, {vr(16+4*ks)}, {vr(R+(q*4+ks)*4)}, {c}")
    g.nop(8)
    g(f"""v_cndmask_b32 v48, v32, v36, vcc
          v_cndmask_b32 v48, v48, v40, s[{S_A}:{S_A+1}]
          v_cndmask_b32 v48, v48, v44, s[{S_EX}:{S_EX+1}]""")
    canon(g, 48)
    g(f"buffer_store_dword v48, v{V_IN2}, {S4(S_WS)}, 0 offen sc1")
    g.stamp(9)
    V_X = V_GU
    g(f"""v_bfe_u32 v{V_T3}, v{V_LANE}, 2, 2
          v_and_b32 v{V_T4}, 3, v{V_LANE}
          s_cmp_ge_u32 s{S_J}, 112
          s_cbranch_scc1 L_plwd
          s_cmp_eq_u32 s{S_WAVE}, 7
          s_cbranch_scc0 L_pldone
          v_lshlrev_b32 v{V_T5}, 8, v{V_G}
          v_lshl_add_u32 v{V_T5}, v{V_T3}, 5, v{V_T5}
          v_lshl_add_u32 v{V_T5}, v{V_T4}, 3, v{V_T5}
          v_add_u32 v{V_T5}, {L_WD}, v{V_T5}""")
    for m in range(2):
        for ks in range(14):
            r = R + (m*14 + ks)*4
            g(f"ds_read_b64_tr_b16 v[{r}:{r+1}], v{V_T5} offset:{m*14336+ks*1024}")
            g(f"ds_read_b64_tr_b16 v[{r+2}:{r+3}], v{V_T5} offset:{m*14336+ks*1024+128}")
    g("s_branch L_pldone")
    g.label("L_plwd")
    g(f"""s_cmp_ge_u32 s{S_CS}, 56
          s_cbranch_scc1 L_pldone
          v_lshlrev_b32 v{V_T5}, 7, v{V_G}
          v_lshl_add_u32 v{V_T5}, v{V_T3}, 4, v{V_T5}
          v_lshl_add_u32 v{V_T5}, v{V_T4}, 3, v{V_T5}
          s_mul_i32 s{S_A}, s{S_WAVE}, {7*512}
          s_add_u32 s{S_A}, s{S_A}, {L_WD}
          v_add_u32 v{V_T5}, s{S_A}, v{V_T5}""")
    for ks in range(7):
        g(f"ds_read_b64_tr_b16 v[{R+4*ks}:{R+4*ks+1}], v{V_T5} offset:{ks*512}")
        g(f"ds_read_b64_tr_b16 v[{R+4*ks+2}:{R+4*ks+3}], v{V_T5} offset:{ks*512+64}")
    g.label("L_pldone")
    g(f"""s_cmp_eq_u32 s{S_WAVE}, 0
          s_cbranch_scc0 L_t5
          v_cmp_gt_u32 s[{S_A}:{S_A+1}], 14, v{V_N}
          v_lshlrev_b32 v{V_T0}, 9, v{V_G}
          v_lshl_add_u32 v{V_T0}, v{V_N}, 2, v{V_T0}
          v_add_u32 v{V_T0}, {O_IN2}, v{V_T0}
          v_lshlrev_b32 v{V_T5}, 1, v{V_N}
          s_lshl_b32 s{S_Dx}, s{S_WG}, 5
          s_add_u32 s{S_Dx}, s{S_Dx}, {WS_H:#x}
          v_lshlrev_b32 v{V_X}, 16, v{V_X}""")
    g.label("L_p2")
    for u in range(8):
        g(f"buffer_load_dword v{16+u}, v{V_T0}, {S4(S_WS)}, s{S_Cx} offen offset:{u*64} sc1")
    g(f"""s_waitcnt vmcnt(0)
          v_max3_u32 v{V_T1}, v16, v17, v18
          v_max3_u32 v{V_T2}, v19, v20, v21
          v_max3_u32 v{V_T1}, v{V_T1}, v22, v23
          v_max_u32 v{V_T1}, v{V_T1}, v{V_T2}
          v_cmp_eq_u32 vcc, -1, v{V_T1}
          v_add_f32 v16, v16, v17
          v_add_f32 v18, v18, v19
          v_add_f32 v20, v20, v21
          v_add_f32 v22, v22, v23
          s_and_b64 vcc, vcc, s[{S_A}:{S_A+1}]""")
    poll_branch(g, "L_p2", "scc0")
    g(f"""v_add_f32 v16, v16, v18
          v_add_f32 v20, v20, v22
          v_add_f32 v16, v16, v20""")
    xreduce(g, 16, 18, "v_add_f32", [16, 32])
    bf16_round(g, 16, 16)
    g(f"""v_add_f32 v16, v16, v{V_X}
          s_nop 1
          v_mov_b32_dpp v17, v16 quad_perm:[1,1,3,3] row_mask:0xf bank_mask:0xf
          v_cvt_pk_bf16_f32 v16, v16, v17""")
    canon(g, 16)
    g(f"""s_mov_b64 exec, 0x1555
          buffer_store_dword v16, v{V_T5}, {S4(S_WS)}, s{S_Dx} offen sc1
          s_mov_b64 exec, -1""")
    g.label("L_t5")
    g.stamp(10)
    g(f"""s_cmp_lt_u32 s{S_CS}, 56
          s_cbranch_scc1 L_t8
          s_cmp_ge_u32 s{S_J}, 112
          s_cbranch_scc1 L_end""")
    GATE = True
    g(f"""v_lshlrev_b32 v{V_M}, 4, v0
          v_and_b32 v{V_T1}, 1, v0
          v_cmp_eq_u32 s[{S_EX}:{S_EX+1}], 1, v{V_T1}
          s_mul_i32 s{S_A}, s{S_WAVE}, 896
          s_add_u32 s{S_A}, s{S_A}, {L_HN}
          v_bfe_u32 v{V_T3}, v0, 1, 3
          v_lshlrev_b32 v{V_T3}, 2, v{V_T3}
          v_add_u32 v{V_T3}, v{V_T3}, v{V_G}
          v_mul_u32_u24 v{V_T3}, 28, v{V_T3}
          v_lshl_add_u32 v{V_L}, v{V_T1}, 4, v{V_T3}
          v_add_u32 v{V_L}, s{S_A}, v{V_L}
          s_mov_b32 s{S_Cx}, {WS_H:#x}
          v_and_b32 v{V_AL}, 7, v{V_LANE}
          v_mul_u32_u24 v{V_AL}, 896, v{V_AL}
          v_lshl_add_u32 v{V_AL}, v{V_G}, 4, v{V_AL}
          v_add_u32 v{V_AL}, {L_HN}, v{V_AL}
          s_barrier""")
    g.label("L_p3")
    g(f"""buffer_load_dwordx4 v[16:19], v{V_M}, {S4(S_WS)}, s{S_Cx} offen sc1
          s_waitcnt vmcnt(0)
          v_cndmask_b32 v19, v19, 0, s[{S_EX}:{S_EX+1}]
          v_max3_u32 v{V_T3}, v16, v17, v18
          v_max_u32 v{V_T3}, v{V_T3}, v19
          v_cmp_eq_u32 vcc, -1, v{V_T3}""")
    for i in range(4):
        g(f"v_lshlrev_b32 v{24+2*i}, 16, v{16+i}")
        g(f"v_and_b32 v{25+2*i}, s{S_HIM}, v{16+i}")
    poll_branch(g, "L_p3")
    g.stamp(11)
    g(f"""v_pk_add_f32 v[{V_T0}:{V_T1}], v[24:25], v[26:27]
          v_pk_add_f32 v[{V_T2}:{V_T3}], v[28:29], v[30:31]
          v_pk_add_f32 v[{V_T0}:{V_T1}], v[{V_T0}:{V_T1}], v[{V_T2}:{V_T3}]
          v_add_f32 v{V_T0}, v{V_T0}, v{V_T1}""")
    xreduce(g, V_T0, V_T1, "v_add_f32", [1, 2, 4, 8, 16, 32])
    g(f"""v_mul_f32 v{V_T4}, {f32bits(1.0/448.0):#x}, v{V_T0}
          v_mul_f32 v{V_T5}, {f32bits(1.0/448.0):#x}, v{V_T0}""")
    for i in range(4):
        g(f"v_pk_add_f32 v[{24+2*i}:{25+2*i}], v[{24+2*i}:{25+2*i}], v[{V_T4}:{V_T5}] neg_lo:[0,1] neg_hi:[0,1]")
    g(f"""v_cndmask_b32 v30, v30, 0, s[{S_EX}:{S_EX+1}]
          v_cndmask_b32 v31, v31, 0, s[{S_EX}:{S_EX+1}]
          v_pk_mul_f32 v[{V_T0}:{V_T1}], v[24:25], v[24:25]
          v_pk_mul_f32 v[{V_T2}:{V_T3}], v[26:27], v[26:27]
          v_pk_fma_f32 v[{V_T0}:{V_T1}], v[28:29], v[28:29], v[{V_T0}:{V_T1}]
          v_pk_fma_f32 v[{V_T2}:{V_T3}], v[30:31], v[30:31], v[{V_T2}:{V_T3}]""")
    ln_finish(g, [1, 2, 4, 8, 16, 32])
    ln_apply(g, 16, 4, 32)
    g(f"""ds_write2_b32 v{V_L}, v16, v17 offset0:0 offset1:1
          ds_write_b32 v{V_L}, v18 offset:8
          s_andn2_b64 exec, exec, s[{S_EX}:{S_EX+1}]
          ds_write_b32 v{V_L}, v19 offset:12
          s_mov_b64 exec, -1
          s_lshl_b32 s{S_A}, s{S_J}, 8
          s_add_u32 s{S_A}, s{S_A}, {WS_HH:#x}
          v_lshlrev_b32 v{V_T0}, 5, v{V_N}
          v_lshl_add_u32 v{V_T0}, v{V_G}, 3, v{V_T0}
          s_waitcnt lgkmcnt(0)
          s_barrier""")
    g.stamp(12)
    g(f"""s_cmp_eq_u32 s{S_WAVE}, 7
          s_cbranch_scc0 L_end""")
    for ks in range(14):
        g(f"ds_read_b128 {vr(16+4*ks)}, v{V_AL} offset:{ks*64}")
    for ks in range(14):
        g(f"s_waitcnt lgkmcnt({13-ks})")
        c0 = "0" if ks == 0 else "v[80:83]"
        c1 = "0" if ks == 0 else "v[84:87]"
        g(f"v_mfma_f32_16x16x32_bf16 v[80:83], {vr(R+4*ks)}, {vr(16+4*ks)}, {c0}")
        g(f"v_mfma_f32_16x16x32_bf16 v[84:87], {vr(R+56+4*ks)}, {vr(16+4*ks)}, {c1}")
    g("s_mov_b32 exec_lo, 0x00ff00ff")
    g("s_mov_b32 exec_hi, 0x00ff00ff")
    g.nop(6)
    for r in range(8):
        bf16_round(g, 80+r, 80+r)
    g(f"""v_pk_mul_f32 v[80:81], v[80:81], v[84:85]
          v_pk_mul_f32 v[82:83], v[82:83], v[86:87]
          v_cvt_pk_bf16_f32 v16, v80, v81
          v_cvt_pk_bf16_f32 v17, v82, v83""")
    canon(g, 16); canon(g, 17)
    g(f"""buffer_store_dwordx2 v[16:17], v{V_T0}, {S4(S_WS)}, s{S_A} offen sc1
          s_mov_b64 exec, -1""")
    g.stamp(13)
    g("s_branch L_end")
    g.label("L_t8")
    g(f"""s_lshl_b32 s{S_A}, s{S_CS}, 3
          v_and_b32 v{V_T2}, 7, v{V_LANE}
          v_add_u32 v{V_T2}, s{S_A}, v{V_T2}
          v_mul_u32_u24 v{V_T3}, 4682, v{V_T2}
          v_lshrrev_b32 v{V_T3}, 16, v{V_T3}
          v_mul_u32_u24 v{V_T4}, 14, v{V_T3}
          v_sub_u32 v{V_T4}, v{V_T2}, v{V_T4}
          v_and_b32 v{V_M}, 3, v{V_T3}
          v_lshlrev_b32 v{V_M}, 3, v{V_M}
          v_lshrrev_b32 v{V_T3}, 2, v{V_T3}
          v_add_u32 v{V_M}, v{V_M}, v{V_T3}
          v_lshlrev_b32 v{V_M}, 5, v{V_M}
          v_lshl_add_u32 v{V_M}, v{V_T4}, 1, v{V_M}
          v_and_b32 v{V_T3}, 1, v{V_G}
          v_lshl_add_u32 v{V_M}, v{V_T3}, 12, v{V_M}
          s_mov_b32 s{S_Cx}, {WS_H:#x}
          v_and_b32 v{V_T0}, 7, v{V_LANE}
          v_lshlrev_b32 v{V_T0}, 5, v{V_T0}
          v_lshrrev_b32 v{V_T1}, 1, v{V_G}
          v_lshl_add_u32 v{V_T0}, v{V_T1}, 8, v{V_T0}
          v_and_b32 v{V_T1}, 1, v{V_G}
          v_lshl_add_u32 v{V_T0}, v{V_T1}, 4, v{V_T0}
          s_mul_i32 s{S_A}, s{S_WAVE}, {7*512}
          s_add_u32 s{S_A}, s{S_A}, {WS_HH:#x}
          v_lshlrev_b32 v{V_T1}, 4, v{V_LANE}
          s_lshl_b32 s{S_Bx}, s{S_WAVE}, 9
          s_add_u32 s{S_Bx}, s{S_Bx}, {L_WO}
          v_add_u32 v{V_T1}, s{S_Bx}, v{V_T1}
          v_mul_u32_u24 v{V_L}, {4*896}, v{V_G}
          v_lshl_add_u32 v{V_L}, v{V_T2}, 1, v{V_L}""")
    srd(g, S_T, P_OUT, 7168)
    g(f"""s_cmp_eq_u32 s{S_WAVE}, 0
          s_cbranch_scc0 L_ph_ok
          v_and_b32 v{V_NMC}, 0xfffffffc, v{V_M}
          v_and_b32 v{V_AL}, 2, v{V_M}
          v_lshlrev_b32 v{V_AL}, 3, v{V_AL}""")
    g.label("L_ph")
    for r in range(4):
        g(f"buffer_load_dword v{56+r}, v{V_NMC}, {S4(S_WS)}, s{S_Cx} offen offset:{r*1024} sc1")
    g(f"""s_waitcnt vmcnt(0)
          v_max3_u32 v{V_T2}, v56, v57, v58
          v_max_u32 v{V_T2}, v{V_T2}, v59
          v_cmp_eq_u32 vcc, -1, v{V_T2}""")
    poll_branch(g, "L_ph")
    g("s_barrier")
    g.label("L_p4")
    for ks in range(7):
        g(f"buffer_load_dwordx4 {vr(16+4*ks)}, v{V_T0}, {S4(S_WS)}, s{S_A} offen offset:{ks*512} sc1")
    g("s_waitcnt vmcnt(0)")
    g(f"v_max3_u32 v{V_T2}, v16, v17, v18")
    for i in range(19, 44, 2):
        if i + 1 <= 43:
            g(f"v_max3_u32 v{V_T2}, v{V_T2}, v{i}, v{i+1}")
        else:
            g(f"v_max_u32 v{V_T2}, v{V_T2}, v{i}")
    g(f"v_cmp_eq_u32 vcc, -1, v{V_T2}")
    poll_branch(g, "L_p4")
    g.stamp(14)
    g("s_waitcnt lgkmcnt(0)")
    for ks in range(7):
        c = "0" if ks == 0 else "v[80:83]"
        g(f"v_mfma_f32_16x16x32_bf16 v[80:83], {vr(16+4*ks)}, {vr(R+4*ks)}, {c}")
    g("s_mov_b32 exec_hi, 0")
    g.nop(8)
    g(f"""ds_write_b128 v{V_T1}, v[80:83]
          s_mov_b64 exec, -1
          v_lshlrev_b32 v{V_T0}, 4, v{V_LANE}
          s_waitcnt lgkmcnt(0)
          s_barrier
          s_cmp_eq_u32 s{S_WAVE}, 0
          s_cbranch_scc0 L_end""")
    for w in range(8):
        g(f"ds_read_b128 {vr(16+4*w)}, v{V_T0} offset:{L_WO+w*512}")
    g("s_mov_b64 exec, 0x00ff00ff")
    g("s_waitcnt lgkmcnt(0)")
    for w in range(1, 8):
        g(f"v_pk_add_f32 v[16:17], v[16:17], v[{16+4*w}:{17+4*w}]")
        g(f"v_pk_add_f32 v[18:19], v[18:19], v[{18+4*w}:{19+4*w}]")
    for r in range(4):
        bf16_round(g, 16+r, 16+r)
        g(f"v_lshrrev_b32 v{56+r}, v{V_AL}, v{56+r}")
        g(f"v_lshlrev_b32 v{56+r}, 16, v{56+r}")
        g(f"v_add_f32 v{16+r}, v{16+r}, v{56+r}")
        g(f"v_cvt_pk_bf16_f32 v{16+r}, v{16+r}, v{16+r}")
        g(f"buffer_store_short v{16+r}, v{V_L}, {S4(S_T)}, 0 offen offset:{r*896}")

DOC = """
"""
def emit(path, kname, debug=0):
    hdr = open("cdna_kernels/" + NAME + ".s.ref").read().split("\n")
    out = []
    for line in hdr:
        if line.startswith("; @launch"):
            out.append(f"; @launch grid=(256,1,1) block=(512,1,1) lds={LDS_BYTES}")
            out.extend(DOC.strip().split("\n"))
            break
        out.append(line)
    out.append('.amdgcn_target "amdgcn-amd-amdhsa--gfx950"')
    out.append(".text")
    out.append(f".globl {kname}")
    out.append(".p2align 8")
    out.append(f".type {kname},@function")
    out.append(f"{kname}:")
    out += gen(debug)
    out.append('.section .rodata,"a"')
    out.append(".p2align 6")
    out.append(f".amdhsa_kernel {kname}")
    out.append("""  .amdhsa_next_free_vgpr 256
  .amdhsa_next_free_sgpr 102
  .amdhsa_accum_offset 256
  .amdhsa_group_segment_fixed_size 0
  .amdhsa_kernarg_size 96
  .amdhsa_user_sgpr_count 2
  .amdhsa_user_sgpr_kernarg_segment_ptr 1
  .amdhsa_system_sgpr_workgroup_id_x 1
  .amdhsa_float_denorm_mode_32 3
.end_amdhsa_kernel""")
    open(path, "w").write("\n".join(out) + "\n")

if __name__ == "__main__":
    debug = int(sys.argv[1]) if len(sys.argv) > 1 else 0
    path = sys.argv[2] if len(sys.argv) > 2 else "cdna_kernels/" + NAME + ".s"
    emit(path, NAME + "_kernel", debug)
```
